```python
import torch

def _softmax(x, axis=-1):
    return torch.softmax(x, dim=axis)

def _gelu(x):
    return torch.nn.functional.gelu(x, approximate='tanh')

def _silu(x):
    return torch.nn.functional.silu(x)

def _sigmoid(x):
    return torch.sigmoid(x)

def _layernorm(x, axis=-1, eps=1e-05):
    m = x.mean(dim=axis, keepdim=True)
    v = x.var(dim=axis, keepdim=True, unbiased=False)
    return (x - m) / torch.sqrt(v + eps)

def _scatter_add(tgt, idx, src, axis=0):
    return tgt.clone().index_add_(axis, idx, src)

def _segment_sum(src, seg, n):
    out = torch.zeros((n,) + src.shape[1:], dtype=src.dtype)
    return out.index_add_(0, seg, src)

def _pad(x, pw):
    flat = tuple((v for pair in reversed(pw) for v in pair))
    return torch.nn.functional.pad(x, flat)
kernel_name = 'gated_mix__memory_aug_recurrent_mem_tr__moe_arch_mod__prompt'

def setup_inputs():

    _w = lambda a: (lambda t: t.to(torch.bfloat16) if t.is_floating_point() else t)(torch.as_tensor(a))

    def _A_setup():
        B, S, Dm = (1, 2048, 512)
        H, Dh = (32, 128)
        M, seg = (8, 32)
        seg = min(seg, S)
        S = S // seg * seg
        return {'x': _w((lambda *s: torch.randn(*s, dtype=torch.bfloat16) * 0.05)(B, S, Dm)), 'mem0': _w((lambda *s: torch.randn(*s, dtype=torch.bfloat16) * 0.8)(B, M, Dm)), 'Wq': _w((lambda *s: torch.randn(*s, dtype=torch.bfloat16) * 3.2)(Dm, H, Dh) * Dm ** (-0.5)), 'Wk': _w((lambda *s: torch.randn(*s, dtype=torch.bfloat16) * 3.2)(Dm, H, Dh) * Dm ** (-0.5)), 'Wv': _w((lambda *s: torch.randn(*s, dtype=torch.bfloat16) * 0.8)(Dm, H, Dh) * Dm ** (-0.5)), 'Wo': _w((lambda *s: torch.randn(*s, dtype=torch.bfloat16) * 0.8)(H, Dh, Dm) * (H * Dh) ** (-0.5)), 'seg_len': seg}
    _A_in = _A_setup()

    def _B_setup():
        B, S, D, F, C = (1, 2048, 512, 1792, 8)
        return {'x': _w((lambda *s: torch.randn(*s, dtype=torch.bfloat16) * 0.05)(B, S, D)), 'w_r': _w((lambda *s: torch.randn(*s, dtype=torch.bfloat16) * 1.6)(D)), 'w_gate': _w((lambda *s: torch.randn(*s, dtype=torch.bfloat16) * 0.2)(D, F)), 'w_up': _w((lambda *s: torch.randn(*s, dtype=torch.bfloat16) * 0.2)(D, F)), 'w_down': _w((lambda *s: torch.randn(*s, dtype=torch.bfloat16) * 0.2)(F, D))}
    _B_in = _B_setup()
    return {'A_x': _A_in['x'], 'A_mem0': _A_in['mem0'], 'A_Wq': _A_in['Wq'], 'A_Wk': _A_in['Wk'], 'A_Wv': _A_in['Wv'], 'A_Wo': _A_in['Wo'], 'A_seg_len': _A_in['seg_len'], 'B_x': _B_in['x'], 'B_w_r': _B_in['w_r'], 'B_w_gate': _B_in['w_gate'], 'B_w_up': _B_in['w_up'], 'B_w_down': _B_in['w_down'], 'gate_w': _w((lambda *s: torch.randn(*s, dtype=torch.bfloat16) * 0.05)(512) * 16.0)}

def reference(A_x, A_mem0, A_Wq, A_Wk, A_Wv, A_Wo, A_seg_len, B_x, B_w_r, B_w_gate, B_w_up, B_w_down, gate_w):

    def _A_ref(x, mem0, Wq, Wk, Wv, Wo, seg_len):
        B, S, Dm = x.shape
        H, Dh = (Wq.shape[1], Wq.shape[2])
        M = mem0.shape[1]
        scale = Dh ** (-0.5)
        n_seg = S // seg_len
        L = M + seg_len
        idx = torch.arange(L)
        mask = (idx[:, None] < M) | (idx[:, None] >= idx[None, :])
        mem = mem0
        outs = []
        for s in range(n_seg):
            xs = x[:, s * seg_len:(s + 1) * seg_len, :].clone()
            h = torch.concatenate([mem, xs], axis=1)
            q = torch.einsum('btd,dhe->bhte', h, Wq)
            k = torch.einsum('btd,dhe->bhte', h, Wk)
            v = torch.einsum('btd,dhe->bhte', h, Wv)
            scores = torch.einsum('bhqe,bhke->bhqk', q, k) * scale
            scores = torch.where(mask[None, None], scores, -1000000000.0)
            p = _softmax(scores, axis=-1)
            o = torch.einsum('bhqk,bhke->bhqe', p, v)
            o = torch.einsum('bhte,hed->btd', o, Wo)
            mem = o[:, :M, :].clone()
            outs.append(o[:, M:, :])
        return torch.concatenate(outs, axis=1)

    def _B_ref(x, w_r, w_gate, w_up, w_down):
        B, S, D = x.shape
        C = 8
        r = x @ w_r
        idx = torch.argsort(-r, axis=-1)[:, :C]
        idx_e = (lambda x, n, axis: torch.repeat_interleave(x, n, dim=axis))(idx.reshape(B, C, 1), D, axis=2)
        x_sel = (lambda x, i, axis: torch.take_along_dim(x, i, dim=axis))(x, idx_e, axis=1)
        g = _silu(x_sel @ w_gate)
        u = x_sel @ w_up
        y = g * u @ w_down
        r_sel = _sigmoid((lambda x, i, axis: torch.take_along_dim(x, i, dim=axis))(r, idx, axis=1))
        y = y * r_sel.reshape(B, C, 1)
        b_off = (torch.arange(B) * S).reshape(B, 1)
        flat_idx = (idx + b_off).reshape(B * C)
        zero = (x * 0.0).reshape(B * S, D)
        upd = _scatter_add(zero, flat_idx, y.reshape(B * C, D), axis=0)
        return x + upd.reshape(B, S, D)
    x = A_x
    g = _sigmoid((x * gate_w).sum(-1, keepdims=True))
    a = _A_ref(x, A_mem0, A_Wq, A_Wk, A_Wv, A_Wo, A_seg_len)
    b = _B_ref(x, B_w_r, B_w_gate, B_w_up, B_w_down)
    return g * a + (1 - g) * b
```

```python
import re

_REG = re.compile(r'\b([vas])(?:\[(\d+):(\d+)\]|(\d+))(?![\w])')

def regs_of(op):
    out=set()
    for m in _REG.finditer(op):
        k=m.group(1)
        if m.group(2) is not None:
            for i in range(int(m.group(2)),int(m.group(3))+1): out.add((k,i))
        else: out.add((k,int(m.group(4))))
    if re.search(r'\bvcc\b',op): out.add(('s','vcc'))
    if re.search(r'\bm0\b',op): out.add(('s','m0'))
    if re.search(r'\bexec\b',op): out.add(('s','exec'))
    return out

TRANS=('v_exp_f32','v_log_f32','v_rcp_f32','v_rsq_f32','v_sqrt_f32','v_sin_f32','v_cos_f32')

class Ins:
    __slots__=('text','mn','kind','rd','wr','ws','passes','srcc','ab','dpp')
    def __init__(self,text):
        self.text=text
        t=text.split(';')[0].strip()
        parts=t.split(None,1)
        mn=parts[0]; self.mn=mn
        rest=parts[1] if len(parts)>1 else ''
        ops=[o.strip() for o in re.split(r',(?![^\[]*\])',rest)] if rest else []
        self.rd=set(); self.wr=set(); self.ws=1; self.passes=0; self.srcc=set(); self.ab=set(); self.dpp=False
        if mn=='s_nop':
            self.kind='nop'; self.ws=int(ops[0],0)+1; return
        if mn.startswith('v_mfma') or mn.startswith('v_smfmac'):
            self.kind='mfma'
            self.passes = 8 if '32x32' in mn else 4
            self.wr=regs_of(ops[0])
            self.ab=regs_of(ops[1])|regs_of(ops[2])
            if mn.startswith('v_smfmac'):
                self.srcc=regs_of(ops[0]); self.ab|=regs_of(ops[3].split()[0])
            else:
                self.srcc=regs_of(ops[3].split()[0])
            self.rd=self.ab|self.srcc
            return
        if mn.startswith('v_'):
            self.kind='valu'
            if 'dpp' in mn or 'quad_perm' in rest or 'row_' in rest: self.dpp=True
            if mn.startswith('v_permlane'):
                self.dpp=True
                r=regs_of(ops[0])|regs_of(ops[1]); self.rd=set(r); self.wr=set(r); return
            if mn.startswith('v_cmp'):
                self.wr=regs_of(ops[0]);
                for o in ops[1:]: self.rd|=regs_of(o)
                return
            self.wr=regs_of(ops[0])
            start=1
            if mn.startswith(('v_add_co','v_addc_co','v_sub_co','v_subb_co')):
                self.wr|=regs_of(ops[1]); start=2
            for o in ops[start:]: self.rd|=regs_of(o)
            if mn.startswith(('v_fmac','v_dot2c','v_pk_fmac')): self.rd|=regs_of(ops[0])
            return
        if mn.startswith('ds_'):
            self.kind='ds'
            if mn.startswith('ds_read') or mn.startswith('ds_bpermute') or mn.startswith('ds_swizzle') or mn.startswith('ds_permute'):
                self.wr=regs_of(ops[0])
                for o in ops[1:]: self.rd|=regs_of(o)
            else:
                for o in ops: self.rd|=regs_of(o)
            return
        if mn.startswith('buffer_') or mn.startswith('global_'):
            self.kind='vmem'
            islds = bool(re.search(r'\blds\b',rest)) or 'load_lds' in mn
            if 'load' in mn and not islds:
                self.wr=regs_of(ops[0])
                for o in ops[1:]: self.rd|=regs_of(o)
            else:
                for o in ops: self.rd|=regs_of(o)
                if 'atomic' in mn and re.search(r'\bsc0\b',rest): self.wr=regs_of(ops[0])
            if islds: self.rd.add(('s','m0'))
            return
        if mn.startswith('s_'):
            self.kind='salu'
            if mn.startswith(('s_cmp','s_cbranch','s_branch','s_waitcnt','s_barrier','s_endpgm','s_sleep','s_setprio','s_bitcmp')):
                for o in ops: self.rd|=regs_of(o)
            elif ops:
                self.wr=regs_of(ops[0])
                for o in ops[1:]: self.rd|=regs_of(o)
            return
        self.kind='other'

def isvec(r): return r[0] in 'va'

def need(p,c):
    n=0
    if p.kind=='valu':
        vw={r for r in p.wr if isvec(r)}
        sw={r for r in p.wr if r[0]=='s'}
        if c.kind=='mfma' and vw & c.rd: n=max(n,2)
        if c.kind=='valu' and c.dpp and vw & c.rd: n=max(n,2)
        if c.kind=='valu' and c.mn.startswith(('v_readfirstlane','v_readlane')) and vw & c.rd: n=max(n,1)
        if p.mn.startswith(TRANS) and c.kind=='valu' and not c.mn.startswith(TRANS) and vw & c.rd: n=max(n,1)
        if p.mn.startswith(TRANS) and c.kind in('vmem','ds') and vw & c.rd: n=max(n,1)
        if sw:
            if c.kind=='vmem' and sw & c.rd: n=max(n,5)
            if c.kind=='valu' and sw & c.rd:
                n=max(n,4 if c.mn.startswith(('v_readlane','v_writelane')) else 2)
            if c.kind=='salu' and sw & c.rd and not c.mn.startswith('s_cbranch'): n=max(n,1)
        if 'sdwa' in p.mn or 'op_sel' in p.text:
            if c.kind=='valu' and vw & (c.rd|c.wr): n=max(n,1)
    elif p.kind=='mfma':
        big = {4:8,8:12}[p.passes]
        if c.kind=='mfma':
            if p.wr & c.ab: n=max(n,big)
            if p.wr & c.srcc:
                if c.srcc==p.wr and c.passes==p.passes: pass
                else: n=max(n,big-2)
            elif p.wr & c.wr: n=max(n,big)
        elif c.kind in ('valu','vmem','ds'):
            if p.wr & (c.rd|c.wr): n=max(n,big)
            if c.kind=='valu' and p.srcc & c.wr: n=max(n,{4:3,8:7}[p.passes])
    elif p.kind=='vmem':
        if ('store' in p.mn and ('x4' in p.mn or 'x3' in p.mn)):
            data={r for r in p.rd if isvec(r)}
            if data & c.wr: n=max(n,2 if c.kind=='valu' else 1)
    elif p.kind=='salu':
        if ('s','m0') in p.wr and c.kind=='vmem' and ('s','m0') in c.rd: n=max(n,1)
    return n

class Asm:
    def __init__(self):
        self.out=[]
        self.hist=[]
        self.nops=0
    def raw(self,s): self.out.append(s)
    def comment(self,s): self.out.append('    ; '+s)
    def label(self,l):
        self.out.append(l+':')
    def e(self,text):
        ins=Ins(text)
        dist=0; req=0
        k=0; t=0
        for p in reversed(self.hist):
            n=need(p,ins)
            d=dist
            if p.kind=='mfma' and k>0: d=max(d,4*k+t)
            if n>d: req=max(req,n-d)
            dist+=p.ws
            if p.kind=='mfma': k+=1
            elif k==0: t+=p.ws
            if dist>=20: break
        while req>0:
            k=min(req,16)
            nop=Ins('s_nop %d'%(k-1)); self.hist.append(nop); self.out.append('    s_nop %d'%(k-1)); self.nops+=k
            req-=k
        self.hist.append(ins); self.hist=self.hist[-24:]
        self.out.append('    '+text)
    def fence(self,n=12):
        self.e('s_nop %d'%(n-1))
    def text(self): return '\n'.join(self.out)+'\n'

def vr(b,n=1): return 'v%d'%b if n==1 else 'v[%d:%d]'%(b,b+n-1)
def ar(b,n=1): return 'a%d'%b if n==1 else 'a[%d:%d]'%(b,b+n-1)
def sr(b,n=1): return 's%d'%b if n==1 else 's[%d:%d]'%(b,b+n-1)

class Cnt:
    def __init__(self,asm,name,maxv):
        self.a=asm; self.name=name; self.q=[]; self.maxv=maxv; self.seen=set()
    def issue(self,tag=None): self.q.append(tag); self.seen.add(tag)
    def wait(self,tag):
        assert tag in self.seen, tag
        if tag not in self.q: return
        idx=max(i for i,t in enumerate(self.q) if t==tag)
        n=len(self.q)-1-idx
        assert n<=self.maxv,(self.name,n)
        self.a.e('s_waitcnt %s(%d)'%(self.name,n))
        self.q=self.q[idx+1:]
    def waitall(self):
        self.a.e('s_waitcnt %s(0)'%self.name); self.q=[]
    def reset(self): self.q=[]
```

```python
from asmdsl import *
from layout import *
import math, struct
def f32bits(x): return struct.unpack('<I',struct.pack('<f',x))[0]

S_WS=8; S_DBG=12; S_W=16; S_X=20
sW=25
sT0=31; sT1=45; sT2=46; sT3=47
sPWQ=56; sPWK=58; sPWV=60; sPWO=62
sPX=66
sPOUT=68
S_OUT=72
sI0=76; sI1=77
sA=78; sB=79; sC_=80; sD=81; sE=82; sF=83; sG=84; sH_=85

def srd(e,d,ptr,nbytes):
    e('s_mov_b32 s%d, s%d'%(d,ptr)); e('s_and_b32 s%d, s%d, 0xffff'%(d+1,ptr+1))
    e('s_mov_b32 s%d, 0x%x'%(d+2,nbytes)); e('s_mov_b32 s%d, 0x20000'%(d+3))

def lanes(e,l=1,n=2,g=3):
    e('v_and_b32 v%d, 63, v0'%l); e('v_and_b32 v%d, 15, v0'%n); e('v_bfe_u32 v%d, v0, 4, 2'%g)

def gen_gemm(a, tag, SC=' sc1'):
    e=a.e
    lg=Cnt(a,'lgkmcnt',15); vm=Cnt(a,'vmcnt',63)
    l,n,g,t0,t1=1,2,3,4,5
    lanes(e)
    sX=sA; sHP=sB
    e('s_lshr_b32 s%d, s%d, 4'%(sX,sI0)); e('s_and_b32 s%d, s%d, 15'%(sHP,sI0))
    e('s_cmp_eq_u32 s%d, 0'%sX); e('s_cselect_b32 s%d, s%d, s%d'%(sT0,sPWK,sPWV)); e('s_cselect_b32 s%d, s%d, s%d'%(sT1,sPWK+1,sPWV+1))
    e('s_cmp_eq_u32 s%d, 2'%sX); e('s_cselect_b32 s%d, s%d, s%d'%(S_W,sPWQ,sT0)); e('s_cselect_b32 s%d, s%d, s%d'%(sT1,sPWQ+1,sT1))
    e('s_and_b32 s%d, s%d, 0xffff'%(S_W+1,sT1)); e('s_mov_b32 s%d, 0x%x'%(S_W+2,4*MB)); e('s_mov_b32 s%d, 0x20000'%(S_W+3))
    dv=8
    e('v_lshrrev_b32 v%d, 5, v%d'%(t0,l))
    e('v_and_b32 v%d, 31, v%d'%(t1,l))
    e('v_lshlrev_b32 v%d, 4, v%d'%(t1,t1))
    e('v_lshlrev_b32 v%d, 5, v%d'%(dv,t0))
    e('v_xor_b32 v%d, v%d, v%d'%(t1,t1,dv))
    e('v_lshl_add_u32 v%d, v%d, 13, v%d'%(dv,t0,t1))
    for k in range(1,4): e('v_xor_b32 v%d, %d, v%d'%(dv+k,((k&1)<<6)|((k>>1)<<7),dv))
    tb=12
    e('v_lshrrev_b32 v%d, 2, v%d'%(t0,n))
    e('v_and_b32 v%d, 1, v%d'%(t1,g)); e('v_lshl_or_b32 v%d, v%d, 2, v%d'%(t1,t1,t0))
    e('v_lshl_add_u32 v%d, v%d, 3, v%d'%(t0,g,t0))
    e('v_lshlrev_b32 v%d, 9, v%d'%(t0,t0))
    e('v_and_b32 v%d, 3, v%d'%(6,n)); e('v_lshl_add_u32 v%d, v%d, 3, v%d'%(t0,6,t0))
    e('s_lshl_b32 s%d, s%d, 2'%(sT0,sW))
    for et in range(4):
        e('v_xor_b32 v%d, s%d, v%d'%(6,sT0,t1))
        if et: e('v_xor_b32 v%d, %d, v%d'%(6,et,6))
        e('v_lshl_add_u32 v%d, v%d, 5, v%d'%(tb+et,6,t0))
        e('v_add_u32 v%d, 0x10000, v%d'%(tb+4+et,tb+et))
    def dma(ck):
        area=ck&1
        e('s_lshl_b32 s%d, s%d, 18'%(sT0,sW))
        e('s_lshl_b32 s%d, s%d, 9'%(sT1,sHP)); e('s_add_u32 s%d, s%d, s%d'%(sT0,sT0,sT1))
        e('s_add_u32 s%d, s%d, 0x%x'%(sT0,sT0,ck*128*8192))
        e('s_lshl_b32 s%d, s%d, 14'%(sT1,sW)); e('s_add_u32 s%d, s%d, 0x%x'%(sT1,sT1,area*65536))
        for i in range(16):
            e('s_mov_b32 m0, s%d'%sT1)
            e('buffer_load_dwordx4 v%d, s[%d:%d], s%d offen lds'%(dv+((i&1)|(((i>>2)&1)<<1)),S_W,S_W+3,sT0)); vm.issue(('dma',ck))
            e('s_add_u32 s%d, s%d, 0x4000'%(sT0,sT0)); e('s_add_u32 s%d, s%d, 0x400'%(sT1,sT1))
    e('s_barrier')
    dma(0); dma(1)
    for ck in range(4):
        area=ck&1
        vm.wait(('dma',ck)); e('s_barrier')
        cnt=0
        for et in range(4):
            for ksl in range(4):
                for hf in range(2):
                    e('ds_read_b64_tr_b16 %s, v%d offset:%d'%(ar((et*16+ck*4+ksl)*4+2*hf,2),tb+4*area+et,(32*ksl+4*hf)*512))
                    cnt+=1
                    if cnt%12==0: e('s_waitcnt lgkmcnt(4)')
        e('s_waitcnt lgkmcnt(0)'); e('s_barrier')
        if ck<2: dma(ck+2)
    vXA=4; vL16=5
    e('v_lshlrev_b32 v%d, 10, v%d'%(vXA,n)); e('v_lshl_add_u32 v%d, v%d, 4, v%d'%(vXA,g,vXA))
    e('v_lshlrev_b32 v%d, 4, v%d'%(vL16,l))
    vXR=6
    e('v_mov_b32 v%d, v%d'%(vXR,vL16))
    sXG=sC_; sXL=sD; sSEG=sE; sOUT=sF; sCNT=sG
    e('s_lshl_b32 s%d, s%d, 19'%(sXG,sI1))
    e('s_lshr_b32 s%d, s%d, 1'%(sT0,sW)); e('s_lshl_b32 s%d, s%d, 14'%(sT0,sT0)); e('s_add_u32 s%d, s%d, s%d'%(sXG,sXG,sT0))
    e('s_and_b32 s%d, s%d, 1'%(sT0,sW)); e('s_lshl_b32 s%d, s%d, 9'%(sT0,sT0)); e('s_add_u32 s%d, s%d, s%d'%(sXG,sXG,sT0))
    e('s_lshl_b32 s%d, s%d, 13'%(sXL,sW))
    e('s_cmp_eq_u32 s%d, 0'%sX); e('s_cselect_b32 s%d, 0x%x, 0x%x'%(sT0,WS_K,WS_V) if False else 's_cselect_b32 s%d, s%d, s%d'%(sT0,sT0,sT0))
    e('s_mov_b32 s%d, 0x%x'%(sT0,WS_K)); e('s_mov_b32 s%d, 0x%x'%(sT1,WS_V))
    e('s_cmp_eq_u32 s%d, 0'%sX); e('s_cselect_b32 s%d, s%d, s%d'%(sOUT,sT0,sT1))
    e('s_cmp_eq_u32 s%d, 2'%sX); e('s_cselect_b32 s%d, %d, s%d'%(sOUT,WS_Q,sOUT))
    e('s_lshl_b32 s%d, s%d, 22'%(sT0,sI1)); e('s_add_u32 s%d, s%d, s%d'%(sOUT,sOUT,sT0))
    e('s_lshl_b32 s%d, s%d, 14'%(sT0,sHP)); e('s_add_u32 s%d, s%d, s%d'%(sOUT,sOUT,sT0))
    e('s_lshr_b32 s%d, s%d, 1'%(sT0,sW)); e('s_lshl_b32 s%d, s%d, 13'%(sT0,sT0)); e('s_add_u32 s%d, s%d, s%d'%(sOUT,sOUT,sT0))
    e('s_and_b32 s%d, s%d, 1'%(sT0,sW))
    e('s_cmp_eq_u32 s%d, 1'%sX); e('s_cselect_b32 s%d, 12, 11'%sT1); e('s_lshl_b32 s%d, s%d, s%d'%(sT0,sT0,sT1)); e('s_add_u32 s%d, s%d, s%d'%(sOUT,sOUT,sT0))
    def xdma():
        e('s_mov_b32 s%d, s%d'%(sT0,sXG)); e('s_mov_b32 s%d, s%d'%(sT1,sXL))
        for i in range(8):
            e('s_mov_b32 m0, s%d'%sT1)
            e('buffer_load_dwordx4 v%d, s[%d:%d], s%d offen lds'%(vXA,S_X,S_X+3,sT0))
            if i<7: e('s_add_u32 s%d, s%d, 64'%(sT0,sT0)); e('s_add_u32 s%d, s%d, 0x400'%(sT1,sT1))
        e('s_add_u32 s%d, s%d, 0x8000'%(sXG,sXG)); e('s_xor_b32 s%d, s%d, 0x8000'%(sXL,sXL))
    xdma()
    e('s_mov_b32 s%d, 0'%sCNT)
    e('s_waitcnt vmcnt(0)')
    e('s_cmp_eq_u32 s%d, 1'%sX)
    e('s_cbranch_scc1 L_%s_V'%tag)
    XF=16; AC=32; OB=64
    for variant in ('KQ','V'):
        if variant=='V': a.label('L_%s_V'%tag)
        a.label('L_%s_loop%s'%(tag,variant))
        e('s_barrier')
        e('s_cmp_lt_u32 s%d, 15'%sCNT)
        e('s_cbranch_scc0 L_%s_nodma%s'%(tag,variant))
        xdma()
        a.label('L_%s_nodma%s'%(tag,variant))
        lg.reset()
        fr=[(tt,ks) for tt in range(2) for ks in range(16)]
        def rd(i):
            e('ds_read_b128 %s, v%d offset:%d'%(vr(XF+4*(i&3),4),vXR,i*1024)); lg.issue(i)
        for i in range(3): rd(i)
        for i,(tt,ks) in enumerate(fr):
            if i+3<32: rd(i+3)
            lg.wait(i)
            for et in range(4):
                acc=vr(AC+(tt*4+et)*4,4); wf=ar((et*16+ks)*4,4); xf=vr(XF+4*(i&3),4)
                A,B=(wf,xf) if variant=='KQ' else (xf,wf)
                e('v_mfma_f32_16x16x32_bf16 %s, %s, %s, %s'%(acc,A,B,'0' if ks==0 else acc))
        k=0
        if variant=='KQ':
            for tt in range(2):
                for c2 in range(2):
                    o=OB+4*k
                    for j in range(2):
                        b=AC+(tt*4+2*c2+j)*4
                        e('v_cvt_pk_bf16_f32 v%d, v%d, v%d'%(o+2*j,b,b+1)); e('v_cvt_pk_bf16_f32 v%d, v%d, v%d'%(o+2*j+1,b+2,b+3))
                    if tt==1 and c2==0: e('s_add_u32 s%d, s%d, 4096'%(sT0,sOUT))
                    e('buffer_store_dwordx4 %s, v%d, s[%d:%d], s%d offen offset:%d%s'%(vr(o,4),vL16,S_WS,S_WS+3,sOUT if tt==0 else sT0,c2*1024,SC))
                    k+=1
        else:
            for et in range(4):
                o=OB+4*k
                for tt in range(2):
                    b=AC+(tt*4+et)*4
                    e('v_cvt_pk_bf16_f32 v%d, v%d, v%d'%(o+2*tt,b,b+1)); e('v_cvt_pk_bf16_f32 v%d, v%d, v%d'%(o+2*tt+1,b+2,b+3))
                e('buffer_store_dwordx4 %s, v%d, s[%d:%d], s%d offen offset:%d%s'%(vr(o,4),vL16,S_WS,S_WS+3,sOUT,et*1024,SC))
                k+=1
        e('s_add_u32 s%d, s%d, 0x40000'%(sOUT,sOUT))
        e('v_xor_b32 v%d, 0x8000, v%d'%(vXR,vXR))
        e('s_add_u32 s%d, s%d, 1'%(sCNT,sCNT))
        e('s_waitcnt vmcnt(4)')
        e('s_cmp_lt_u32 s%d, 16'%sCNT)
        e('s_cbranch_scc1 L_%s_loop%s'%(tag,variant))
        if variant=='KQ': e('s_branch L_%s_done'%tag)
    a.label('L_%s_done'%tag)
    e('s_waitcnt vmcnt(0)')

sMK=86
sSC=94
sL2E=96
def attn_setup(a, ldsbase):
    e=a.e
    l,n,g,t0,t1=1,2,3,8,9
    lanes(e)
    e('v_lshlrev_b32 v4, 4, v%d'%l)
    e('s_lshl_b32 s%d, s%d, 12'%(sT0,sW)); e('s_add_u32 s%d, s%d, %d'%(sT0,sT0,ldsbase))
    e('v_lshrrev_b32 v%d, 2, v%d'%(t0,n)); e('v_xor_b32 v%d, v%d, v%d'%(t0,t0,g)); e('v_lshlrev_b32 v%d, 3, v%d'%(t0,t0))
    e('v_lshl_add_u32 v%d, v%d, 5, v%d'%(t0,n,t0)); e('v_add_u32 v5, s%d, v%d'%(sT0,t0))
    e('v_lshrrev_b32 v%d, 2, v%d'%(t0,n)); e('v_lshl_add_u32 v%d, v%d, 2, v%d'%(t0,g,t0)); e('v_lshlrev_b32 v%d, 5, v%d'%(t0,t0))
    e('v_and_b32 v%d, 3, v%d'%(t1,n)); e('v_xor_b32 v%d, v%d, v%d'%(t1,t1,g)); e('v_lshl_add_u32 v%d, v%d, 3, v%d'%(t0,t1,t0))
    e('v_add_u32 v6, s%d, v%d'%(sT0,t0))
    for r in range(4):
        e('v_lshlrev_b32 v%d, 2, v%d'%(t0,g)); e('v_add_u32 v%d, %d, v%d'%(t0,r,t0))
        e('v_cmp_gt_u32 s[%d:%d], v%d, v%d'%(sMK+2*r,sMK+2*r+1,t0,n))
    e('s_mov_b32 s%d, 0x%08x'%(sSC,f32bits(128**-0.5))); e('s_mov_b32 s%d, 0x%08x'%(sSC+1,f32bits(128**-0.5)))
    e('s_mov_b32 s%d, 0x%08x'%(sL2E,f32bits(math.log2(math.e))))
    e('v_mov_b32 v7, 0x%08x'%f32bits(-1e9))
    for et in range(8): e('v_mov_b32 v%d, 0'%(177+2*et))
    e('v_mov_b32 v173, 0'); e('v_mov_b32 v175, 0'); e('v_mov_b32 v166, 0'); e('v_mov_b32 v167, 0')

def attn_loads_x(a, SC=' sc1'):
    e=a.e
    Q,K,V=16,48,80
    e('s_lshl_b32 s%d, s%d, 18'%(sA,sI0)); e('s_lshl_b32 s%d, s%d, 13'%(sT0,sI1)); e('s_add_u32 s%d, s%d, s%d'%(sA,sA,sT0))
    for base,reg in ((WS_Q,Q),(WS_K,K),(WS_V,V)):
        e('s_add_u32 s%d, s%d, 0x%x'%(sT0,sA,base)); e('s_add_u32 s%d, s%d, 4096'%(sT1,sT0))
        for f in range(8):
            e('buffer_load_dwordx4 %s, v4, s[%d:%d], s%d offen offset:%d%s'%(vr(reg+4*f,4),S_WS,S_WS+3,sT0 if f<4 else sT1,(f&3)*1024,SC))

def attn_item(a, SC=' sc1'):
    e=a.e
    lg=Cnt(a,'lgkmcnt',15)
    Q,K,V,KV,F,S,PX,PM,VMZ,O,OB,T=16,48,80,112,128,144,164,172,176,192,200,208
    e('s_lshl_b32 s%d, s%d, 17'%(sT0,sI0)); e('s_lshl_b32 s%d, s%d, 12'%(sT1,sI1)); e('s_add_u32 s%d, s%d, s%d'%(sT0,sT0,sT1)); e('s_add_u32 s%d, s%d, 0x%x'%(sT0,sT0,WS_KM))
    for w in range(4):
        e('buffer_load_dwordx4 %s, v4, s[%d:%d], s%d offen offset:%d%s'%(vr(KV+4*w,4),S_WS,S_WS+3,sT0,w*1024,SC))
    e('s_lshl_b32 s%d, s%d, 18'%(sB,sI0)); e('s_lshl_b32 s%d, s%d, 12'%(sT1,sI1)); e('s_add_u32 s%d, s%d, s%d'%(sB,sB,sT1)); e('s_add_u32 s%d, s%d, 0x%x'%(sB,sB,WS_O))
    e('s_add_u32 s%d, s%d, 0x20000'%(sC_,sB))
    e('s_waitcnt vmcnt(0)')
    for w in range(4):
        for t in range(2):
            e('ds_write_b32 v5, v%d offset:%d'%(KV+4*w+t,(32*w+16*t)*32))
            e('v_mov_b32 v%d, v%d'%(VMZ+2*(2*w+t),KV+4*w+2+t))
    Sm=[S,S+8]; Sx={(0,0):S+4,(0,1):S+12,(1,1):S+16}
    for (kt,qt),acc in Sx.items():
        for c in range(4):
            e('v_mfma_f32_16x16x32_bf16 %s, %s, %s, %s'%(vr(acc,4),vr(K+(kt*4+c)*4,4),vr(Q+(qt*4+c)*4,4),'0' if c==0 else vr(acc,4)))
        if (kt,qt)==(0,0):
            e('s_waitcnt lgkmcnt(0)')
            for c in range(4):
                e('ds_read_b64_tr_b16 %s, v6 offset:%d'%(vr(F+4*c,2),1024*c))
                e('ds_read_b64_tr_b16 %s, v6 offset:%d'%(vr(F+4*c+2,2),1024*c+512))
    e('s_waitcnt lgkmcnt(0)')
    for qt in range(2):
        for c in range(4):
            e('v_mfma_f32_16x16x32_bf16 %s, %s, %s, %s'%(vr(Sm[qt],4),vr(F+4*c,4),vr(Q+(qt*4+c)*4,4),'0' if c==0 else vr(Sm[qt],4)))
    for qt in range(2):
        pairs=[Sx[(kt,qt)]+j for kt in range(qt+1) for j in (0,2)]+[Sm[qt]]
        for p in pairs:
            e('v_cvt_pk_bf16_f32 v%d, v%d, v%d'%(T,p,p+1))
            e('v_lshlrev_b32 v%d, 16, v%d'%(p,T)); e('v_and_b32 v%d, 0xffff0000, v%d'%(p+1,T))
            e('v_pk_mul_f32 %s, %s, s[%d:%d]'%(vr(p,2),vr(p,2),sSC,sSC+1))
            e('v_cvt_pk_bf16_f32 v%d, v%d, v%d'%(T,p,p+1))
            e('v_lshlrev_b32 v%d, 16, v%d'%(p,T)); e('v_and_b32 v%d, 0xffff0000, v%d'%(p+1,T))
        d=Sx[(qt,qt)]
        for r in range(4): e('v_cndmask_b32 v%d, v%d, v7, s[%d:%d]'%(d+r,d+r,sMK+2*r,sMK+2*r+1))
        vals=[p+j for p in pairs for j in range(2)]
        m,m2=T+1,T+2
        e('v_max_f32 v%d, v%d, v%d'%(m,vals[0],vals[1]))
        for i in range(2,len(vals),2): e('v_max3_f32 v%d, v%d, v%d, v%d'%(m,m,vals[i],vals[i+1]))
        e('v_mov_b32 v%d, v%d'%(m2,m)); e('v_permlane32_swap_b32 v%d, v%d'%(m,m2)); e('v_max_f32 v%d, v%d, v%d'%(m,m,m2))
        e('v_mov_b32 v%d, v%d'%(m2,m)); e('v_permlane16_swap_b32 v%d, v%d'%(m,m2)); e('v_max_f32 v%d, v%d, v%d'%(m,m,m2))
        for v in vals:
            e('v_sub_f32 v%d, v%d, v%d'%(v,v,m)); e('v_mul_f32 v%d, s%d, v%d'%(v,sL2E,v))
        for v in vals: e('v_exp_f32 v%d, v%d'%(v,v))
        sm=T+4
        e('v_add_f32 v%d, v%d, v%d'%(sm,vals[0],vals[1]))
        for v in vals[2:]: e('v_add_f32 v%d, v%d, v%d'%(sm,sm,v))
        e('v_mov_b32 v%d, v%d'%(m2,sm)); e('v_permlane32_swap_b32 v%d, v%d'%(sm,m2)); e('v_add_f32 v%d, v%d, v%d'%(sm,sm,m2))
        e('v_mov_b32 v%d, v%d'%(m2,sm)); e('v_permlane16_swap_b32 v%d, v%d'%(sm,m2)); e('v_add_f32 v%d, v%d, v%d'%(sm,sm,m2))
        e('v_rcp_f32 v%d, v%d'%(sm,sm))
        for p in pairs: e('v_pk_mul_f32 %s, %s, %s op_sel_hi:[1,0]'%(vr(p,2),vr(p,2),vr(sm,2)))
        for i,p in enumerate(pairs[:-1]): e('v_cvt_pk_bf16_f32 v%d, v%d, v%d'%(PX+4*qt+i,p,p+1))
        e('v_cvt_pk_bf16_f32 v%d, v%d, v%d'%(PM+2*qt,Sm[qt],Sm[qt]+1))
    k=0
    for qt in range(2):
        for c in range(4):
            ob=O+8*(k&1) if False else O
            for j in range(2):
                et=2*c+j; o=(O,T+8)[k&1]+4*j
                e('v_mfma_f32_16x16x32_bf16 %s, %s, %s, 0'%(vr(o,4),vr(V+4*et,4),vr(PX+4*qt,4)))
            for j in range(2):
                et=2*c+j; o=(O,T+8)[k&1]+4*j
                e('v_mfma_f32_16x16x16_bf16 %s, %s, %s, %s'%(vr(o,4),vr(VMZ+2*et,2),vr(PM+2*qt,2),vr(o,4)))
            if k>0:
                pq,pc=prev; o=(O,T+8)[(k-1)&1]; ob=OB+4*((k-1)&1)
                for j in range(4): e('v_cvt_pk_bf16_f32 v%d, v%d, v%d'%(ob+j,o+2*j,o+2*j+1))
                e('buffer_store_dwordx4 %s, v4, s[%d:%d], s%d offen offset:%d%s'%(vr(ob,4),S_WS,S_WS+3,(sB,sC_)[pq],pc*1024,SC))
            prev=(qt,c); k+=1
    pq,pc=prev; o=(O,T+8)[(k-1)&1]; ob=OB+4*((k-1)&1)
    for j in range(4): e('v_cvt_pk_bf16_f32 v%d, v%d, v%d'%(ob+j,o+2*j,o+2*j+1))
    e('buffer_store_dwordx4 %s, v4, s[%d:%d], s%d offen offset:%d%s'%(vr(ob,4),S_WS,S_WS+3,(sB,sC_)[pq],pc*1024,SC))

def rnd2(e,p,t):
    e('v_cvt_pk_bf16_f32 v%d, v%d, v%d'%(t,p,p+1))
    e('v_lshlrev_b32 v%d, 16, v%d'%(p,t)); e('v_and_b32 v%d, 0xffff0000, v%d'%(p+1,t))

L_RED=65536
def oproj_setup(a):
    e=a.e
    vm=Cnt(a,'vmcnt',63)
    l,n,g,t0,t1=1,2,3,10,11
    lanes(e)
    e('v_lshlrev_b32 v4, 4, v%d'%l)
    srd(e,S_W,sPWO,4*MB)
    e('v_lshrrev_b32 v%d, 2, v%d'%(t0,l)); e('v_lshlrev_b32 v%d, 10, v%d'%(t0,t0)); e('v_and_b32 v%d, 3, v%d'%(t1,l)); e('v_lshl_add_u32 v5, v%d, 4, v%d'%(t1,t0))
    e('v_lshrrev_b32 v%d, 2, v%d'%(t0,n)); e('v_lshl_add_u32 v%d, v%d, 2, v%d'%(t0,g,t0)); e('v_lshlrev_b32 v%d, 6, v%d'%(t0,t0))
    e('v_and_b32 v%d, 3, v%d'%(t1,n)); e('v_lshl_add_u32 v%d, v%d, 4, v%d'%(t0,t1,t0))
    e('s_lshl_b32 s%d, s%d, 14'%(sA,sW)); e('v_add_u32 v6, s%d, v%d'%(sA,t0))
    e('s_lshl_b32 s%d, s%d, 20'%(sB,sW)); e('s_lshl_b32 s%d, s%d, 6'%(sT0,sI1)); e('s_add_u32 s%d, s%d, s%d'%(sB,sB,sT0))
    e('s_barrier')
    def dma(hh):
        e('s_add_u32 s%d, s%d, %d'%(sT1,sA,(hh&1)*8192))
        for i in range(8):
            e('s_mov_b32 m0, s%d'%sT1)
            e('buffer_load_dwordx4 v5, s[%d:%d], s%d offen lds'%(S_W,S_W+3,sB)); vm.issue(hh)
            e('s_add_u32 s%d, s%d, 0x4000'%(sB,sB)); e('s_add_u32 s%d, s%d, 0x400'%(sT1,sT1))
    dma(0); dma(1)
    for hh in range(8):
        vm.wait(hh)
        cnt=0
        for c in range(4):
            for dt in range(2):
                for hf in range(2):
                    e('ds_read_b64_tr_b16 %s, v6 offset:%d'%(ar(((hh*4+c)*2+dt)*4+2*hf,2),(hh&1)*8192+(32*c+16*hf)*64+8*dt))
                    cnt+=1
                    if cnt==12: e('s_waitcnt lgkmcnt(4)')
        e('s_waitcnt lgkmcnt(0)')
        if hh<6: dma(hh+2)
    e('s_and_b32 s%d, s%d, 1'%(sT0,sW)); e('s_lshl_b32 s%d, s%d, 11'%(sT0,sT0)); e('s_lshr_b32 s%d, s%d, 1'%(sT1,sW)); e('s_lshl_b32 s%d, s%d, 10'%(sT1,sT1))
    e('s_add_u32 s%d, s%d, s%d'%(sT0,sT0,sT1)); e('s_add_u32 s%d, s%d, %d'%(sT0,sT0,L_RED)); e('v_add_u32 v7, s%d, v4'%sT0)
    e('s_lshl_b32 s%d, s%d, 12'%(sT0,sW)); e('s_add_u32 s%d, s%d, %d'%(sT0,sT0,L_RED)); e('v_add_u32 v8, s%d, v4'%sT0)
    e('s_and_b32 s%d, s%d, 1'%(sT0,sW)); e('s_lshl_b32 s%d, s%d, 4'%(sT0,sT0)); e('v_add_u32 v%d, s%d, v%d'%(t0,sT0,n))
    e('v_lshlrev_b32 v12, 2, v%d'%t0)
    e('s_lshl_b32 s%d, s%d, 5'%(sT0,sI1)); e('s_lshr_b32 s%d, s%d, 1'%(sT1,sW)); e('s_lshl_b32 s%d, s%d, 2'%(sT1,sT1)); e('s_add_u32 s%d, s%d, s%d'%(sT0,sT0,sT1))
    e('v_lshlrev_b32 v%d, 3, v%d'%(t1,g)); e('v_add_u32 v%d, s%d, v%d'%(t1,sT0,t1))
    e('v_lshlrev_b32 v13, 2, v%d'%t1)
    e('v_lshlrev_b32 v%d, 10, v%d'%(t0,t0)); e('v_lshl_add_u32 v9, v%d, 1, v%d'%(t1,t0))

def oproj_item(a, tag, SC=' sc1'):
    e=a.e
    OF=32; AC=16; T=96
    NB=16
    e('s_lshl_b32 s%d, s%d, 18'%(sA,sI0)); e('s_lshl_b32 s%d, s%d, 15'%(sT0,sW)); e('s_add_u32 s%d, s%d, s%d'%(sA,sA,sT0)); e('s_add_u32 s%d, s%d, 0x%x'%(sA,sA,WS_O))
    e('s_lshl_b32 s%d, s%d, 7'%(sB,sI0))
    e('s_add_u32 s%d, s%d, 0x%x'%(sT0,sB,WS_G)); e('buffer_load_dword v%d, v12, s[%d:%d], s%d offen%s'%(T,S_WS,S_WS+3,sT0,SC))
    e('s_add_u32 s%d, s%d, 0x%x'%(sT0,sB,WS_SEL)); e('buffer_load_dword v%d, v12, s[%d:%d], s%d offen%s'%(T+1,S_WS,S_WS+3,sT0,SC))
    e('s_lshl_b32 s%d, s%d, 15'%(sC_,sI0))
    e('buffer_load_dwordx2 %s, v9, s[%d:%d], s%d offen'%(vr(T+2,2),S_X,S_X+3,sC_))
    fr=[(qt,hh,c) for qt in range(2) for hh in range(8) for c in range(4)]
    def ld(i):
        qt,hh,c=fr[i]
        if c==0: e('s_add_u32 s%d, s%d, 0x%x'%(sD,sA,qt*131072+hh*4096))
        e('buffer_load_dwordx4 %s, v4, s[%d:%d], s%d offen offset:%d%s'%(vr(OF+4*(i%NB),4),S_WS,S_WS+3,sD,c*1024,SC))
    for i in range(NB): ld(i)
    for i,(qt,hh,c) in enumerate(fr):
        e('s_waitcnt vmcnt(%d)'%min(NB-1,63-i))
        for dt in range(2):
            acc=vr(AC+(qt*2+dt)*4,4)
            e('v_mfma_f32_16x16x32_bf16 %s, %s, %s, %s'%(acc,ar(((hh*4+c)*2+dt)*4,4),vr(OF+4*(i%NB),4),'0' if (hh==0 and c==0) else acc))
        if i+NB<64: ld(i+NB)
    e('v_cmp_ne_u32 vcc, 0, v%d'%(T+1))
    e('v_lshl_add_u32 v%d, v%d, 11, v13'%(T+4,T+1))
    for r in range(4): e('v_mov_b32 v%d, 0'%(T+8+r))
    e('s_and_saveexec_b64 s[%d:%d], vcc'%(sT2,sT3))
    e('s_cbranch_execz L_%s_noy'%tag)
    e('s_mov_b32 s%d, 0x%x'%(sT0,WS_Y-2048))
    e('buffer_load_dwordx4 %s, v%d, s[%d:%d], s%d offen%s'%(vr(T+8,4),T+4,S_WS,S_WS+3,sT0,SC))
    a.label('L_%s_noy'%tag)
    e('s_mov_b64 exec, -1')
    for k in range(4): e('ds_write_b128 v8, %s offset:%d'%(vr(AC+4*k,4),k*1024))
    e('s_waitcnt lgkmcnt(0)'); e('s_barrier')
    for w in range(4): e('ds_read_b128 %s, v7 offset:%d'%(vr(OF+4*w,4),w*4096))
    e('v_xor_b32 v7, 0x4000, v7'); e('v_xor_b32 v8, 0x4000, v8')
    X=T+12
    e('s_waitcnt vmcnt(0)')
    e('v_lshlrev_b32 v%d, 16, v%d'%(X,T+2)); e('v_and_b32 v%d, 0xffff0000, v%d'%(X+1,T+2))
    e('v_lshlrev_b32 v%d, 16, v%d'%(X+2,T+3)); e('v_and_b32 v%d, 0xffff0000, v%d'%(X+3,T+3))
    e('v_pk_add_f32 %s, %s, %s'%(vr(X,2),vr(X,2),vr(T+8,2))); e('v_pk_add_f32 %s, %s, %s'%(vr(X+2,2),vr(X+2,2),vr(T+10,2)))
    rnd2(e,X,T+5); rnd2(e,X+2,T+5)
    e('v_sub_f32 v%d, 1.0, v%d'%(T+6,T)); e('v_cvt_pk_bf16_f32 v%d, v%d, v%d'%(T+6,T+6,T+6)); e('v_lshlrev_b32 v%d, 16, v%d'%(T+6,T+6))
    e('v_pk_mul_f32 %s, %s, %s op_sel_hi:[1,0]'%(vr(X,2),vr(X,2),vr(T+6,2))); e('v_pk_mul_f32 %s, %s, %s op_sel_hi:[1,0]'%(vr(X+2,2),vr(X+2,2),vr(T+6,2)))
    rnd2(e,X,T+5); rnd2(e,X+2,T+5)
    e('s_waitcnt lgkmcnt(0)')
    A_=OF
    for j in (0,2):
        e('v_pk_add_f32 %s, %s, %s'%(vr(A_+j,2),vr(A_+j,2),vr(A_+4+j,2)))
        e('v_pk_add_f32 %s, %s, %s'%(vr(A_+8+j,2),vr(A_+8+j,2),vr(A_+12+j,2)))
    for j in (0,2): e('v_pk_add_f32 %s, %s, %s'%(vr(A_+j,2),vr(A_+j,2),vr(A_+8+j,2)))
    rnd2(e,A_,T+5); rnd2(e,A_+2,T+5)
    e('v_pk_mul_f32 %s, %s, %s op_sel_hi:[1,0]'%(vr(A_,2),vr(A_,2),vr(T,2))); e('v_pk_mul_f32 %s, %s, %s op_sel_hi:[1,0]'%(vr(A_+2,2),vr(A_+2,2),vr(T,2)))
    rnd2(e,A_,T+5); rnd2(e,A_+2,T+5)
    e('v_pk_add_f32 %s, %s, %s'%(vr(A_,2),vr(A_,2),vr(X,2))); e('v_pk_add_f32 %s, %s, %s'%(vr(A_+2,2),vr(A_+2,2),vr(X+2,2)))
    e('v_cvt_pk_bf16_f32 v%d, v%d, v%d'%(T+16,A_,A_+1)); e('v_cvt_pk_bf16_f32 v%d, v%d, v%d'%(T+17,A_+2,A_+3))
    e('buffer_store_dwordx2 %s, v9, s[%d:%d], s%d offen'%(vr(T+16,2),S_OUT,S_OUT+3,sC_))

def wave_allsum(e,v,t):
    for k in (8,4,2,1):
        e('v_add_f32_dpp v%d, v%d, v%d row_ror:%d row_mask:0xf bank_mask:0xf'%(v,v,v,k))
    e('v_mov_b32 v%d, v%d'%(t,v)); e('v_permlane16_swap_b32 v%d, v%d'%(v,t)); e('v_add_f32 v%d, v%d, v%d'%(v,v,t))
    e('v_mov_b32 v%d, v%d'%(t,v)); e('v_permlane32_swap_b32 v%d, v%d'%(v,t)); e('v_add_f32 v%d, v%d, v%d'%(v,v,t))
def sigmoid(e,v,sl2e):
    e('v_mul_f32 v%d, s%d, v%d'%(v,sl2e,v)); e('v_exp_f32 v%d, v%d'%(v,v)); e('v_add_f32 v%d, 1.0, v%d'%(v,v)); e('v_rcp_f32 v%d, v%d'%(v,v))
def rnd1(e,v):
    e('v_cvt_pk_bf16_f32 v%d, v%d, v%d'%(v,v,v)); e('v_lshlrev_b32 v%d, 16, v%d'%(v,v))
def unpack8(e,dst,src):
    for i in range(4):
        e('v_lshlrev_b32 v%d, 16, v%d'%(dst+2*i,src+i)); e('v_and_b32 v%d, 0xffff0000, v%d'%(dst+2*i+1,src+i))

def router(a, tag, SC=' sc1'):
    e=a.e
    lanes(e)
    e('v_lshlrev_b32 v4, 4, v1')
    WR,GW,XR,XU,P,RES=16,24,32,96,104,112
    srd(e,S_W,sE,1024)
    e('buffer_load_dwordx4 v[8:11], v4, s[%d:%d], 0 offen'%(S_W,S_W+3))
    e('s_waitcnt vmcnt(0)')
    srd(e,S_W,sG,1024)
    e('buffer_load_dwordx4 v[12:15], v4, s[%d:%d], 0 offen'%(S_W,S_W+3))
    e('s_lshl_b32 s%d, s%d, 14'%(sA,sI0))
    for i in range(16):
        if i%4==0: e('s_add_u32 s%d, s%d, %d'%(sT0,sA,i*1024))
        e('buffer_load_dwordx4 %s, v4, s[%d:%d], s%d offen offset:%d'%(vr(XR+4*i,4),S_X,S_X+3,sT0,(i%4)*1024))
    e('s_mov_b32 s%d, 0x%08x'%(sB,f32bits(-math.log2(math.e))))
    unpack8(e,WR,8)
    e('s_waitcnt vmcnt(16)')
    unpack8(e,GW,12)
    e('v_mov_b32 v%d, 0'%RES); e('v_mov_b32 v%d, 0'%(RES+1))
    for i in range(16):
        e('s_waitcnt vmcnt(%d)'%(15-i))
        unpack8(e,XU,XR+4*i)
        e('v_pk_mul_f32 %s, %s, %s'%(vr(P,2),vr(XU,2),vr(WR,2)))
        for j in (2,4,6): e('v_pk_fma_f32 %s, %s, %s, %s'%(vr(P,2),vr(XU+j,2),vr(WR+j,2),vr(P,2)))
        e('v_add_f32 v%d, v%d, v%d'%(P,P,P+1))
        for j in (0,2,4,6):
            e('v_pk_mul_f32 %s, %s, %s'%(vr(XU+j,2),vr(XU+j,2),vr(GW+j,2))); rnd2(e,XU+j,P+3)
        e('v_pk_add_f32 %s, %s, %s'%(vr(XU,2),vr(XU,2),vr(XU+2,2))); e('v_pk_add_f32 %s, %s, %s'%(vr(XU+4,2),vr(XU+4,2),vr(XU+6,2)))
        e('v_pk_add_f32 %s, %s, %s'%(vr(XU,2),vr(XU,2),vr(XU+4,2))); e('v_add_f32 v%d, v%d, v%d'%(P+1,XU,XU+1))
        wave_allsum(e,P,P+3); wave_allsum(e,P+1,P+3)
        e('v_cmp_eq_u32 vcc, %d, v1'%i)
        e('v_cndmask_b32 v%d, v%d, v%d, vcc'%(RES,RES,P)); e('v_cndmask_b32 v%d, v%d, v%d, vcc'%(RES+1,RES+1,P+1))
    rnd1(e,RES+1); sigmoid(e,RES+1,sB); rnd1(e,RES+1)
    e('v_cvt_pk_bf16_f32 v%d, v%d, v%d'%(RES,RES,RES)); e('v_and_b32 v%d, 0xffff0000, v%d'%(RES,RES))
    e('v_ashrrev_i32 v%d, 31, v%d'%(P,RES)); e('v_or_b32 v%d, 0x80000000, v%d'%(P,P)); e('v_xor_b32 v%d, v%d, v%d'%(RES,RES,P))
    e('v_and_b32 v%d, 0xffff0000, v%d'%(RES,RES))
    e('s_lshl_b32 s%d, s%d, 4'%(sT0,sI0)); e('s_sub_u32 s%d, 2047, s%d'%(sT0,sT0)); e('v_sub_u32 v%d, s%d, v1'%(P,sT0)); e('v_or_b32 v%d, v%d, v%d'%(RES,RES,P))
    e('v_lshlrev_b32 v5, 2, v1'); e('v_mov_b32 v%d, 0'%P)
    e('s_lshl_b32 s%d, s%d, 6'%(sA,sI0))
    e('s_mov_b64 exec, 0xffff')
    e('s_add_u32 s%d, s%d, 0x%x'%(sT0,sA,WS_G)); e('buffer_store_dword v%d, v5, s[%d:%d], s%d offen%s'%(RES+1,S_WS,S_WS+3,sT0,SC))
    e('s_add_u32 s%d, s%d, 0x%x'%(sT0,sA,WS_KEY)); e('buffer_store_dword v%d, v5, s[%d:%d], s%d offen%s'%(RES,S_WS,S_WS+3,sT0,SC))
    e('s_add_u32 s%d, s%d, 0x%x'%(sT0,sA,WS_SEL)); e('buffer_store_dword v%d, v5, s[%d:%d], s%d offen%s'%(P,S_WS,S_WS+3,sT0,SC))
    e('s_mov_b64 exec, -1')
    e('s_waitcnt vmcnt(0)')

def top8(a, tag, SC=' sc1'):
    e=a.e
    lanes(e)
    e('v_lshlrev_b32 v4, 4, v1')
    K=16; M=8; T=9; RES=10
    for i in range(8):
        if i%4==0: e('s_mov_b32 s%d, 0x%x'%(sT0,WS_KEY+i*1024))
        e('buffer_load_dwordx4 %s, v4, s[%d:%d], s%d offen offset:%d%s'%(vr(K+4*i,4),S_WS,S_WS+3,sT0,(i%4)*1024,SC))
    e('v_mov_b32 v%d, 0'%RES)
    e('s_mov_b32 s%d, 0'%sA)
    e('s_waitcnt vmcnt(0)')
    a.label('L_%s_loop'%tag)
    e('v_max_u32 v%d, v%d, v%d'%(M,K,K+1))
    for i in range(2,32,2): e('v_max3_u32 v%d, v%d, v%d, v%d'%(M,M,K+i,K+i+1))
    for k in (8,4,2,1): e('v_max_u32_dpp v%d, v%d, v%d row_ror:%d row_mask:0xf bank_mask:0xf'%(M,M,M,k))
    e('v_mov_b32 v%d, v%d'%(T,M)); e('v_permlane16_swap_b32 v%d, v%d'%(M,T)); e('v_max_u32 v%d, v%d, v%d'%(M,M,T))
    e('v_mov_b32 v%d, v%d'%(T,M)); e('v_permlane32_swap_b32 v%d, v%d'%(M,T)); e('v_max_u32 v%d, v%d, v%d'%(M,M,T))
    for i in range(32):
        e('v_cmp_eq_u32 vcc, v%d, v%d'%(M,K+i)); e('v_cndmask_b32 v%d, v%d, 0, vcc'%(K+i,K+i) if False else 'v_cndmask_b32 v%d, v%d, v%d, vcc'%(K+i,K+i,11))
    e('v_cmp_eq_u32 vcc, s%d, v1'%sA); e('v_cndmask_b32 v%d, v%d, v%d, vcc'%(RES,RES,M))
    e('s_add_u32 s%d, s%d, 1'%(sA,sA)); e('s_cmp_lt_u32 s%d, 8'%sA)
    a.fence(4)
    e('s_cbranch_scc1 L_%s_loop'%tag)
    e('v_and_b32 v12, 0x7ff, v%d'%RES); e('v_sub_u32 v12, 2047, v12')
    e('v_and_b32 v13, 0xffff0000, v%d'%RES)
    e('v_ashrrev_i32 v14, 31, v13'); e('v_not_b32 v14, v14'); e('v_or_b32 v14, 0x80000000, v14'); e('v_xor_b32 v13, v13, v14'); e('v_and_b32 v13, 0xffff0000, v13')
    e('s_mov_b32 s%d, 0x%08x'%(sB,f32bits(-math.log2(math.e))))
    sigmoid(e,13,sB); rnd1(e,13)
    e('v_lshlrev_b32 v5, 2, v1'); e('v_lshlrev_b32 v6, 2, v12'); e('v_add_u32 v7, 1, v1')
    e('s_mov_b64 exec, 0xff')
    e('s_mov_b32 s%d, 0x%x'%(sT0,WS_IDX)); e('buffer_store_dword v12, v5, s[%d:%d], s%d offen%s'%(S_WS,S_WS+3,sT0,SC))
    e('buffer_store_dword v13, v5, s[%d:%d], s%d offen offset:64%s'%(S_WS,S_WS+3,sT0,SC))
    e('s_mov_b32 s%d, 0x%x'%(sT0,WS_SEL)); e('buffer_store_dword v7, v6, s[%d:%d], s%d offen%s'%(S_WS,S_WS+3,sT0,SC))
    e('s_mov_b64 exec, -1')
    e('s_waitcnt vmcnt(0)')

def moe_common(e):
    lanes(e)
    e('v_lshrrev_b32 v8, 2, v2'); e('v_lshl_add_u32 v8, v3, 3, v8'); e('v_lshlrev_b32 v8, 5, v8')
    e('v_and_b32 v9, 3, v2'); e('v_lshl_add_u32 v8, v9, 3, v8')
    e('s_mul_i32 s%d, s%d, 32768'%(sA,sW)); e('v_add_u32 v6, s%d, v8'%sA)

def moe_up(a, tag, SC=' sc1'):
    e=a.e
    moe_common(e)
    XA=16; WF=80; AC=96
    e('v_lshrrev_b32 v8, 1, v1'); e('s_mov_b32 s%d, 3584'%sT0); e('v_mul_lo_u32 v8, v8, s%d'%sT0); e('v_and_b32 v9, 1, v1'); e('v_lshl_add_u32 v5, v9, 4, v8')
    e('s_lshl_b32 s%d, s%d, 7'%(sB,sI0)); e('s_lshl_b32 s%d, s%d, 5'%(sT0,sW)); e('s_add_u32 s%d, s%d, s%d'%(sB,sB,sT0))
    e('s_barrier')
    for m,ptr in enumerate((sE,sG)):
        srd(e,S_W,ptr,512*3584)
        e('s_mov_b32 s%d, s%d'%(sT0,sB)); e('s_add_u32 s%d, s%d, %d'%(sT1,sA,m*16384))
        for i in range(16):
            e('s_mov_b32 m0, s%d'%sT1)
            e('buffer_load_dwordx4 v5, s[%d:%d], s%d offen lds'%(S_W,S_W+3,sT0))
            e('s_add_u32 s%d, s%d, %d'%(sT0,sT0,32*3584)); e('s_add_u32 s%d, s%d, 0x400'%(sT1,sT1))
    return
def moe_up2(a, tag, SC=' sc1'):
    e=a.e
    XA=16; WF=80; AC=96
    e('v_and_b32 v8, 7, v2'); e('v_lshlrev_b32 v8, 2, v8')
    e('s_mov_b32 s%d, 0x%x'%(sT0,WS_IDX)); e('buffer_load_dword v9, v8, s[%d:%d], s%d offen%s'%(S_WS,S_WS+3,sT0,SC))
    e('s_waitcnt vmcnt(0)')
    e('v_lshlrev_b32 v9, 10, v9'); e('v_lshl_add_u32 v9, v3, 4, v9')
    for ks in range(16): e('buffer_load_dwordx4 %s, v9, s[%d:%d], 0 offen offset:%d'%(vr(XA+4*ks,4),S_X,S_X+3,ks*64))
    e('s_waitcnt vmcnt(0)')
    for ks in range(16):
        for m in range(2):
            for hf in range(2): e('ds_read_b64_tr_b16 %s, v6 offset:%d'%(vr(WF+8*(ks&1)+4*m+2*hf,2),m*16384+(32*ks+4*hf)*32))
        e('s_waitcnt lgkmcnt(0)')
        for m in range(2):
            e('v_mfma_f32_16x16x32_bf16 %s, %s, %s, %s'%(vr(AC+4*m,4),vr(XA+4*ks,4),vr(WF+8*(ks&1)+4*m,4),'0' if ks==0 else vr(AC+4*m,4)))
    e('s_mov_b32 s%d, 0x%08x'%(sC_,f32bits(-math.log2(math.e))))
    G_,U_,S_=AC,AC+4,AC+8
    rnd2(e,G_,8); rnd2(e,G_+2,8); rnd2(e,U_,8); rnd2(e,U_+2,8)
    for r in range(4):
        e('v_mov_b32 v%d, v%d'%(S_+r,G_+r)); sigmoid(e,S_+r,sC_); e('v_mul_f32 v%d, v%d, v%d'%(G_+r,G_+r,S_+r))
    rnd2(e,G_,8); rnd2(e,G_+2,8)
    e('v_pk_mul_f32 %s, %s, %s'%(vr(G_,2),vr(G_,2),vr(U_,2))); e('v_pk_mul_f32 %s, %s, %s'%(vr(G_+2,2),vr(G_+2,2),vr(U_+2,2)))
    for r in range(4): e('v_cvt_pk_bf16_f32 v%d, v%d, v%d'%(S_+r,G_+r,G_+r))
    e('s_mov_b32 s%d, %d'%(sT0,4*3584)); e('v_mul_lo_u32 v8, v3, s%d'%sT0); e('v_lshl_add_u32 v8, v2, 1, v8')
    e('s_add_u32 s%d, s%d, 0x%x'%(sT0,sB,WS_H))
    e('s_mov_b64 exec, 0xffffffff')
    for r in range(4):
        e('buffer_store_short v%d, v8, s[%d:%d], s%d offen%s'%(S_+r,S_WS,S_WS+3,sT0,SC))
        e('s_add_u32 s%d, s%d, 3584'%(sT0,sT0))
    e('s_mov_b64 exec, -1')
    e('s_waitcnt vmcnt(0)')

def moe_down_dma(a,half):
    e=a.e
    e('s_add_u32 s%d, s%d, %d'%(sT0,sB,half*896*1024)); e('s_mov_b32 s%d, s%d'%(sT1,sA))
    for i in range(28):
        e('s_mov_b32 m0, s%d'%sT1)
        e('buffer_load_dwordx4 v5, s[%d:%d], s%d offen lds'%(S_W,S_W+3,sT0))
        e('s_add_u32 s%d, s%d, 0x8000'%(sT0,sT0)); e('s_add_u32 s%d, s%d, 0x400'%(sT1,sT1))
def moe_down(a, tag, SC=' sc1'):
    e=a.e
    moe_common(e)
    e('v_lshrrev_b32 v8, 1, v1'); e('v_lshlrev_b32 v8, 10, v8'); e('v_and_b32 v9, 1, v1'); e('v_lshl_add_u32 v5, v9, 4, v8')
    e('s_lshl_b32 s%d, s%d, 7'%(sB,sI0)); e('s_lshl_b32 s%d, s%d, 5'%(sT0,sW)); e('s_add_u32 s%d, s%d, s%d'%(sB,sB,sT0))
    srd(e,S_W,sE,1792*1024)
    e('s_barrier')
    moe_down_dma(a,0)
def moe_down2(a, tag, SC=' sc1'):
    e=a.e
    HA=16; WF=128; AC=136
    e('v_and_b32 v8, 7, v2'); e('s_mov_b32 s%d, 3584'%sT0); e('v_mul_lo_u32 v8, v8, s%d'%sT0); e('v_lshl_add_u32 v9, v3, 4, v8')
    e('v_lshlrev_b32 v10, 4, v3')
    e('s_mov_b32 s%d, 0x%x'%(sT0,WS_IDX+64)); e('buffer_load_dwordx4 v[12:15], v10, s[%d:%d], s%d offen%s'%(S_WS,S_WS+3,sT0,SC))
    for half in range(2):
        e('s_mov_b32 s%d, 0x%x'%(sC_,WS_H+half*1792))
        for ks in range(28): e('buffer_load_dwordx4 %s, v9, s[%d:%d], s%d offen offset:%d%s'%(vr(HA+4*ks,4),S_WS,S_WS+3,sC_,ks*64,SC))
        e('s_waitcnt vmcnt(0)')
        for ks in range(28):
            for hf in range(2): e('ds_read_b64_tr_b16 %s, v6 offset:%d'%(vr(WF+4*(ks&1)+2*hf,2),(32*ks+4*hf)*32))
            e('s_waitcnt lgkmcnt(0)')
            e('v_mfma_f32_16x16x32_bf16 %s, %s, %s, %s'%(vr(AC,4),vr(HA+4*ks,4),vr(WF+4*(ks&1),4),'0' if (ks==0 and half==0) else vr(AC,4)))
        if half==0: moe_down_dma(a,1)
    rnd2(e,AC,8); rnd2(e,AC+2,8)
    e('v_pk_mul_f32 %s, %s, v[12:13]'%(vr(AC,2),vr(AC,2))); e('v_pk_mul_f32 %s, %s, v[14:15]'%(vr(AC+2,2),vr(AC+2,2)))
    rnd2(e,AC,8); rnd2(e,AC+2,8)
    e('v_lshlrev_b32 v8, 13, v3'); e('v_lshl_add_u32 v8, v2, 2, v8')
    e('s_lshl_b32 s%d, s%d, 1'%(sT0,sB)); e('s_add_u32 s%d, s%d, 0x%x'%(sT0,sT0,WS_Y))
    e('s_mov_b64 exec, 0xffffffff')
    for r in range(4):
        e('buffer_store_dword v%d, v8, s[%d:%d], s%d offen%s'%(AC+r,S_WS,S_WS+3,sT0,SC))
        e('s_add_u32 s%d, s%d, 2048'%(sT0,sT0))
    e('s_mov_b64 exec, -1')
    e('s_waitcnt vmcnt(0)')
```

```python
from asmdsl import *
from layout import *
import math, struct
def f32bits(x): return struct.unpack('<I',struct.pack('<f',x))[0]

S_WS=8; S_DBG=12; S_W=16; S_M0=20
sH=24; sW=25; sS=26; sTAG=27; sRA=28; sRB=29; sRC=30; sT0=31
sP1W=32; sP1R=36
sKX=40; sVX=41; sKM=42; sVM=43; sKM0=44; sT1=45; sT2=46; sT3=47
sC=48
sNC=50
sEXQ=52
sEXM=54
sPWQ=56; sPWK=58; sPWV=60; sPWO=62
sPROG=64
sBUD=65
sPN=88
vL16=1; vM2R=2; vQKW=3; vQKR=4; vKX=5; vOW=6; vWO0=7; vWO1=8; vP1W=9; vP1R=10; vM2W=11; vIDX=13
vVM1=14
vM2P=12
MQ=16; MF=24; F=24; ACC=56; VACC=72; KX=80; VX=112; PX=120; PM=124; VM0=126
WV=128

def wreg(x,t,ks):
    if x<2: return ar(((x*2+t)*8+ks)*8,8)
    return vr(WV+(t*8+ks)*8,8)
def wreg2(x,t,ks,p):
    if x<2: return ar(((x*2+t)*8+ks)*8+p,2)
    return vr(WV+(t*8+ks)*8+p,2)

def gen_rec(a, nsteps=64, opt=()):
    e=a.e
    SC='' if 'plainpub' in opt else ' sc1'
    P=dict(p2=46,p1=50,r1=40,r2=40,w2=2,w0=0,mf=8,rep=1,rstride=8192)
    for o in opt:
        if o.startswith('st='): continue
        if '=' in o: k_,v_=o.split('='); P[k_]=int(v_)
    STL=None
    for o in opt:
        if o.startswith('st='): STL=[int(x) for x in o[3:].split(',')]+[15]
    H1B='h1b' in opt
    lg=Cnt(a,'lgkmcnt',15); vm=Cnt(a,'vmcnt',63)
    l,n,g,t0,t1,t2=16,17,18,19,20,21
    e('v_and_b32 v%d, 63, v0'%l)
    e('v_and_b32 v%d, 15, v0'%n)
    e('v_bfe_u32 v%d, v0, 4, 2'%g)
    e('v_lshlrev_b32 v%d, 4, v%d'%(vL16,l))
    e('s_lshl_b32 s%d, s%d, 11'%(sT0,sW))
    e('v_add_u32 v%d, s%d, v%d'%(vM2R,sT0,vL16))
    e('v_lshrrev_b32 v%d, 2, v%d'%(t0,n))
    e('v_xor_b32 v%d, v%d, v%d'%(t0,t0,g))
    e('v_lshlrev_b32 v%d, 3, v%d'%(t0,t0))
    e('v_lshl_add_u32 v%d, v%d, 5, v%d'%(t0,n,t0))
    e('s_lshl_b32 s%d, s%d, 10'%(sT0,sW))
    e('s_add_u32 s%d, s%d, %d'%(sT0,sT0,L_QK))
    e('v_add_u32 v%d, s%d, v%d'%(vQKW,sT0,t0))
    e('v_lshrrev_b32 v%d, 2, v%d'%(t0,n))
    e('v_lshl_add_u32 v%d, v%d, 2, v%d'%(t0,g,t0))
    e('v_lshlrev_b32 v%d, 5, v%d'%(t0,t0))
    e('v_and_b32 v%d, 3, v%d'%(t1,n))
    e('v_xor_b32 v%d, v%d, v%d'%(t1,t1,g))
    e('v_lshl_add_u32 v%d, v%d, 3, v%d'%(t0,t1,t0))
    e('v_add_u32 v%d, %d, v%d'%(vQKR,L_QK,t0))
    e('v_add_u32 v%d, %d, v%d'%(vKX,L_KX,vL16))
    e('v_and_b32 v%d, 13, v%d'%(t0,n))
    e('v_lshl_add_u32 v%d, v%d, 4, v%d'%(t0,g,t0))
    e('v_lshlrev_b32 v%d, 4, v%d'%(t0,t0))
    e('s_lshr_b32 s%d, s%d, 1'%(sT0,sW))
    e('s_lshl_b32 s%d, s%d, 10'%(sT0,sT0))
    e('s_and_b32 s%d, s%d, 1'%(sT1,sW))
    e('s_lshl_b32 s%d, s%d, 5'%(sT1,sT1))
    e('s_add_u32 s%d, s%d, s%d'%(sT0,sT0,sT1))
    e('s_add_u32 s%d, s%d, %d'%(sT0,sT0,L_O))
    e('v_add_u32 v%d, s%d, v%d'%(vOW,sT0,t0))
    e('s_lshl_b32 s%d, s%d, 14'%(sT0,sW))
    e('s_add_u32 s%d, s%d, %d'%(sT0,sT0,L_WO))
    e('v_add_u32 v%d, s%d, v%d'%(vWO0,sT0,vL16))
    e('v_add_u32 v%d, 0x10000, v%d'%(vWO1,vWO0))
    e('v_lshrrev_b32 v%d, 3, v%d'%(t0,n))
    e('v_lshlrev_b32 v%d, 14, v%d'%(t0,t0))
    e('v_lshl_add_u32 v%d, v%d, 7, v%d'%(t0,g,t0))
    e('v_and_b32 v%d, 7, v%d'%(t1,n))
    e('v_lshl_add_u32 v%d, v%d, 4, v%d'%(t0,t1,t0))
    e('s_lshl_b32 s%d, s%d, 15'%(sT0,sW))
    e('s_lshl_b32 s%d, s%d, 9'%(sT1,sH))
    e('s_add_u32 s%d, s%d, s%d'%(sT0,sT0,sT1))
    e('v_add_u32 v%d, s%d, v%d'%(vP1W,sT0,t0))
    e('v_lshrrev_b32 v%d, 3, v%d'%(t0,l))
    e('v_lshlrev_b32 v%d, 9, v%d'%(t0,t0))
    e('v_and_b32 v%d, 7, v%d'%(t1,l))
    e('v_lshl_add_u32 v%d, v%d, 4, v%d'%(t0,t1,t0))
    e('s_lshl_b32 s%d, s%d, 7'%(sT0,sW))
    e('v_add_u32 v%d, s%d, v%d'%(vP1R,sT0,t0))
    if H1B:
        e('v_lshrrev_b32 v%d, 2, v%d'%(t0,n))
        e('v_lshlrev_b32 v%d, 13, v%d'%(t0,t0))
        e('v_lshl_add_u32 v%d, v%d, 6, v%d'%(t0,g,t0))
        e('v_and_b32 v%d, 3, v%d'%(t1,n))
        e('v_lshl_add_u32 v%d, v%d, 4, v%d'%(t0,t1,t0))
        e('s_lshl_b32 s%d, s%d, 15'%(sT0,sW))
        e('s_lshl_b32 s%d, s%d, 8'%(sT1,sH))
        e('s_add_u32 s%d, s%d, s%d'%(sT0,sT0,sT1))
        e('v_add_u32 v%d, s%d, v%d'%(vP1W,sT0,t0))
        e('v_lshrrev_b32 v%d, 2, v%d'%(t0,l))
        e('v_lshlrev_b32 v%d, 8, v%d'%(t0,t0))
        e('v_and_b32 v%d, 3, v%d'%(t1,l))
        e('v_lshl_add_u32 v%d, v%d, 4, v%d'%(t0,t1,t0))
        e('s_lshl_b32 s%d, s%d, 6'%(sT0,sW))
        e('v_add_u32 v%d, s%d, v%d'%(vP1R,sT0,t0))
    e('v_bfe_u32 v%d, v%d, 1, 2'%(t0,l))
    e('v_lshlrev_b32 v%d, 2, v%d'%(t0,t0))
    e('v_lshl_add_u32 v%d, v%d, 4, v%d'%(t0,g,t0))
    e('s_lshl_b32 s%d, s%d, 8'%(sT0,sH))
    e('s_lshl_b32 s%d, s%d, 6'%(sT1,sW))
    e('s_add_u32 s%d, s%d, s%d'%(sT0,sT0,sT1))
    e('v_add_u32 v%d, s%d, v%d'%(vM2W,sT0,t0))
    e('v_and_b32 v%d, 1, v%d'%(t0,l)); e('v_bfe_u32 v%d, v%d, 3, 1'%(t1,l)); e('v_lshl_or_b32 v%d, v%d, 1, v%d'%(t0,t1,t0))
    e('s_mov_b32 s%d, %d'%(sT0,P['rstride'])); e('v_mul_lo_u32 v%d, v%d, s%d'%(t0,t0,sT0)); e('v_add_u32 v%d, v%d, v%d'%(vM2W,vM2W,t0))
    e('s_and_b32 s%d, s%d, %d'%(sT0,sH,P['rep']-1)); e('s_mul_i32 s%d, s%d, %d'%(sT0,sT0,P['rstride']))
    e('v_add_u32 v%d, s%d, v%d'%(vM2P,sT0,vM2R))
    e('v_and_b32 v%d, 2, v%d'%(t0,n))
    e('v_cmp_eq_u32 vcc, 0, v%d'%t0)
    e('v_mov_b32 v%d, 0xeeeeeeee'%t0)
    e('v_mov_b32 v%d, 0x44444444'%t1)
    e('v_cndmask_b32 v%d, v%d, v%d, vcc'%(vIDX,t0,t1))
    e('v_mov_b32 v15, 0'); e('v_mov_b32 v%d, 0'%(PM+1)); e('v_mov_b32 v%d, 0'%(VM0+1))
    c=(128**-0.5)*math.log2(math.e)
    e('s_mov_b32 s%d, 0x%08x'%(sC,f32bits(c))); e('s_mov_b32 s%d, 0x%08x'%(sC+1,f32bits(c))); e('s_mov_b32 s%d, 0x%08x'%(sNC,f32bits(-c)))
    e('s_mov_b32 s%d, 0xcccccccc'%sEXQ); e('s_mov_b32 s%d, 0xcccccccc'%(sEXQ+1))
    mk={1:0x00550055,2:0x00ff00ff,4:0xffffffff}[P['rep']]
    e('s_mov_b32 s%d, 0x%x'%(sEXM,mk)); e('s_mov_b32 s%d, 0x%x'%(sEXM+1,mk))
    for q in range(4): e('s_mov_b32 s%d, 0x%x'%(sP1W+q,WS_P1+q*131072))
    e('s_lshl_b32 s%d, s%d, %d'%(sT0,sH,13 if H1B else 14))
    for i in range(4): e('s_add_u32 s%d, s%d, 0x%x'%(sP1R+i,sT0,WS_P1+i*4096))
    e('s_mov_b32 s%d, 0x%x'%(sRA,WS_M2)); e('s_mov_b32 s%d, 0x%x'%(sRB,WS_M2+0x40000)); e('s_mov_b32 s%d, 0x%x'%(sRC,WS_M2+0x80000))
    e('s_lshl_b32 s%d, s%d, 13'%(sT0,sH))
    e('s_add_u32 s%d, s%d, 0x%x'%(sKX,sT0,WS_K))
    e('s_add_u32 s%d, s%d, 0x%x'%(sVX,sT0,WS_V))
    e('s_lshl_b32 s%d, s%d, 12'%(sT0,sH)); e('s_lshl_b32 s%d, s%d, 10'%(sT1,sW)); e('s_add_u32 s%d, s%d, s%d'%(sT0,sT0,sT1))
    e('s_add_u32 s%d, s%d, 0x%x'%(sKM,sT0,WS_KM))
    e('s_lshl_b32 s%d, s%d, 11'%(sT0,sW))
    e('s_add_u32 s%d, s%d, %d'%(sKM0,sT0,L_KX))
    e('s_lshl_b32 s%d, s%d, 2'%(sT0,sH)); e('s_add_u32 s%d, s%d, s%d'%(sT0,sT0,sW)); e('s_add_u32 s%d, s%d, %d'%(sPROG,sT0,DBG_PROG))
    e('s_mov_b32 s%d, 0'%sS); e('s_mov_b32 s%d, 1'%sTAG)
    e('s_mov_b32 s%d, 400000'%sBUD)
    ST='stamps' in opt
    sTM=68; sPREV=70; sACC0=72; NST=16
    if ST:
        for i in range(NST): e('s_mov_b32 s%d, 0'%(sACC0+i))
        e('s_mov_b32 s%d, 0'%sPREV)
    def stamp(i):
        if not ST: return
        if STL is not None and i not in STL: return
        e('s_memtime s[%d:%d]'%(sTM,sTM+1))
        e('s_waitcnt lgkmcnt(0)'); lg.q=[]
        e('s_sub_u32 s%d, s%d, s%d'%(sPREV+1,sTM,sPREV))
        e('s_add_u32 s%d, s%d, s%d'%(sACC0+i,sACC0+i,sPREV+1))
        e('s_mov_b32 s%d, s%d'%(sPREV,sTM))
    def retry(lbl,code):
        e('s_cbranch_vccz %s_ok'%lbl)
        e('s_sub_u32 s%d, s%d, 1'%(sBUD,sBUD))
        e('s_cmp_eq_u32 s%d, 0'%sBUD)
        e('s_cbranch_scc0 %s'%lbl)
        e('s_mov_b32 s%d, %d'%(sT0,code))
        e('s_branch L_abort')
        a.label(lbl+'_ok')

    for r in range(4): e('v_mov_b32 v%d, 0'%(24+r))
    e('v_mov_b32 v28, -1')
    e('s_lshl_b32 s%d, s%d, %d'%(sT0,sW,11 if H1B else 12)); e('s_add_u32 s%d, s%d, s%d'%(sT0,sT0,sP1R))
    for i in range(2 if H1B else 4): e('buffer_store_dwordx4 v[24:27], v%d, s[%d:%d], s%d offen offset:%d'%(vL16,S_WS,S_WS+3,sT0,i*1024))
    e('s_mov_b64 exec, s[%d:%d]'%(sEXM,sEXM+1))
    for sl in (sRA,sRB,sRC): e('buffer_store_dword v28, v%d, s[%d:%d], s%d offen'%(vM2W,S_WS,S_WS+3,sl))
    e('s_mov_b64 exec, -1')

    e('s_waitcnt vmcnt(0)')
    e('s_barrier')
    e('v_cmp_eq_u32 vcc, 0, v0')
    e('s_and_saveexec_b64 s[%d:%d], vcc'%(sT2,sT3))
    e('v_mov_b32 v24, 1'); e('v_mov_b32 v25, %d'%DBG_INIT)
    e('buffer_atomic_add v24, v25, s[%d:%d], 0 offen'%(S_DBG,S_DBG+3))
    e('s_mov_b64 exec, -1')
    dv=28
    e('v_and_b32 v%d, 1, v%d'%(t0,g))
    e('v_lshlrev_b32 v%d, 1, v%d'%(t0,t0))
    e('v_xor_b32 v%d, v%d, v%d'%(t0,t0,n))
    e('v_lshlrev_b32 v%d, 4, v%d'%(t0,t0))
    e('v_lshl_add_u32 v%d, v%d, 13, v%d'%(t0,g,t0))
    e('s_lshl_b32 s%d, s%d, 8'%(sT0,sH))
    e('v_add_u32 v%d, s%d, v%d'%(dv,sT0,t0))
    for k in range(1,4): e('v_xor_b32 v%d, %d, v%d'%(dv+k,k<<6,dv))
    r_,cc,row0,Fz=32,33,34,35
    tb=36
    e('v_lshrrev_b32 v%d, 2, v%d'%(r_,n)); e('v_and_b32 v%d, 3, v%d'%(cc,n))
    e('v_lshrrev_b32 v%d, 1, v%d'%(t0,g)); e('v_lshlrev_b32 v%d, 4, v%d'%(row0,t0))
    e('v_and_b32 v%d, 1, v%d'%(t0,g)); e('v_lshl_add_u32 v%d, v%d, 2, v%d'%(row0,t0,row0)); e('v_lshlrev_b32 v%d, 1, v%d'%(Fz,t0))
    e('v_and_b32 v%d, 1, v%d'%(t0,r_)); e('v_add_u32 v%d, v%d, v%d'%(row0,row0,t0)); e('v_or_b32 v%d, v%d, v%d'%(Fz,Fz,t0))
    e('v_lshrrev_b32 v%d, 1, v%d'%(t0,r_)); e('v_lshl_add_u32 v%d, v%d, 3, v%d'%(row0,t0,row0)); e('v_lshl_or_b32 v%d, v%d, 2, v%d'%(Fz,t0,Fz))
    e('v_lshrrev_b32 v%d, 1, v%d'%(t0,cc)); e('s_lshl_b32 s%d, s%d, 2'%(sT0,sW)); e('v_add_u32 v%d, s%d, v%d'%(t0,sT0,t0))
    e('v_lshlrev_b32 v%d, 1, v%d'%(t1,Fz)); e('v_xor_b32 v%d, v%d, v%d'%(t0,t0,t1)); e('v_lshlrev_b32 v%d, 4, v%d'%(t0,t0))
    e('v_lshl_add_u32 v%d, v%d, 8, v%d'%(t0,row0,t0))
    e('v_and_b32 v%d, 1, v%d'%(t1,cc)); e('v_lshl_add_u32 v%d, v%d, 3, v%d'%(t0,t1,t0))
    e('v_add_u32 v%d, %d, v%d'%(tb,L_WO,t0))
    e('v_xor_b32 v%d, 32, v%d'%(tb+1,tb))
    e('v_add_u32 v%d, 0x10000, v%d'%(tb+2,tb)); e('v_add_u32 v%d, 0x10000, v%d'%(tb+3,tb+1))
    wo_b=40
    e('v_and_b32 v%d, 1, v%d'%(t0,g)); e('v_lshlrev_b32 v%d, 4, v%d'%(row0,t0)); e('v_lshlrev_b32 v%d, 2, v%d'%(Fz,t0))
    e('v_lshrrev_b32 v%d, 1, v%d'%(t0,g)); e('v_lshl_add_u32 v%d, v%d, 2, v%d'%(row0,t0,row0))
    e('v_and_b32 v%d, 1, v%d'%(t0,r_)); e('v_add_u32 v%d, v%d, v%d'%(row0,row0,t0)); e('v_or_b32 v%d, v%d, v%d'%(Fz,Fz,t0))
    e('v_lshrrev_b32 v%d, 1, v%d'%(t0,r_)); e('v_lshl_add_u32 v%d, v%d, 5, v%d'%(row0,t0,row0)); e('v_lshl_or_b32 v%d, v%d, 3, v%d'%(Fz,t0,Fz))
    e('v_and_b32 v%d, 2, v%d'%(t0,cc)); e('s_lshl_b32 s%d, s%d, 2'%(sT0,sW)); e('v_add_u32 v%d, s%d, v%d'%(t0,sT0,t0))
    e('v_xor_b32 v%d, v%d, v%d'%(t0,t0,Fz)); e('v_lshlrev_b32 v%d, 4, v%d'%(t0,t0))
    e('v_lshl_add_u32 v%d, v%d, 10, v%d'%(t0,row0,t0))
    e('v_and_b32 v%d, 1, v%d'%(t1,cc)); e('v_lshl_add_u32 v%d, v%d, 3, v%d'%(t0,t1,t0))
    e('v_add_u32 v%d, %d, v%d'%(wo_b,L_WO,t0))
    e('v_xor_b32 v%d, 16, v%d'%(wo_b+1,wo_b))
    e('v_add_u32 v%d, 0x10000, v%d'%(wo_b+2,wo_b)); e('v_add_u32 v%d, 0x10000, v%d'%(wo_b+3,wo_b+1))

    def set_w(ptr,nbytes):
        e('s_mov_b32 s%d, s%d'%(S_W,ptr)); e('s_and_b32 s%d, s%d, 0xffff'%(S_W+1,ptr+1))
        e('s_mov_b32 s%d, 0x%x'%(S_W+2,nbytes)); e('s_mov_b32 s%d, 0x20000'%(S_W+3))
    def dma(nidx):
        area=nidx&1
        if nidx<6:
            x=nidx>>1; half=nidx&1
            set_w((sPWQ,sPWK,sPWV)[x],4*MB)
            e('s_lshl_b32 s%d, s%d, 19'%(sT0,sW))
            e('s_add_u32 s%d, s%d, 0x%x'%(sT0,sT0,half*256*8192))
            e('s_lshl_b32 s%d, s%d, 14'%(sT1,sW))
            e('s_add_u32 s%d, s%d, 0x%x'%(sT1,sT1,L_WO+area*65536))
            for i in range(16):
                e('s_mov_b32 m0, s%d'%sT1)
                e('buffer_load_dwordx4 v%d, s[%d:%d], s%d offen lds'%(dv+(i&3),S_W,S_W+3,sT0)); vm.issue(('dma',nidx))
                e('s_add_u32 s%d, s%d, 0x8000'%(sT0,sT0)); e('s_add_u32 s%d, s%d, 0x400'%(sT1,sT1))
        else:
            half=nidx&1
            set_w(sPWO,4*MB)
            e('s_lshl_b32 s%d, s%d, 17'%(sT0,sH))
            e('s_lshl_b32 s%d, s%d, 14'%(sT1,sW))
            e('s_add_u32 s%d, s%d, s%d'%(sT0,sT0,sT1))
            e('s_add_u32 s%d, s%d, 0x%x'%(sT0,sT0,half*65536))
            e('s_add_u32 s%d, s%d, 0x%x'%(sT1,sT1,L_WO+area*65536))
            e('s_lshl_b32 s%d, s%d, 6'%(sT2,sW))
            e('v_xor_b32 v44, s%d, v%d'%(sT2,vL16)); e('v_xor_b32 v45, 16, v44')
            for i in range(16):
                e('s_mov_b32 m0, s%d'%sT1)
                e('buffer_load_dwordx4 v%d, s[%d:%d], s%d offen lds'%(44+(i&1),S_W,S_W+3,sT0)); vm.issue(('dma',nidx))
                e('s_add_u32 s%d, s%d, 0x400'%(sT0,sT0)); e('s_add_u32 s%d, s%d, 0x400'%(sT1,sT1))
    vm.issue('atom')
    dma(0); dma(1)
    for nidx in range(8):
        area=nidx&1
        vm.wait(('dma',nidx))
        e('s_barrier')
        if nidx<6:
            x=nidx>>1; half=nidx&1
            cnt=0
            for t in range(2):
                for ksl in range(4):
                    ks=half*4+ksl
                    for p in range(0,8,2):
                        off=(64*ksl+32*(p>>2)+2*((p>>1)&1))*256
                        e('ds_read_b64_tr_b16 %s, v%d offset:%d'%(wreg2(x,t,ks,p),tb+2*area+t,off))
                        cnt+=1
                        if cnt%12==0: e('s_waitcnt lgkmcnt(4)')
            e('s_waitcnt lgkmcnt(0)')
            e('s_barrier')
            dma(nidx+2)
        else:
            cnt=0
            for tt in range(8):
                q,u=tt>>1,tt&1
                for p in range(0,8,2):
                    off=(8*(p>>2)+2*((p>>1)&1))*1024 + 16*q*16
                    e('ds_read_b64_tr_b16 %s, v%d offset:%d'%(vr(64+tt*8+p,2),wo_b+2*area+u,off))
                    cnt+=1
                    if cnt%12==0: e('s_waitcnt lgkmcnt(4)')
            e('s_waitcnt lgkmcnt(0)')
            e('s_barrier')
            for tt in range(8):
                for hf in range(2):
                    e('ds_write_b128 v%d, %s offset:%d'%((vWO0,vWO1)[area],vr(64+tt*8+4*hf,4),tt*2048+hf*1024))
                if tt%4==3: e('s_waitcnt lgkmcnt(0)')
    e('v_mov_b32 v%d, 0'%(PM+1)); e('v_mov_b32 v%d, 0'%(VM0+1))
    e('s_mov_b32 m0, s%d'%sKM0)
    e('buffer_load_dwordx4 v%d, s[%d:%d], s%d offen sc1 lds'%(vM2R,S_WS,S_WS+3,sKX))
    e('buffer_load_dwordx4 v%d, s[%d:%d], s%d offen offset:1024 sc1 lds'%(vM2R,S_WS,S_WS+3,sKX))
    e('s_xor_b32 s%d, s%d, 8192'%(sKM0,sKM0))
    e('s_add_u32 s%d, s%d, 0x40000'%(sKX,sKX))
    e('v_lshrrev_b32 v%d, 2, v%d'%(t0,n)); e('v_lshlrev_b32 v%d, 11, v%d'%(t0,t0))
    e('v_and_b32 v%d, 1, v%d'%(t1,n)); e('v_lshl_add_u32 v%d, v%d, 10, v%d'%(t0,t1,t0))
    e('v_lshl_add_u32 v%d, v%d, 5, v%d'%(t0,g,t0))
    e('v_bfe_u32 v%d, v%d, 1, 1'%(t1,n)); e('v_lshl_add_u32 v%d, v%d, 4, v%d'%(24,t1,t0))
    e('s_lshl_b32 s%d, s%d, 8'%(sT0,sW))
    e('buffer_load_dwordx4 %s, v24, s[%d:%d], s%d offen'%(vr(MQ,4),S_M0,S_M0+3,sT0))
    e('buffer_load_dwordx4 %s, v24, s[%d:%d], s%d offen offset:128'%(vr(MQ+4,4),S_M0,S_M0+3,sT0))
    for r in range(ACC,ACC+24,2): e('v_mov_b64 %s, 0'%vr(r,2))
    e('v_mov_b32 v25, %d'%DBG_INIT)
    a.label('L_initwait')
    e('buffer_load_dword v26, v25, s[%d:%d], 0 offen sc1'%(S_DBG,S_DBG+3))
    e('s_waitcnt vmcnt(0)')
    e('v_cmp_gt_u32 vcc, 32, v26')
    retry('L_initwait',1)
    e('ds_write_b128 v%d, %s offset:%d'%(vM2R,vr(MQ,4),L_MEM))
    e('ds_write_b128 v%d, %s offset:%d'%(vM2R,vr(MQ+4,4),L_MEM+1024))
    e('s_waitcnt lgkmcnt(0)')
    stamp(15)
    e('s_branch L_have_mem')
    vm.reset(); lg.reset()

    FIL=0
    def fill(k):
        for _ in range(k): e('v_mov_b32 v%d, v%d'%(FIL,vL16))
    a.label('L_step')
    def budget(lbl,code):
        e('s_sub_u32 s%d, s%d, 1'%(sBUD,sBUD))
        e('s_cmp_eq_u32 s%d, 0'%sBUD)
        e('s_cbranch_scc0 %s'%lbl)
        e('s_mov_b32 s%d, %d'%(sT0,code))
        e('s_branch L_abort')
    def poll2(first):
        for i in range(2):
            if not first: e('s_mov_b64 exec, s[%d:%d]'%(sPN+2*i,sPN+2*i+1))
            e('buffer_load_dwordx4 %s, v%d, s[%d:%d], s%d offen offset:%d sc1'%(vr(MQ+4*i,4),vM2P,S_WS,S_WS+3,sRA,1024*i))
        if not first: e('s_mov_b64 exec, -1')
        fill(P['p2'] if first else P['r2'])
        e('s_waitcnt vmcnt(0)')
        e('ds_write_b128 v%d, %s offset:%d'%(vM2R,vr(MQ,4),L_MEM))
        e('v_max3_u32 v%d, v%d, v%d, v%d'%(MF,MQ,MQ+1,MQ+2))
        e('v_max3_u32 v%d, v%d, v%d, v%d'%(MF+1,MQ+4,MQ+5,MQ+6))
        e('ds_write_b128 v%d, %s offset:%d'%(vM2R,vr(MQ+4,4),L_MEM+1024))
        e('v_max_u32 v%d, v%d, v%d'%(MF,MF,MQ+3))
        e('v_max_u32 v%d, v%d, v%d'%(MF+1,MF+1,MQ+7))
        e('v_cmp_eq_u32 s[%d:%d], -1, v%d'%(sPN,sPN+1,MF))
        e('v_cmp_eq_u32 s[%d:%d], -1, v%d'%(sPN+2,sPN+3,MF+1))
        fill(3)
        e('s_or_b64 s[%d:%d], s[%d:%d], s[%d:%d]'%(sT2,sT3,sPN,sPN+1,sPN+2,sPN+3))
    poll2(True)
    e('s_cbranch_scc0 L_poll2_ok')
    a.label('L_poll2')
    e('s_waitcnt lgkmcnt(0)')
    poll2(False)
    e('s_cbranch_scc0 L_poll2_ok')
    budget('L_poll2',2)
    a.label('L_poll2_ok')
    fill(P['w2'])
    e('s_waitcnt lgkmcnt(0)')
    stamp(0)
    a.label('L_have_mem')
    e('s_barrier')
    stamp(1)
    def compute():
        def mfread(ks):
            e('ds_read_b128 %s, v%d offset:%d'%(vr(MF+4*ks,4),vL16,L_MEM+ks*1024)); lg.issue(('mf',ks))
        for ks in range(4): mfread(ks); fill(1)
        e('buffer_load_dwordx4 %s, v%d, s[%d:%d], s%d offen sc1'%(vr(VX,4),vM2R,S_WS,S_WS+3,sVX)); vm.issue('vx')
        e('s_mov_b32 m0, s%d'%sKM0)
        e('v_mov_b32 v%d, s%d'%(MQ,sS))
        fill(P['mf']-6)
        def kxread(f):
            e('ds_read_b128 %s, v%d offset:%d'%(vr(KX+4*f,4),vKX,f*1024)); lg.issue(('kx',f))
        def vx2():
            e('buffer_load_dwordx4 %s, v%d, s[%d:%d], s%d offen offset:1024 sc1'%(vr(VX+4,4),vM2R,S_WS,S_WS+3,sVX)); vm.issue('vx')
        def kdma(i):
            e('buffer_load_dwordx4 v%d, s[%d:%d], s%d offen offset:%d sc1 lds'%(vM2R,S_WS,S_WS+3,sKX,1024*i)); vm.issue('kx')
        def prog():
            if 'noprog' in opt: fill(1); return
            e('s_mov_b64 exec, 1')
            e('buffer_store_byte v%d, v15, s[%d:%d], s%d offen sc1'%(MQ,S_DBG,S_DBG+3,sPROG)); vm.issue('prog')
            e('s_mov_b64 exec, -1')
        W=lambda ks:(lambda:lg.wait(('mf',ks)))
        gaps=[lambda:mfread(4),lambda:mfread(5),lambda:mfread(6),W(1),
              lambda:mfread(7),vx2,lambda:kdma(0),W(3),
              lambda:kxread(0),lambda:kxread(4),lambda:kdma(1),lambda:kxread(1),
              lambda:kxread(5),lambda:kxread(2),lambda:kxread(6),W(7),
              lambda:kxread(3),lambda:kxread(7),prog,lambda:fill(1)]+[lambda:fill(1)]*12
        lg.wait(('mf',0))
        gi=0
        for ks in range(8):
            A=vr(MF+4*ks,4)
            for x in range(2):
                for t in range(2):
                    e('v_smfmac_f32_16x16x64_bf16 %s, %s, %s, v%d'%(vr(ACC+(x*2+t)*4,4),A,wreg(x,t,ks),vIDX))
                    gaps[gi](); gi+=1
        stamp(2)
        vq=[(ks,t) for ks in range(8) for t in range(2)]
        def vmf(k=1,f=1):
            for _ in range(k):
                if not vq: return
                ks,t=vq.pop(0)
                A=vr(MF+4*ks,4)
                e('v_smfmac_f32_16x16x64_bf16 %s, %s, %s, v%d'%(vr(VACC+t*4,4),A,wreg(2,t,ks),vIDX))
                fill(f)
        vmf(2)
        for t in range(2):
            qa=ACC+t*4; ka=ACC+8+t*4
            e('v_pk_add_f32 %s, %s, %s'%(vr(MQ+4,2),vr(ka,2),vr(ka+2,2)))
            e('v_pk_add_f32 %s, %s, %s'%(vr(MQ+6,2),vr(qa,2),vr(qa+2,2)))
            e('v_cvt_pk_bf16_f32 v%d, v%d, v%d'%(MQ+t,MQ+4,MQ+5))
            e('v_cvt_pk_bf16_f32 v%d, v%d, v%d'%(MQ+2+t,MQ+6,MQ+7))
            e('ds_write2_b32 v%d, v%d, v%d offset0:%d offset1:%d'%(vQKW,MQ+t,MQ+2+t,128*t,128*t+1)); lg.issue(('qkw',t))
        e('buffer_store_dwordx2 %s, v%d, s[%d:%d], s%d offen%s'%(vr(MQ,2),vL16,S_WS,S_WS+3,sKM,SC)); vm.issue('km')
        vmf(4)
        lg.wait(('qkw',1))
        stamp(3)
        e('s_barrier')
        stamp(4)
        def fread(c_):
            e('ds_read_b64_tr_b16 %s, v%d offset:%d'%(vr(F+4*c_,2),vQKR,1024*c_)); lg.issue(('f',c_,0))
            e('ds_read_b64_tr_b16 %s, v%d offset:%d'%(vr(F+4*c_+2,2),vQKR,1024*c_+512)); lg.issue(('f',c_,1))
        fread(0); fill(1); fread(1); fill(1); fread(2)
        vmf(2)
        fread(3)
        Sm,Sx0,Sx1=ACC,ACC+4,ACC+8
        for c_ in range(4):
            lg.wait(('f',c_,1))
            Fc=vr(F+4*c_,4)
            e('v_mfma_f32_16x16x32_bf16 %s, %s, %s, %s'%(vr(Sm,4),Fc,Fc,'0' if c_==0 else vr(Sm,4)))
            fill(1)
            e('v_mfma_f32_16x16x32_bf16 %s, %s, %s, %s'%(vr(Sx0,4),vr(KX+4*c_,4),Fc,'0' if c_==0 else vr(Sx0,4)))
            fill(1)
            e('v_mfma_f32_16x16x32_bf16 %s, %s, %s, %s'%(vr(Sx1,4),vr(KX+16+4*c_,4),Fc,'0' if c_==0 else vr(Sx1,4)))
        vmf(2)
        stamp(5)
        WB=[KX,KX+8,KX+16,KX+24,MF,MF+8,MF+24,VACC]
        order=[]
        for q in range(4):
            for k2 in range(2):
                for u in range(2): order.append((2*q+u,k2))
        def woread(i):
            tt,k2=order[i]; b=WB[i%8]
            for hf in range(2):
                e('ds_read_b128 %s, v%d offset:%d'%(vr(b+4*hf,4),(vWO0,vWO1)[k2],tt*2048+hf*1024)); lg.issue(('wo',i))
        for i in range(0,3): woread(i)
        m1,m2=MQ,MQ+1
        e('v_max3_f32 v%d, v%d, v%d, v%d'%(m1,Sm,Sm+1,Sx0))
        e('v_max3_f32 v%d, v%d, v%d, v%d'%(m2,Sx0+3,Sx1,Sx1+1))
        e('v_max3_f32 v%d, v%d, v%d, v%d'%(m1,m1,Sx0+1,Sx0+2))
        e('v_max3_f32 v%d, v%d, v%d, v%d'%(m2,m2,Sx1+2,Sx1+3))
        e('v_max_f32 v%d, v%d, v%d'%(m1,m1,m2))
        e('v_mov_b32 v%d, v%d'%(m2,m1))
        vmf(1,0); fill(1)
        e('v_permlane32_swap_b32 v%d, v%d'%(m1,m2))
        e('v_max_f32 v%d, v%d, v%d'%(m1,m1,m2))
        e('v_mov_b32 v%d, v%d'%(m2,m1))
        vmf(1,0); fill(1)
        e('v_permlane16_swap_b32 v%d, v%d'%(m1,m2))
        e('v_max_f32 v%d, v%d, v%d'%(m1,m1,m2))
        e('v_mul_f32 v%d, s%d, v%d'%(MQ+2,sNC,m1))
        woread(3); woread(4)
        for r in (Sx0,Sx0+2,Sx1,Sx1+2,Sm):
            e('v_pk_fma_f32 %s, %s, s[%d:%d], %s op_sel_hi:[1,1,0]'%(vr(r,2),vr(r,2),sC,sC+1,vr(MQ+2,2)))
        k=0
        for r in (Sx0,Sx0+1,Sx0+2,Sx0+3,Sx1,Sx1+1,Sx1+2,Sx1+3,Sm,Sm+1):
            e('v_exp_f32 v%d, v%d'%(r,r))
            if k in (1,3,5,7): vmf(1,0)
            k+=1
        assert not vq, vq
        e('v_cvt_pk_bf16_f32 v%d, v%d, v%d'%(PX,Sx0,Sx0+1))
        e('v_cvt_pk_bf16_f32 v%d, v%d, v%d'%(PX+1,Sx0+2,Sx0+3))
        e('v_cvt_pk_bf16_f32 v%d, v%d, v%d'%(PX+2,Sx1,Sx1+1))
        e('v_cvt_pk_bf16_f32 v%d, v%d, v%d'%(PX+3,Sx1+2,Sx1+3))
        e('v_cvt_pk_bf16_f32 v%d, v%d, v%d'%(PM,Sm,Sm+1))
        stamp(6)
        vm.wait('vx')
        stamp(7)
        O=MF+16
        e('v_mfma_f32_16x16x32_bf16 %s, %s, %s, 0'%(vr(O,4),vr(VX,4),vr(PX,4)))
        e('v_pk_add_f32 %s, %s, %s'%(vr(MQ+4,2),vr(VACC,2),vr(VACC+2,2)))
        e('v_mfma_f32_16x16x32_bf16 %s, %s, %s, 0'%(vr(O+4,4),vr(VX+4,4),vr(PX,4)))
        e('v_pk_add_f32 %s, %s, %s'%(vr(MQ+6,2),vr(VACC+4,2),vr(VACC+6,2)))
        e('v_cvt_pk_bf16_f32 v%d, v%d, v%d'%(VM0,MQ+4,MQ+5))
        e('v_cvt_pk_bf16_f32 v%d, v%d, v%d'%(vVM1,MQ+6,MQ+7))
        e('v_pk_add_f32 %s, %s, %s'%(vr(MQ,2),vr(Sx0,2),vr(Sx0+2,2)))
        e('v_pk_add_f32 %s, %s, %s'%(vr(MQ+2,2),vr(Sx1,2),vr(Sx1+2,2)))
        e('v_mfma_f32_16x16x16_bf16 %s, %s, %s, %s'%(vr(O,4),vr(VM0,2),vr(PM,2),vr(O,4)))
        e('v_pk_add_f32 %s, %s, %s'%(vr(MQ,2),vr(MQ,2),vr(Sm,2)))
        e('v_mfma_f32_16x16x16_bf16 %s, %s, %s, %s'%(vr(O+4,4),vr(vVM1,2),vr(PM,2),vr(O+4,4)))
        e('v_pk_add_f32 %s, %s, %s'%(vr(MQ,2),vr(MQ,2),vr(MQ+2,2)))
        e('v_add_f32 v%d, v%d, v%d'%(MQ,MQ,MQ+1))
        e('v_mov_b32 v%d, v%d'%(MQ+1,MQ))
        e('v_mov_b32 v%d, v%d'%(MQ+4,VM0))
        e('v_mov_b32 v%d, v%d'%(MQ+5,vVM1))
        e('v_permlane32_swap_b32 v%d, v%d'%(MQ,MQ+1))
        e('buffer_store_dwordx2 %s, v%d, s[%d:%d], s%d offen offset:8%s'%(vr(MQ+4,2),vL16,S_WS,S_WS+3,sKM,SC)); vm.issue('vmst')
        e('v_add_f32 v%d, v%d, v%d'%(MQ,MQ,MQ+1))
        e('v_mov_b32 v%d, v%d'%(MQ+1,MQ))
        woread(5)
        e('v_permlane16_swap_b32 v%d, v%d'%(MQ,MQ+1))
        e('v_add_f32 v%d, v%d, v%d'%(MQ,MQ,MQ+1))
        e('v_rcp_f32 v%d, v%d'%(MQ,MQ))
        woread(6)
        for r in range(0,8,2):
            e('v_pk_mul_f32 %s, %s, %s op_sel_hi:[1,0]'%(vr(O+r,2),vr(O+r,2),vr(MQ,2)))
        for r in range(4):
            e('v_cvt_pk_bf16_f32 v%d, v%d, v%d'%(MQ+4+r,O+2*r,O+2*r+1))
        e('s_mov_b64 exec, s[%d:%d]'%(sEXQ,sEXQ+1))
        e('ds_write_b128 v%d, %s'%(vOW,vr(MQ+4,4))); lg.issue('ow')
        e('s_mov_b64 exec, -1')
        for r in range(ACC,ACC+16,2): e('v_mov_b64 %s, 0'%vr(r,2))
        e('s_cmp_eq_u32 s%d, %d'%(sS,nsteps-1))
        e('s_cbranch_scc1 L_rec_done')
        fill(P['w0'])
        lg.wait('ow')
        stamp(8)
        e('s_barrier')
        stamp(9)
        OA=VX
        e('ds_read_b128 %s, v%d offset:%d'%(vr(OA,4),vL16,L_O)); lg.issue('oa0')
        e('ds_read_b128 %s, v%d offset:%d'%(vr(OA+4,4),vL16,L_O+1024)); lg.issue('oa1')
        woread(7)
        fill(8)
        nxt=8
        def post(qq):
            pb=ACC+(qq&1)*8; T=MQ+4*(qq&1)
            return [ 'v_pk_add_f32 %s, %s, %s'%(vr(T,2),vr(pb,2),vr(pb+2,2)),
                     'v_pk_add_f32 %s, %s, %s'%(vr(T+2,2),vr(pb+4,2),vr(pb+6,2)),
                     'v_and_or_b32 v%d, v%d, -2, s%d'%(T,T,sTAG),
                     'buffer_store_dwordx4 %s, v%d, s[%d:%d], s%d offen'%(vr(T,4),vP1W,S_WS,S_WS+3,sP1W+qq)] + \
                   (['v_mov_b64 %s, 0'%vr(r,2) for r in range(pb,pb+8,2)] if qq<2 else [])
        for q in range(4):
            base=ACC+(q&1)*8
            pend=post(q-1) if q>=1 else []
            for k2 in range(2):
                for u in range(2):
                    i=q*4+k2*2+u
                    if i==0: lg.wait('oa0')
                    if i==2: lg.wait('oa1')
                    lg.wait(('wo',i))
                    e('v_smfmac_f32_16x16x64_bf16 %s, %s, %s, v%d'%(vr(base+4*u,4),vr(OA+4*k2,4),vr(WB[i%8],8),vIDX))
                    if nxt<16: woread(nxt); nxt+=1
                    j=k2*2+u
                    if j==0 or not pend: fill(1)
                    elif j==1:
                        for x in pend[:2]: e(x)
                    elif j==2:
                        for x in pend[2:4]: e(x)
                    else:
                        for x in pend[4:]: e(x)
                        if len(pend)==4: fill(1)
        fill(5)
        for x in post(3): e(x)
    def skeleton():
        fill(P.get('sk',100))
        e('s_cmp_eq_u32 s%d, %d'%(sS,nsteps-1))
        e('s_cbranch_scc1 L_rec_done')
        e('s_barrier')
        stamp(9)
        for qq in range(2 if H1B else 4):
            T=MQ+4*(qq&1)
            if H1B: fill(P.get('sg',14))
            e('v_and_or_b32 v%d, v%d, -2, s%d'%(T,vL16,sTAG))
            e('buffer_store_dwordx4 %s, v%d, s[%d:%d], s%d offen'%(vr(T,4),vP1W,S_WS,S_WS+3,sP1W+qq))
            fill(P.get('sg',14))
    if 'skel' in opt: skeleton()
    else: compute()
    e('v_xor_b32 v%d, 8192, v%d'%(vKX,vKX))
    e('s_xor_b32 s%d, s%d, 8192'%(sKM0,sKM0))
    e('s_add_u32 s%d, s%d, 0x40000'%(sVX,sVX))
    e('s_add_u32 s%d, s%d, 0x20000'%(sKM,sKM))
    e('s_add_u32 s%d, s%d, 1'%(sS,sS))
    e('s_cmp_lt_u32 s%d, 62'%sS)
    e('s_cselect_b32 s%d, 0x40000, 0'%sT0)
    e('s_add_u32 s%d, s%d, s%d'%(sKX,sKX,sT0))
    for r in range(ACC,ACC+24,2): e('v_mov_b64 %s, 0'%vr(r,2))
    stamp(10)
    fill(P.get('d1',0))
    P1=MF
    X=KX
    NL=2 if H1B else 4
    def poll1(first):
        for i in range(NL):
            if not first: e('s_mov_b64 exec, s[%d:%d]'%(sPN+2*i,sPN+2*i+1))
            e('buffer_load_dwordx4 %s, v%d, s[%d:%d], s%d offen sc1'%(vr(P1+4*i,4),vP1R,S_WS,S_WS+3,sP1R+i))
            if first: fill(1)
        if not first: e('s_mov_b64 exec, -1')
        fill(P['p1'] if first else P['r1'])
        e('s_waitcnt vmcnt(0)')
        for i in range(NL): e('v_and_b32 v%d, 1, v%d'%(MQ+i,P1+4*i))
        for i in range(NL): e('v_cmp_ne_u32 s[%d:%d], s%d, v%d'%(sPN+2*i,sPN+2*i+1,sTAG,MQ+i))
        e('v_pk_add_f32 %s, %s, %s'%(vr(X,2),vr(P1,2),vr(P1+4,2)))
        e('v_pk_add_f32 %s, %s, %s'%(vr(X+2,2),vr(P1+2,2),vr(P1+6,2)))
        e('v_pk_add_f32 %s, %s, %s'%(vr(X+8,2),vr(P1+8,2),vr(P1+12,2)))
        e('s_or_b64 s[%d:%d], s[%d:%d], s[%d:%d]'%(sT2,sT3,sPN,sPN+1,sPN+2,sPN+3))
        e('v_pk_add_f32 %s, %s, %s'%(vr(X+10,2),vr(P1+10,2),vr(P1+14,2)))
        if NL==4:
            e('s_or_b64 s[%d:%d], s[%d:%d], s[%d:%d]'%(sT2,sT3,sT2,sT3,sPN+4,sPN+5))
        e('v_pk_add_f32 %s, %s, %s'%(vr(X,2),vr(X,2),vr(X+8,2)))
        if NL==4:
            e('s_or_b64 s[%d:%d], s[%d:%d], s[%d:%d]'%(sT2,sT3,sT2,sT3,sPN+6,sPN+7))
        e('v_pk_add_f32 %s, %s, %s'%(vr(X+2,2),vr(X+2,2),vr(X+10,2)))
    poll1(True)
    e('s_cbranch_scc0 L_poll1_ok')
    a.label('L_poll1')
    poll1(False)
    e('s_cbranch_scc0 L_poll1_ok')
    budget('L_poll1',3)
    a.label('L_poll1_ok')
    P1=X
    stamp(12)
    e('v_permlane32_swap_b32 v%d, v%d'%(P1,P1+2))
    e('v_permlane32_swap_b32 v%d, v%d'%(P1+1,P1+3))
    e('v_pk_add_f32 %s, %s, %s'%(vr(P1,2),vr(P1,2),vr(P1+2,2)))
    e('v_mov_b32 v%d, -1'%(P1+5))
    fill(1)
    e('v_permlane16_swap_b32 v%d, v%d'%(P1,P1+1))
    e('v_add_f32 v%d, v%d, v%d'%(P1,P1,P1+1))
    fill(2)
    e('v_add_f32_dpp v%d, v%d, v%d row_ror:8 row_mask:0xf bank_mask:0xf'%(P1+2,P1,P1))
    fill(2)
    e('v_mov_b32_dpp v%d, v%d quad_perm:[0,0,2,2] row_mask:0xf bank_mask:0xf'%(P1+3,P1+2))
    e('v_mov_b32_dpp v%d, v%d quad_perm:[1,1,3,3] row_mask:0xf bank_mask:0xf'%(P1+6,P1+2))
    e('v_cvt_pk_bf16_f32 v%d, v%d, v%d'%(P1+4,P1+3,P1+6))
    e('v_min_u32 v%d, -2, v%d'%(P1+4,P1+4))
    e('s_mov_b64 exec, s[%d:%d]'%(sEXM,sEXM+1))
    e('buffer_store_dword v%d, v%d, s[%d:%d], s%d offen'%(P1+4,vM2W,S_WS,S_WS+3,sRB))
    e('buffer_store_dword v%d, v%d, s[%d:%d], s%d offen'%(P1+5,vM2W,S_WS,S_WS+3,sRA))
    e('s_mov_b64 exec, -1')
    fill(1)
    e('s_mov_b32 s%d, s%d'%(sT0,sRA)); e('s_mov_b32 s%d, s%d'%(sRA,sRB)); fill(1); e('s_mov_b32 s%d, s%d'%(sRB,sRC)); e('s_mov_b32 s%d, s%d'%(sRC,sT0))
    fill(1)
    e('s_xor_b32 s%d, s%d, 1'%(sTAG,sTAG))
    stamp(13)
    fill(P.get('d2',0))
    e('s_branch L_step')
    a.label('L_rec_done')
    e('s_waitcnt vmcnt(0) lgkmcnt(0)')
    if ST:
        e('s_lshl_b32 s%d, s%d, 2'%(sT0,sH)); e('s_add_u32 s%d, s%d, s%d'%(sT0,sT0,sW)); e('s_lshl_b32 s%d, s%d, 7'%(sT0,sT0)); e('s_add_u32 s%d, s%d, 0x%x'%(sT0,sT0,WS_MISC))
        e('s_mov_b64 exec, 1')
        for i in range(NST):
            e('v_mov_b32 v16, s%d'%(sACC0+i))
            e('buffer_store_dword v16, v15, s[%d:%d], s%d offen offset:%d'%(S_WS,S_WS+3,sT0,4*i))
        e('v_mov_b32 v16, s%d'%sBUD)
        e('buffer_store_dword v16, v15, s[%d:%d], s%d offen offset:%d'%(S_WS,S_WS+3,sT0,4*NST))
        e('s_mov_b64 exec, -1')
    e('v_mov_b32 v%d, %d'%(MQ,nsteps))
    e('s_mov_b64 exec, 1')
    e('buffer_store_byte v%d, v15, s[%d:%d], s%d offen sc1'%(MQ,S_DBG,S_DBG+3,sPROG))
    e('s_mov_b64 exec, -1')
    e('s_waitcnt vmcnt(0)')
    e('s_endpgm')
    a.label('L_abort')
    e('s_waitcnt vmcnt(0) lgkmcnt(0)')
    e('s_lshl_b32 s%d, s%d, 8'%(sT1,sS)); e('s_or_b32 s%d, s%d, s%d'%(sT0,sT0,sT1))
    e('v_mov_b32 v16, s%d'%sT0); e('v_mov_b32 v17, %d'%(DBG_INIT+4))
    e('s_mov_b64 exec, 1')
    e('buffer_store_dword v16, v17, s[%d:%d], 0 offen sc1'%(S_DBG,S_DBG+3))
    e('s_waitcnt vmcnt(0)')
    e('s_endpgm')

HEADER='''; Kernarg layout for this problem (128 bytes, ptrs only, base s[0:1]):
'''
def kd(name,vgpr=512,acc=256,sgpr=96):
    return '''.section .rodata,"a"
.p2align 6
.amdhsa_kernel %s
  .amdhsa_next_free_vgpr %d
  .amdhsa_next_free_sgpr %d
  .amdhsa_accum_offset %d
  .amdhsa_group_segment_fixed_size 0
  .amdhsa_kernarg_size 128
  .amdhsa_user_sgpr_count 2
  .amdhsa_user_sgpr_kernarg_segment_ptr 1
  .amdhsa_system_sgpr_workgroup_id_x 1
.end_amdhsa_kernel
.text
'''%(name,vgpr,sgpr,acc)

def srd(e,d,ptr,nbytes):
    e('s_mov_b32 s%d, s%d'%(d,ptr)); e('s_and_b32 s%d, s%d, 0xffff'%(d+1,ptr+1))
    e('s_mov_b32 s%d, 0x%x'%(d+2,nbytes)); e('s_mov_b32 s%d, 0x20000'%(d+3))

def rec_only_kernel(nsteps=64,opt=()):
    a=Asm()
    name='rec_kernel'
    a.raw(HEADER+'; @launch kernel=%s grid=(256,1,1) block=(256,1,1) lds=%d'%(name,LDS_BYTES))
    a.raw('.amdgcn_target "amdgcn-amd-amdhsa--gfx950"\n.text\n.globl %s\n.p2align 8\n.type %s,@function\n%s:'%(name,name,name))
    rec_body(a,nsteps,opt)
    a.raw(kd(name))
    return a

def rec_body(a,nsteps,opt):
    e=a.e
    e('s_load_dwordx2 s[4:5], s[0:1], 8')
    e('s_load_dwordx4 s[%d:%d], s[0:1], 16'%(sPWQ,sPWQ+3))
    e('s_load_dwordx4 s[%d:%d], s[0:1], 32'%(sPWV,sPWV+3))
    e('s_load_dwordx4 s[68:71], s[0:1], 112')
    e('s_getreg_b32 s3, hwreg(HW_REG_XCC_ID, 0, 4)')
    e('v_lshrrev_b32 v1, 6, v0')
    e('v_readfirstlane_b32 s%d, v1'%sW)
    e('s_waitcnt lgkmcnt(0)')
    srd(e,S_WS,70,WS_BYTES); srd(e,S_DBG,68,256); srd(e,S_M0,4,8192); srd(e,S_W,sPWQ,4*MB)
    e('s_cmp_lg_u32 s3, 0')
    e('s_cbranch_scc1 L_exit')
    e('v_cmp_eq_u32 vcc, 0, v0')
    e('s_and_saveexec_b64 s[%d:%d], vcc'%(sT2,sT3))
    e('s_cbranch_execz L_noticket')
    e('v_mov_b32 v1, 1'); e('v_mov_b32 v2, %d'%DBG_TICKET)
    e('buffer_atomic_add v1, v2, s[%d:%d], 0 offen sc0'%(S_DBG,S_DBG+3))
    e('s_waitcnt vmcnt(0)')
    e('v_mov_b32 v2, %d'%L_MISC)
    e('ds_write_b32 v2, v1')
    e('s_waitcnt lgkmcnt(0)')
    a.label('L_noticket')
    e('s_mov_b64 exec, -1')
    e('s_barrier')
    e('v_mov_b32 v2, %d'%L_MISC)
    e('ds_read_b32 v1, v2')
    e('s_waitcnt lgkmcnt(0)')
    e('v_readfirstlane_b32 s%d, v1'%sH)
    e('s_nop 3')
    e('s_cmp_ge_u32 s%d, 32'%sH)
    e('s_cbranch_scc1 L_exit')
    gen_rec(a,nsteps,opt)
    a.label('L_exit')
    e('s_endpgm')

if __name__=='__main__':
    import sys
    ns=int(sys.argv[2]) if len(sys.argv)>2 else 64
    a=rec_only_kernel(ns,tuple(sys.argv[3:]))
    open(sys.argv[1],'w').write(a.text())
    print('nops inserted',a.nops,'lines',len(a.out))
```

```python
MB=1<<20
WS_Q  = 0*MB
WS_K  = 16*MB
WS_V  = 32*MB
WS_KM = 48*MB
WS_VM = 56*MB
WS_P1 = 60*MB
WS_M2 = 61*MB
WS_O  = 64*MB
WS_MISC = 80*MB
WS_BYTES = 256*MB
L_MEM=0; L_QK=8192; L_O=12288; L_MISC=14336; L_KX=16384; L_WO=32768; LDS_BYTES=163840
DBG_TICKET=0
DBG_INIT=8*4
DBG_PROG=64
DBG_KV=192
WS_G   = WS_MISC + 0x100000
WS_KEY = WS_MISC + 0x110000
WS_SEL = WS_MISC + 0x120000
WS_IDX = WS_MISC + 0x130000
WS_H   = WS_MISC + 0x140000
WS_Y   = WS_MISC + 0x150000
```

```python
from asmdsl import *
from layout import *
import gen_rec as R
import gen_bulk as B
import sys
def entry(a,name):
    a.raw('.globl %s\n.p2align 8\n.type %s,@function\n%s:'%(name,name,name))
    a.hist=[]
def bulk_entry(a):
    e=a.e
    e('s_load_dwordx2 s[%d:%d], s[0:1], 0'%(B.sPX,B.sPX+1))
    e('s_load_dwordx4 s[%d:%d], s[0:1], 16'%(B.sPWQ,B.sPWQ+3))
    e('s_load_dwordx4 s[%d:%d], s[0:1], 32'%(B.sPWV,B.sPWV+3))
    e('s_load_dwordx2 s[%d:%d], s[0:1], 104'%(B.sPOUT,B.sPOUT+1))
    e('s_load_dwordx4 s[4:7], s[0:1], 112')
    e('v_lshrrev_b32 v1, 6, v0')
    e('v_readfirstlane_b32 s%d, v1'%B.sW)
    e('s_waitcnt lgkmcnt(0)')
    B.srd(e,B.S_WS,6,WS_BYTES); B.srd(e,B.S_DBG,4,256); B.srd(e,B.S_X,B.sPX,2*MB); B.srd(e,B.S_W,B.sPWQ,4*MB); B.srd(e,B.S_OUT,B.sPOUT,2*MB)
def k_gemm(a):
    entry(a,'gemm_kernel'); e=a.e
    e('s_cmp_ge_u32 s2, 192'); e('s_cbranch_scc1 L_g_exit')
    bulk_entry(a)
    e('s_lshr_b32 s%d, s2, 2'%B.sI0); e('s_and_b32 s%d, s2, 3'%B.sI1)
    B.gen_gemm(a,'g',SC='')
    a.label('L_g_exit'); e('s_endpgm')
    a.raw(R.kd('gemm_kernel'))
def k_attn(a):
    entry(a,'attn_kernel'); e=a.e
    e('s_cmp_ge_u32 s2, 512'); e('s_cbranch_scc1 L_a_exit')
    bulk_entry(a)
    B.attn_setup(a,0)
    e('s_lshl_b32 s%d, s2, 2'%B.sT0); e('s_add_u32 s%d, s%d, s%d'%(B.sT0,B.sT0,B.sW))
    e('s_lshr_b32 s%d, s%d, 5'%(B.sI0,B.sT0)); e('s_and_b32 s%d, s%d, 31'%(B.sI1,B.sT0))
    B.attn_loads_x(a,SC='')
    B.attn_item(a,SC='')
    e('s_waitcnt vmcnt(0)')
    a.label('L_a_exit'); e('s_endpgm')
    a.raw(R.kd('attn_kernel',vgpr=256,acc=256,sgpr=100))
def k_rec(a):
    entry(a,'rec_kernel')
    R.rec_body(a,64,OPT)
    a.raw(R.kd('rec_kernel'))
def simple(name,n,body,vgpr=256,acc=256):
    def f(a):
        entry(a,name); e=a.e
        e('s_cmp_ge_u32 s2, %d'%n); e('s_cbranch_scc1 L_%s_exit'%name)
        bulk_entry(a)
        body(a)
        e('s_waitcnt vmcnt(0)')
        a.label('L_%s_exit'%name); e('s_endpgm')
        a.raw(R.kd(name,vgpr=vgpr,acc=acc,sgpr=100))
    return f
def ldp(a,reg,off):
    a.e('s_load_dwordx2 s[%d:%d], s[0:1], %d'%(reg,reg+1,off))
def b_oproj(a):
    e=a.e
    e('s_and_b32 s%d, s2, 15'%B.sI1)
    B.oproj_setup(a)
    e('s_lshr_b32 s%d, s2, 4'%B.sI0)
    a.label('L_o_loop')
    B.oproj_item(a,'o',SC='')
    e('s_add_u32 s%d, s%d, 16'%(B.sI0,B.sI0)); e('s_cmp_lt_u32 s%d, 64'%B.sI0)
    a.fence(); e('s_cbranch_scc1 L_o_loop')
def b_router(a):
    e=a.e
    ldp(a,B.sE,64); ldp(a,B.sG,96); e('s_waitcnt lgkmcnt(0)')
    e('s_lshl_b32 s%d, s2, 2'%B.sI0); e('s_add_u32 s%d, s%d, s%d'%(B.sI0,B.sI0,B.sW))
    B.router(a,'r',SC='')
def b_top8(a):
    e=a.e
    e('v_mov_b32 v11, 0')
    e('s_cmp_lg_u32 s%d, 0'%B.sW); e('s_cbranch_scc1 L_top8_kernel_exit')
    B.top8(a,'t',SC='')
def b_up(a):
    e=a.e
    ldp(a,B.sE,72); ldp(a,B.sG,80); e('s_waitcnt lgkmcnt(0)')
    e('s_mov_b32 s%d, s2'%B.sI0)
    B.moe_up(a,'u',SC=''); B.moe_up2(a,'u',SC='')
def b_down(a):
    e=a.e
    ldp(a,B.sE,88); e('s_waitcnt lgkmcnt(0)')
    e('s_mov_b32 s%d, s2'%B.sI0)
    B.moe_down(a,'d',SC=''); B.moe_down2(a,'d',SC='')
OPT=tuple(sys.argv[3:])
KERNELS={'oproj':(simple('oproj_kernel',256,b_oproj,512,256),'oproj_kernel',256,98304),'router':(simple('router_kernel',32,b_router),'router_kernel',32,0),'top8':(simple('top8_kernel',1,b_top8),'top8_kernel',1,0),'up':(simple('up_kernel',28,b_up),'up_kernel',28,131072),'down':(simple('down_kernel',8,b_down),'down_kernel',8,131072),'attn':(k_attn,'attn_kernel',512,16384),'rec':(k_rec,'rec_kernel',256,LDS_BYTES),'gemm':(k_gemm,'gemm_kernel',192,131072)}
if __name__=='__main__':
    out=sys.argv[1]; ks=sys.argv[2].split(',')
    a=Asm()
    a.raw(R.HEADER+'\n'.join('; @launch kernel=%s grid=(%d,1,1) block=(256,1,1) lds=%d'%(KERNELS[k][1],KERNELS[k][2],KERNELS[k][3]) for k in ks))
    a.raw('.amdgcn_target "amdgcn-amd-amdhsa--gfx950"\n.text')
    for k in ks: KERNELS[k][0](a)
    open(out,'w').write(a.text())
    print('nops',a.nops,'lines',len(a.out))
```

```python
from asmdsl import *
from layout import *
import math, struct
def f32bits(x): return struct.unpack('<I',struct.pack('<f',x))[0]

S_WS=8; S_DBG=12; S_W=16; S_X=20
sW=25
sT0=31; sT1=45; sT2=46; sT3=47
sPWQ=56; sPWK=58; sPWV=60; sPWO=62
sPX=66
sPOUT=68
S_OUT=72
sI0=76; sI1=77
sA=78; sB=79; sC_=80; sD=81; sE=82; sF=83; sG=84; sH_=85

def srd(e,d,ptr,nbytes):
    e('s_mov_b32 s%d, s%d'%(d,ptr)); e('s_and_b32 s%d, s%d, 0xffff'%(d+1,ptr+1))
    e('s_mov_b32 s%d, 0x%x'%(d+2,nbytes)); e('s_mov_b32 s%d, 0x20000'%(d+3))

def lanes(e,l=1,n=2,g=3):
    e('v_and_b32 v%d, 63, v0'%l); e('v_and_b32 v%d, 15, v0'%n); e('v_bfe_u32 v%d, v0, 4, 2'%g)

sBUD=97; sFG=98
def spin(a,lbl,load,cmp,code,sleep=4):
    e=a.e
    a.label(lbl)
    e(load); e('s_waitcnt vmcnt(0)'); e(cmp)
    e('s_cbranch_vccz %s_ok'%lbl)
    e('s_sleep %d'%sleep)
    e('s_sub_u32 s%d, s%d, 1'%(sBUD,sBUD)); e('s_cmp_eq_u32 s%d, 0'%sBUD); e('s_cbranch_scc0 %s'%lbl)
    e('s_mov_b32 s%d, %d'%(sT0,code)); e('s_branch L_babort')
    a.label(lbl+'_ok')
def spin_dbg(a,lbl,off,target,code,va=250):
    a.e('v_mov_b32 v%d, %d'%(va,off))
    spin(a,lbl,'buffer_load_dword v%d, v%d, s[%d:%d], 0 offen sc1'%(va+1,va,S_DBG,S_DBG+3),'v_cmp_gt_u32 vcc, %d, v%d'%(target,va+1),code)
def dbg_add(a,off,va=250):
    e=a.e
    e('v_mov_b32 v%d, %d'%(va,off)); e('v_mov_b32 v%d, 1'%(va+1))
    e('s_mov_b64 exec, 1'); e('buffer_atomic_add v%d, v%d, s[%d:%d], 0 offen'%(va+1,va,S_DBG,S_DBG+3)); e('s_mov_b64 exec, -1')

def gen_gemm(a, tag, SC=' sc1', flags=False):
    e=a.e
    lg=Cnt(a,'lgkmcnt',15); vm=Cnt(a,'vmcnt',63)
    l,n,g,t0,t1=1,2,3,4,5
    lanes(e)
    sX=sA; sHP=sB
    e('s_lshr_b32 s%d, s%d, 4'%(sX,sI0)); e('s_and_b32 s%d, s%d, 15'%(sHP,sI0))
    e('s_cmp_eq_u32 s%d, 0'%sX); e('s_cselect_b32 s%d, s%d, s%d'%(sT0,sPWK,sPWV)); e('s_cselect_b32 s%d, s%d, s%d'%(sT1,sPWK+1,sPWV+1))
    e('s_cmp_eq_u32 s%d, 2'%sX); e('s_cselect_b32 s%d, s%d, s%d'%(S_W,sPWQ,sT0)); e('s_cselect_b32 s%d, s%d, s%d'%(sT1,sPWQ+1,sT1))
    e('s_and_b32 s%d, s%d, 0xffff'%(S_W+1,sT1)); e('s_mov_b32 s%d, 0x%x'%(S_W+2,4*MB)); e('s_mov_b32 s%d, 0x20000'%(S_W+3))
    dv=8
    e('v_lshrrev_b32 v%d, 5, v%d'%(t0,l))
    e('v_and_b32 v%d, 31, v%d'%(t1,l))
    e('v_lshlrev_b32 v%d, 4, v%d'%(t1,t1))
    e('v_lshlrev_b32 v%d, 5, v%d'%(dv,t0))
    e('v_xor_b32 v%d, v%d, v%d'%(t1,t1,dv))
    e('v_lshl_add_u32 v%d, v%d, 13, v%d'%(dv,t0,t1))
    for k in range(1,4): e('v_xor_b32 v%d, %d, v%d'%(dv+k,((k&1)<<6)|((k>>1)<<7),dv))
    tb=12
    e('v_lshrrev_b32 v%d, 2, v%d'%(t0,n))
    e('v_and_b32 v%d, 1, v%d'%(t1,g)); e('v_lshl_or_b32 v%d, v%d, 2, v%d'%(t1,t1,t0))
    e('v_lshl_add_u32 v%d, v%d, 3, v%d'%(t0,g,t0))
    e('v_lshlrev_b32 v%d, 9, v%d'%(t0,t0))
    e('v_and_b32 v%d, 3, v%d'%(6,n)); e('v_lshl_add_u32 v%d, v%d, 3, v%d'%(t0,6,t0))
    e('s_lshl_b32 s%d, s%d, 2'%(sT0,sW))
    for et in range(4):
        e('v_xor_b32 v%d, s%d, v%d'%(6,sT0,t1))
        if et: e('v_xor_b32 v%d, %d, v%d'%(6,et,6))
        e('v_lshl_add_u32 v%d, v%d, 5, v%d'%(tb+et,6,t0))
        e('v_add_u32 v%d, 0x10000, v%d'%(tb+4+et,tb+et))
    def dma(ck):
        area=ck&1
        e('s_lshl_b32 s%d, s%d, 18'%(sT0,sW))
        e('s_lshl_b32 s%d, s%d, 9'%(sT1,sHP)); e('s_add_u32 s%d, s%d, s%d'%(sT0,sT0,sT1))
        e('s_add_u32 s%d, s%d, 0x%x'%(sT0,sT0,ck*128*8192))
        e('s_lshl_b32 s%d, s%d, 14'%(sT1,sW)); e('s_add_u32 s%d, s%d, 0x%x'%(sT1,sT1,area*65536))
        for i in range(16):
            e('s_mov_b32 m0, s%d'%sT1)
            e('buffer_load_dwordx4 v%d, s[%d:%d], s%d offen lds'%(dv+((i&1)|(((i>>2)&1)<<1)),S_W,S_W+3,sT0)); vm.issue(('dma',ck))
            e('s_add_u32 s%d, s%d, 0x4000'%(sT0,sT0)); e('s_add_u32 s%d, s%d, 0x400'%(sT1,sT1))
    e('s_barrier')
    dma(0); dma(1)
    for ck in range(4):
        area=ck&1
        vm.wait(('dma',ck)); e('s_barrier')
        cnt=0
        for et in range(4):
            for ksl in range(4):
                for hf in range(2):
                    e('ds_read_b64_tr_b16 %s, v%d offset:%d'%(ar((et*16+ck*4+ksl)*4+2*hf,2),tb+4*area+et,(32*ksl+4*hf)*512))
                    cnt+=1
                    if cnt%12==0: e('s_waitcnt lgkmcnt(4)')
        e('s_waitcnt lgkmcnt(0)'); e('s_barrier')
        if ck<2: dma(ck+2)
    vXA=4; vL16=5
    e('v_lshlrev_b32 v%d, 10, v%d'%(vXA,n)); e('v_lshl_add_u32 v%d, v%d, 4, v%d'%(vXA,g,vXA))
    e('v_lshlrev_b32 v%d, 4, v%d'%(vL16,l))
    vXR=6
    e('v_mov_b32 v%d, v%d'%(vXR,vL16))
    sXG=sC_; sXL=sD; sSEG=sE; sOUT=sF; sCNT=sG
    e('s_lshl_b32 s%d, s%d, 19'%(sXG,sI1))
    e('s_lshr_b32 s%d, s%d, 1'%(sT0,sW)); e('s_lshl_b32 s%d, s%d, 14'%(sT0,sT0)); e('s_add_u32 s%d, s%d, s%d'%(sXG,sXG,sT0))
    e('s_and_b32 s%d, s%d, 1'%(sT0,sW)); e('s_lshl_b32 s%d, s%d, 9'%(sT0,sT0)); e('s_add_u32 s%d, s%d, s%d'%(sXG,sXG,sT0))
    e('s_lshl_b32 s%d, s%d, 13'%(sXL,sW))
    e('s_cmp_eq_u32 s%d, 0'%sX); e('s_cselect_b32 s%d, 0x%x, 0x%x'%(sT0,WS_K,WS_V) if False else 's_cselect_b32 s%d, s%d, s%d'%(sT0,sT0,sT0))
    e('s_mov_b32 s%d, 0x%x'%(sT0,WS_K)); e('s_mov_b32 s%d, 0x%x'%(sT1,WS_V))
    e('s_cmp_eq_u32 s%d, 0'%sX); e('s_cselect_b32 s%d, s%d, s%d'%(sOUT,sT0,sT1))
    e('s_cmp_eq_u32 s%d, 2'%sX); e('s_cselect_b32 s%d, %d, s%d'%(sOUT,WS_Q,sOUT))
    e('s_lshl_b32 s%d, s%d, 22'%(sT0,sI1)); e('s_add_u32 s%d, s%d, s%d'%(sOUT,sOUT,sT0))
    e('s_lshl_b32 s%d, s%d, 14'%(sT0,sHP)); e('s_add_u32 s%d, s%d, s%d'%(sOUT,sOUT,sT0))
    e('s_lshr_b32 s%d, s%d, 1'%(sT0,sW)); e('s_lshl_b32 s%d, s%d, 13'%(sT0,sT0)); e('s_add_u32 s%d, s%d, s%d'%(sOUT,sOUT,sT0))
    e('s_and_b32 s%d, s%d, 1'%(sT0,sW))
    e('s_cmp_eq_u32 s%d, 1'%sX); e('s_cselect_b32 s%d, 12, 11'%sT1); e('s_lshl_b32 s%d, s%d, s%d'%(sT0,sT0,sT1)); e('s_add_u32 s%d, s%d, s%d'%(sOUT,sOUT,sT0))
    def xdma():
        e('s_mov_b32 s%d, s%d'%(sT0,sXG)); e('s_mov_b32 s%d, s%d'%(sT1,sXL))
        for i in range(8):
            e('s_mov_b32 m0, s%d'%sT1)
            e('buffer_load_dwordx4 v%d, s[%d:%d], s%d offen lds'%(vXA,S_X,S_X+3,sT0))
            if i<7: e('s_add_u32 s%d, s%d, 64'%(sT0,sT0)); e('s_add_u32 s%d, s%d, 0x400'%(sT1,sT1))
        e('s_add_u32 s%d, s%d, 0x8000'%(sXG,sXG)); e('s_xor_b32 s%d, s%d, 0x8000'%(sXL,sXL))
    xdma()
    e('s_mov_b32 s%d, 0'%sCNT)
    if flags:
        e('s_lshl_b32 s%d, s%d, 8'%(sFG,sHP)); e('s_lshr_b32 s%d, s%d, 1'%(sT0,sW)); e('s_lshl_b32 s%d, s%d, 7'%(sT0,sT0)); e('s_add_u32 s%d, s%d, s%d'%(sFG,sFG,sT0))
        e('s_lshl_b32 s%d, s%d, 5'%(sT0,sX)); e('s_add_u32 s%d, s%d, s%d'%(sFG,sFG,sT0))
        e('s_and_b32 s%d, s%d, 1'%(sT0,sW)); e('s_lshl_b32 s%d, s%d, 4'%(sT0,sT0)); e('s_add_u32 s%d, s%d, s%d'%(sFG,sFG,sT0))
        e('s_lshl_b32 s%d, s%d, 2'%(sT0,sI1)); e('s_add_u32 s%d, s%d, s%d'%(sFG,sFG,sT0)); e('s_add_u32 s%d, s%d, 0x%x'%(sFG,sFG,FL_G))
        e('v_mov_b32 v7, 0')
        spin_dbg(a,'L_%s_frdy'%tag,DBG_FRDY,1,10)
    e('s_waitcnt vmcnt(0)')
    e('s_cmp_eq_u32 s%d, 1'%sX)
    e('s_cbranch_scc1 L_%s_V'%tag)
    XF=16; AC=32; OB=64
    for variant in ('KQ','V'):
        if variant=='V': a.label('L_%s_V'%tag)
        a.label('L_%s_loop%s'%(tag,variant))
        e('s_barrier')
        e('s_cmp_lt_u32 s%d, 15'%sCNT)
        e('s_cbranch_scc0 L_%s_nodma%s'%(tag,variant))
        xdma()
        a.label('L_%s_nodma%s'%(tag,variant))
        lg.reset()
        fr=[(tt,ks) for tt in range(2) for ks in range(16)]
        def rd(i):
            e('ds_read_b128 %s, v%d offset:%d'%(vr(XF+4*(i&3),4),vXR,i*1024)); lg.issue(i)
        for i in range(3): rd(i)
        for i,(tt,ks) in enumerate(fr):
            if i+3<32: rd(i+3)
            lg.wait(i)
            for et in range(4):
                acc=vr(AC+(tt*4+et)*4,4); wf=ar((et*16+ks)*4,4); xf=vr(XF+4*(i&3),4)
                A,B=(wf,xf) if variant=='KQ' else (xf,wf)
                e('v_mfma_f32_16x16x32_bf16 %s, %s, %s, %s'%(acc,A,B,'0' if ks==0 else acc))
        k=0
        if variant=='KQ':
            for tt in range(2):
                for c2 in range(2):
                    o=OB+4*k
                    for j in range(2):
                        b=AC+(tt*4+2*c2+j)*4
                        e('v_cvt_pk_bf16_f32 v%d, v%d, v%d'%(o+2*j,b,b+1)); e('v_cvt_pk_bf16_f32 v%d, v%d, v%d'%(o+2*j+1,b+2,b+3))
                    if tt==1 and c2==0: e('s_add_u32 s%d, s%d, 4096'%(sT0,sOUT))
                    e('buffer_store_dwordx4 %s, v%d, s[%d:%d], s%d offen offset:%d%s'%(vr(o,4),vL16,S_WS,S_WS+3,sOUT if tt==0 else sT0,c2*1024,SC))
                    k+=1
        else:
            for et in range(4):
                o=OB+4*k
                for tt in range(2):
                    b=AC+(tt*4+et)*4
                    e('v_cvt_pk_bf16_f32 v%d, v%d, v%d'%(o+2*tt,b,b+1)); e('v_cvt_pk_bf16_f32 v%d, v%d, v%d'%(o+2*tt+1,b+2,b+3))
                e('buffer_store_dwordx4 %s, v%d, s[%d:%d], s%d offen offset:%d%s'%(vr(o,4),vL16,S_WS,S_WS+3,sOUT,et*1024,SC))
                k+=1
        e('s_add_u32 s%d, s%d, 0x40000'%(sOUT,sOUT))
        e('v_xor_b32 v%d, 0x8000, v%d'%(vXR,vXR))
        e('s_add_u32 s%d, s%d, 1'%(sCNT,sCNT))
        e('s_waitcnt vmcnt(4)')
        if flags:
            e('s_sub_u32 s%d, s%d, 1'%(sT0,sCNT)); e('v_mov_b32 v8, s%d'%sT0)
            e('s_mov_b64 exec, 1'); e('buffer_store_dword v8, v7, s[%d:%d], s%d offen sc1'%(S_WS,S_WS+3,sFG)); e('s_mov_b64 exec, -1')
        e('s_cmp_lt_u32 s%d, 16'%sCNT)
        e('s_cbranch_scc1 L_%s_loop%s'%(tag,variant))
        if variant=='KQ': e('s_branch L_%s_done'%tag)
    a.label('L_%s_done'%tag)
    e('s_waitcnt vmcnt(0)')
    if flags:
        e('v_mov_b32 v8, 16')
        e('s_mov_b64 exec, 1'); e('buffer_store_dword v8, v7, s[%d:%d], s%d offen sc1'%(S_WS,S_WS+3,sFG)); e('s_mov_b64 exec, -1')

sMK=86
sSC=94
sL2E=96
def attn_setup(a, ldsbase):
    e=a.e
    l,n,g,t0,t1=1,2,3,8,9
    lanes(e)
    e('v_lshlrev_b32 v4, 4, v%d'%l)
    e('s_lshl_b32 s%d, s%d, 12'%(sT0,sW)); e('s_add_u32 s%d, s%d, %d'%(sT0,sT0,ldsbase))
    e('v_lshrrev_b32 v%d, 2, v%d'%(t0,n)); e('v_xor_b32 v%d, v%d, v%d'%(t0,t0,g)); e('v_lshlrev_b32 v%d, 3, v%d'%(t0,t0))
    e('v_lshl_add_u32 v%d, v%d, 5, v%d'%(t0,n,t0)); e('v_add_u32 v5, s%d, v%d'%(sT0,t0))
    e('v_lshrrev_b32 v%d, 2, v%d'%(t0,n)); e('v_lshl_add_u32 v%d, v%d, 2, v%d'%(t0,g,t0)); e('v_lshlrev_b32 v%d, 5, v%d'%(t0,t0))
    e('v_and_b32 v%d, 3, v%d'%(t1,n)); e('v_xor_b32 v%d, v%d, v%d'%(t1,t1,g)); e('v_lshl_add_u32 v%d, v%d, 3, v%d'%(t0,t1,t0))
    e('v_add_u32 v6, s%d, v%d'%(sT0,t0))
    for r in range(4):
        e('v_lshlrev_b32 v%d, 2, v%d'%(t0,g)); e('v_add_u32 v%d, %d, v%d'%(t0,r,t0))
        e('v_cmp_gt_u32 s[%d:%d], v%d, v%d'%(sMK+2*r,sMK+2*r+1,t0,n))
    e('s_mov_b32 s%d, 0x%08x'%(sSC,f32bits(128**-0.5))); e('s_mov_b32 s%d, 0x%08x'%(sSC+1,f32bits(128**-0.5)))
    e('s_mov_b32 s%d, 0x%08x'%(sL2E,f32bits(math.log2(math.e))))
    e('v_mov_b32 v7, 0x%08x'%f32bits(-1e9))
    for et in range(8): e('v_mov_b32 v%d, 0'%(177+2*et))
    e('v_mov_b32 v173, 0'); e('v_mov_b32 v175, 0'); e('v_mov_b32 v166, 0'); e('v_mov_b32 v167, 0')

def attn_loads_x(a, SC=' sc1'):
    e=a.e
    Q,K,V=16,48,80
    e('s_lshl_b32 s%d, s%d, 18'%(sA,sI0)); e('s_lshl_b32 s%d, s%d, 13'%(sT0,sI1)); e('s_add_u32 s%d, s%d, s%d'%(sA,sA,sT0))
    for base,reg in ((WS_Q,Q),(WS_K,K),(WS_V,V)):
        e('s_add_u32 s%d, s%d, 0x%x'%(sT0,sA,base)); e('s_add_u32 s%d, s%d, 4096'%(sT1,sT0))
        for f in range(8):
            e('buffer_load_dwordx4 %s, v4, s[%d:%d], s%d offen offset:%d%s'%(vr(reg+4*f,4),S_WS,S_WS+3,sT0 if f<4 else sT1,(f&3)*1024,SC))

def attn_item(a, SC=' sc1'):
    e=a.e
    lg=Cnt(a,'lgkmcnt',15)
    Q,K,V,KV,F,S,PX,PM,VMZ,O,OB,T=16,48,80,112,128,144,164,172,176,192,200,208
    e('s_lshl_b32 s%d, s%d, 17'%(sT0,sI0)); e('s_lshl_b32 s%d, s%d, 12'%(sT1,sI1)); e('s_add_u32 s%d, s%d, s%d'%(sT0,sT0,sT1)); e('s_add_u32 s%d, s%d, 0x%x'%(sT0,sT0,WS_KM))
    for w in range(4):
        e('buffer_load_dwordx4 %s, v4, s[%d:%d], s%d offen offset:%d%s'%(vr(KV+4*w,4),S_WS,S_WS+3,sT0,w*1024,SC))
    e('s_lshl_b32 s%d, s%d, 18'%(sB,sI0)); e('s_lshl_b32 s%d, s%d, 12'%(sT1,sI1)); e('s_add_u32 s%d, s%d, s%d'%(sB,sB,sT1)); e('s_add_u32 s%d, s%d, 0x%x'%(sB,sB,WS_O))
    e('s_add_u32 s%d, s%d, 0x20000'%(sC_,sB))
    e('s_waitcnt vmcnt(0)')
    for w in range(4):
        for t in range(2):
            e('ds_write_b32 v5, v%d offset:%d'%(KV+4*w+t,(32*w+16*t)*32))
            e('v_mov_b32 v%d, v%d'%(VMZ+2*(2*w+t),KV+4*w+2+t))
    Sm=[S,S+8]; Sx={(0,0):S+4,(0,1):S+12,(1,1):S+16}
    for (kt,qt),acc in Sx.items():
        for c in range(4):
            e('v_mfma_f32_16x16x32_bf16 %s, %s, %s, %s'%(vr(acc,4),vr(K+(kt*4+c)*4,4),vr(Q+(qt*4+c)*4,4),'0' if c==0 else vr(acc,4)))
        if (kt,qt)==(0,0):
            e('s_waitcnt lgkmcnt(0)')
            for c in range(4):
                e('ds_read_b64_tr_b16 %s, v6 offset:%d'%(vr(F+4*c,2),1024*c))
                e('ds_read_b64_tr_b16 %s, v6 offset:%d'%(vr(F+4*c+2,2),1024*c+512))
    e('s_waitcnt lgkmcnt(0)')
    for qt in range(2):
        for c in range(4):
            e('v_mfma_f32_16x16x32_bf16 %s, %s, %s, %s'%(vr(Sm[qt],4),vr(F+4*c,4),vr(Q+(qt*4+c)*4,4),'0' if c==0 else vr(Sm[qt],4)))
    for qt in range(2):
        pairs=[Sx[(kt,qt)]+j for kt in range(qt+1) for j in (0,2)]+[Sm[qt]]
        for p in pairs:
            e('v_cvt_pk_bf16_f32 v%d, v%d, v%d'%(T,p,p+1))
            e('v_lshlrev_b32 v%d, 16, v%d'%(p,T)); e('v_and_b32 v%d, 0xffff0000, v%d'%(p+1,T))
            e('v_pk_mul_f32 %s, %s, s[%d:%d]'%(vr(p,2),vr(p,2),sSC,sSC+1))
            e('v_cvt_pk_bf16_f32 v%d, v%d, v%d'%(T,p,p+1))
            e('v_lshlrev_b32 v%d, 16, v%d'%(p,T)); e('v_and_b32 v%d, 0xffff0000, v%d'%(p+1,T))
        d=Sx[(qt,qt)]
        for r in range(4): e('v_cndmask_b32 v%d, v%d, v7, s[%d:%d]'%(d+r,d+r,sMK+2*r,sMK+2*r+1))
        vals=[p+j for p in pairs for j in range(2)]
        m,m2=T+1,T+2
        e('v_max_f32 v%d, v%d, v%d'%(m,vals[0],vals[1]))
        for i in range(2,len(vals),2): e('v_max3_f32 v%d, v%d, v%d, v%d'%(m,m,vals[i],vals[i+1]))
        e('v_mov_b32 v%d, v%d'%(m2,m)); e('v_permlane32_swap_b32 v%d, v%d'%(m,m2)); e('v_max_f32 v%d, v%d, v%d'%(m,m,m2))
        e('v_mov_b32 v%d, v%d'%(m2,m)); e('v_permlane16_swap_b32 v%d, v%d'%(m,m2)); e('v_max_f32 v%d, v%d, v%d'%(m,m,m2))
        for v in vals:
            e('v_sub_f32 v%d, v%d, v%d'%(v,v,m)); e('v_mul_f32 v%d, s%d, v%d'%(v,sL2E,v))
        for v in vals: e('v_exp_f32 v%d, v%d'%(v,v))
        sm=T+4
        e('v_add_f32 v%d, v%d, v%d'%(sm,vals[0],vals[1]))
        for v in vals[2:]: e('v_add_f32 v%d, v%d, v%d'%(sm,sm,v))
        e('v_mov_b32 v%d, v%d'%(m2,sm)); e('v_permlane32_swap_b32 v%d, v%d'%(sm,m2)); e('v_add_f32 v%d, v%d, v%d'%(sm,sm,m2))
        e('v_mov_b32 v%d, v%d'%(m2,sm)); e('v_permlane16_swap_b32 v%d, v%d'%(sm,m2)); e('v_add_f32 v%d, v%d, v%d'%(sm,sm,m2))
        e('v_rcp_f32 v%d, v%d'%(sm,sm))
        for p in pairs: e('v_pk_mul_f32 %s, %s, %s op_sel_hi:[1,0]'%(vr(p,2),vr(p,2),vr(sm,2)))
        for i,p in enumerate(pairs[:-1]): e('v_cvt_pk_bf16_f32 v%d, v%d, v%d'%(PX+4*qt+i,p,p+1))
        e('v_cvt_pk_bf16_f32 v%d, v%d, v%d'%(PM+2*qt,Sm[qt],Sm[qt]+1))
    k=0
    for qt in range(2):
        for c in range(4):
            ob=O+8*(k&1) if False else O
            for j in range(2):
                et=2*c+j; o=(O,T+8)[k&1]+4*j
                e('v_mfma_f32_16x16x32_bf16 %s, %s, %s, 0'%(vr(o,4),vr(V+4*et,4),vr(PX+4*qt,4)))
            for j in range(2):
                et=2*c+j; o=(O,T+8)[k&1]+4*j
                e('v_mfma_f32_16x16x16_bf16 %s, %s, %s, %s'%(vr(o,4),vr(VMZ+2*et,2),vr(PM+2*qt,2),vr(o,4)))
            if k>0:
                pq,pc=prev; o=(O,T+8)[(k-1)&1]; ob=OB+4*((k-1)&1)
                for j in range(4): e('v_cvt_pk_bf16_f32 v%d, v%d, v%d'%(ob+j,o+2*j,o+2*j+1))
                e('buffer_store_dwordx4 %s, v4, s[%d:%d], s%d offen offset:%d%s'%(vr(ob,4),S_WS,S_WS+3,(sB,sC_)[pq],pc*1024,SC))
            prev=(qt,c); k+=1
    pq,pc=prev; o=(O,T+8)[(k-1)&1]; ob=OB+4*((k-1)&1)
    for j in range(4): e('v_cvt_pk_bf16_f32 v%d, v%d, v%d'%(ob+j,o+2*j,o+2*j+1))
    e('buffer_store_dwordx4 %s, v4, s[%d:%d], s%d offen offset:%d%s'%(vr(ob,4),S_WS,S_WS+3,(sB,sC_)[pq],pc*1024,SC))

def rnd2(e,p,t):
    e('v_cvt_pk_bf16_f32 v%d, v%d, v%d'%(t,p,p+1))
    e('v_lshlrev_b32 v%d, 16, v%d'%(p,t)); e('v_and_b32 v%d, 0xffff0000, v%d'%(p+1,t))

L_RED=65536
def oproj_setup(a):
    e=a.e
    vm=Cnt(a,'vmcnt',63)
    l,n,g,t0,t1=1,2,3,10,11
    lanes(e)
    e('v_lshlrev_b32 v4, 4, v%d'%l)
    srd(e,S_W,sPWO,4*MB)
    e('v_lshrrev_b32 v%d, 2, v%d'%(t0,l)); e('v_lshlrev_b32 v%d, 10, v%d'%(t0,t0)); e('v_and_b32 v%d, 3, v%d'%(t1,l)); e('v_lshl_add_u32 v5, v%d, 4, v%d'%(t1,t0))
    e('v_lshrrev_b32 v%d, 2, v%d'%(t0,n)); e('v_lshl_add_u32 v%d, v%d, 2, v%d'%(t0,g,t0)); e('v_lshlrev_b32 v%d, 6, v%d'%(t0,t0))
    e('v_and_b32 v%d, 3, v%d'%(t1,n)); e('v_lshl_add_u32 v%d, v%d, 4, v%d'%(t0,t1,t0))
    e('s_lshl_b32 s%d, s%d, 14'%(sA,sW)); e('v_add_u32 v6, s%d, v%d'%(sA,t0))
    e('s_lshl_b32 s%d, s%d, 20'%(sB,sW)); e('s_lshl_b32 s%d, s%d, 6'%(sT0,sI1)); e('s_add_u32 s%d, s%d, s%d'%(sB,sB,sT0))
    e('s_barrier')
    def dma(hh):
        e('s_add_u32 s%d, s%d, %d'%(sT1,sA,(hh&1)*8192))
        for i in range(8):
            e('s_mov_b32 m0, s%d'%sT1)
            e('buffer_load_dwordx4 v5, s[%d:%d], s%d offen lds'%(S_W,S_W+3,sB)); vm.issue(hh)
            e('s_add_u32 s%d, s%d, 0x4000'%(sB,sB)); e('s_add_u32 s%d, s%d, 0x400'%(sT1,sT1))
    dma(0); dma(1)
    for hh in range(8):
        vm.wait(hh)
        cnt=0
        for c in range(4):
            for dt in range(2):
                for hf in range(2):
                    e('ds_read_b64_tr_b16 %s, v6 offset:%d'%(ar(((hh*4+c)*2+dt)*4+2*hf,2),(hh&1)*8192+(32*c+16*hf)*64+8*dt))
                    cnt+=1
                    if cnt==12: e('s_waitcnt lgkmcnt(4)')
        e('s_waitcnt lgkmcnt(0)')
        if hh<6: dma(hh+2)
    e('s_and_b32 s%d, s%d, 1'%(sT0,sW)); e('s_lshl_b32 s%d, s%d, 11'%(sT0,sT0)); e('s_lshr_b32 s%d, s%d, 1'%(sT1,sW)); e('s_lshl_b32 s%d, s%d, 10'%(sT1,sT1))
    e('s_add_u32 s%d, s%d, s%d'%(sT0,sT0,sT1)); e('s_add_u32 s%d, s%d, %d'%(sT0,sT0,L_RED)); e('v_add_u32 v7, s%d, v4'%sT0)
    e('s_lshl_b32 s%d, s%d, 12'%(sT0,sW)); e('s_add_u32 s%d, s%d, %d'%(sT0,sT0,L_RED)); e('v_add_u32 v8, s%d, v4'%sT0)
    e('s_and_b32 s%d, s%d, 1'%(sT0,sW)); e('s_lshl_b32 s%d, s%d, 4'%(sT0,sT0)); e('v_add_u32 v%d, s%d, v%d'%(t0,sT0,n))
    e('v_lshlrev_b32 v12, 2, v%d'%t0)
    e('s_lshl_b32 s%d, s%d, 5'%(sT0,sI1)); e('s_lshr_b32 s%d, s%d, 1'%(sT1,sW)); e('s_lshl_b32 s%d, s%d, 2'%(sT1,sT1)); e('s_add_u32 s%d, s%d, s%d'%(sT0,sT0,sT1))
    e('v_lshlrev_b32 v%d, 3, v%d'%(t1,g)); e('v_add_u32 v%d, s%d, v%d'%(t1,sT0,t1))
    e('v_lshlrev_b32 v13, 2, v%d'%t1)
    e('v_lshlrev_b32 v%d, 10, v%d'%(t0,t0)); e('v_lshl_add_u32 v9, v%d, 1, v%d'%(t1,t0))

def oproj_item(a, tag, SC=' sc1'):
    e=a.e
    OF=32; AC=16; T=192
    NB=32
    e('s_lshl_b32 s%d, s%d, 18'%(sA,sI0)); e('s_lshl_b32 s%d, s%d, 15'%(sT0,sW)); e('s_add_u32 s%d, s%d, s%d'%(sA,sA,sT0)); e('s_add_u32 s%d, s%d, 0x%x'%(sA,sA,WS_O))
    e('s_lshl_b32 s%d, s%d, 7'%(sB,sI0))
    e('s_add_u32 s%d, s%d, 0x%x'%(sT0,sB,WS_G)); e('buffer_load_dword v%d, v12, s[%d:%d], s%d offen%s'%(T,S_WS,S_WS+3,sT0,SC))
    e('s_add_u32 s%d, s%d, 0x%x'%(sT0,sB,WS_SEL)); e('buffer_load_dword v%d, v12, s[%d:%d], s%d offen%s'%(T+1,S_WS,S_WS+3,sT0,SC))
    e('s_lshl_b32 s%d, s%d, 15'%(sC_,sI0))
    e('buffer_load_dwordx2 %s, v9, s[%d:%d], s%d offen'%(vr(T+2,2),S_X,S_X+3,sC_))
    fr=[(qt,hh,c) for qt in range(2) for hh in range(8) for c in range(4)]
    def ld(i):
        qt,hh,c=fr[i]
        if c==0: e('s_add_u32 s%d, s%d, 0x%x'%(sD,sA,qt*131072+hh*4096))
        e('buffer_load_dwordx4 %s, v4, s[%d:%d], s%d offen offset:%d%s'%(vr(OF+4*(i%NB),4),S_WS,S_WS+3,sD,c*1024,SC))
    for i in range(NB): ld(i)
    for i,(qt,hh,c) in enumerate(fr):
        e('s_waitcnt vmcnt(%d)'%min(NB-1,63-i))
        for dt in range(2):
            acc=vr(AC+(qt*2+dt)*4,4)
            e('v_mfma_f32_16x16x32_bf16 %s, %s, %s, %s'%(acc,ar(((hh*4+c)*2+dt)*4,4),vr(OF+4*(i%NB),4),'0' if (hh==0 and c==0) else acc))
        if i+NB<64: ld(i+NB)
    e('v_cmp_ne_u32 vcc, 0, v%d'%(T+1))
    e('v_lshl_add_u32 v%d, v%d, 11, v13'%(T+4,T+1))
    for r in range(4): e('v_mov_b32 v%d, 0'%(T+8+r))
    e('s_and_saveexec_b64 s[%d:%d], vcc'%(sT2,sT3))
    e('s_cbranch_execz L_%s_noy'%tag)
    e('s_mov_b32 s%d, 0x%x'%(sT0,WS_Y-2048))
    e('buffer_load_dwordx4 %s, v%d, s[%d:%d], s%d offen%s'%(vr(T+8,4),T+4,S_WS,S_WS+3,sT0,SC))
    a.label('L_%s_noy'%tag)
    e('s_mov_b64 exec, -1')
    for k in range(4): e('ds_write_b128 v8, %s offset:%d'%(vr(AC+4*k,4),k*1024))
    e('s_waitcnt lgkmcnt(0)'); e('s_barrier')
    for w in range(4): e('ds_read_b128 %s, v7 offset:%d'%(vr(OF+4*w,4),w*4096))
    e('v_xor_b32 v7, 0x4000, v7'); e('v_xor_b32 v8, 0x4000, v8')
    X=T+12
    e('s_waitcnt vmcnt(0)')
    e('v_lshlrev_b32 v%d, 16, v%d'%(X,T+2)); e('v_and_b32 v%d, 0xffff0000, v%d'%(X+1,T+2))
    e('v_lshlrev_b32 v%d, 16, v%d'%(X+2,T+3)); e('v_and_b32 v%d, 0xffff0000, v%d'%(X+3,T+3))
    e('v_pk_add_f32 %s, %s, %s'%(vr(X,2),vr(X,2),vr(T+8,2))); e('v_pk_add_f32 %s, %s, %s'%(vr(X+2,2),vr(X+2,2),vr(T+10,2)))
    rnd2(e,X,T+5); rnd2(e,X+2,T+5)
    e('v_sub_f32 v%d, 1.0, v%d'%(T+6,T)); e('v_cvt_pk_bf16_f32 v%d, v%d, v%d'%(T+6,T+6,T+6)); e('v_lshlrev_b32 v%d, 16, v%d'%(T+6,T+6))
    e('v_pk_mul_f32 %s, %s, %s op_sel_hi:[1,0]'%(vr(X,2),vr(X,2),vr(T+6,2))); e('v_pk_mul_f32 %s, %s, %s op_sel_hi:[1,0]'%(vr(X+2,2),vr(X+2,2),vr(T+6,2)))
    rnd2(e,X,T+5); rnd2(e,X+2,T+5)
    e('s_waitcnt lgkmcnt(0)')
    A_=OF
    for j in (0,2):
        e('v_pk_add_f32 %s, %s, %s'%(vr(A_+j,2),vr(A_+j,2),vr(A_+4+j,2)))
        e('v_pk_add_f32 %s, %s, %s'%(vr(A_+8+j,2),vr(A_+8+j,2),vr(A_+12+j,2)))
    for j in (0,2): e('v_pk_add_f32 %s, %s, %s'%(vr(A_+j,2),vr(A_+j,2),vr(A_+8+j,2)))
    rnd2(e,A_,T+5); rnd2(e,A_+2,T+5)
    e('v_pk_mul_f32 %s, %s, %s op_sel_hi:[1,0]'%(vr(A_,2),vr(A_,2),vr(T,2))); e('v_pk_mul_f32 %s, %s, %s op_sel_hi:[1,0]'%(vr(A_+2,2),vr(A_+2,2),vr(T,2)))
    rnd2(e,A_,T+5); rnd2(e,A_+2,T+5)
    e('v_pk_add_f32 %s, %s, %s'%(vr(A_,2),vr(A_,2),vr(X,2))); e('v_pk_add_f32 %s, %s, %s'%(vr(A_+2,2),vr(A_+2,2),vr(X+2,2)))
    e('v_cvt_pk_bf16_f32 v%d, v%d, v%d'%(T+16,A_,A_+1)); e('v_cvt_pk_bf16_f32 v%d, v%d, v%d'%(T+17,A_+2,A_+3))
    e('buffer_store_dwordx2 %s, v9, s[%d:%d], s%d offen'%(vr(T+16,2),S_OUT,S_OUT+3,sC_))

def wave_allsum(e,v,t):
    for k in (8,4,2,1):
        e('v_add_f32_dpp v%d, v%d, v%d row_ror:%d row_mask:0xf bank_mask:0xf'%(v,v,v,k))
    e('v_mov_b32 v%d, v%d'%(t,v)); e('v_permlane16_swap_b32 v%d, v%d'%(v,t)); e('v_add_f32 v%d, v%d, v%d'%(v,v,t))
    e('v_mov_b32 v%d, v%d'%(t,v)); e('v_permlane32_swap_b32 v%d, v%d'%(v,t)); e('v_add_f32 v%d, v%d, v%d'%(v,v,t))
def sigmoid(e,v,sl2e):
    e('v_mul_f32 v%d, s%d, v%d'%(v,sl2e,v)); e('v_exp_f32 v%d, v%d'%(v,v)); e('v_add_f32 v%d, 1.0, v%d'%(v,v)); e('v_rcp_f32 v%d, v%d'%(v,v))
def rnd1(e,v):
    e('v_cvt_pk_bf16_f32 v%d, v%d, v%d'%(v,v,v)); e('v_lshlrev_b32 v%d, 16, v%d'%(v,v))
def unpack8(e,dst,src):
    for i in range(4):
        e('v_lshlrev_b32 v%d, 16, v%d'%(dst+2*i,src+i)); e('v_and_b32 v%d, 0xffff0000, v%d'%(dst+2*i+1,src+i))

def router(a, tag, SC=' sc1'):
    e=a.e
    lanes(e)
    e('v_lshlrev_b32 v4, 4, v1')
    WR,GW,XR,XU,P,RES=16,24,32,96,104,112
    srd(e,S_W,sE,1024)
    e('buffer_load_dwordx4 v[8:11], v4, s[%d:%d], 0 offen'%(S_W,S_W+3))
    e('s_waitcnt vmcnt(0)')
    srd(e,S_W,sG,1024)
    e('buffer_load_dwordx4 v[12:15], v4, s[%d:%d], 0 offen'%(S_W,S_W+3))
    e('s_lshl_b32 s%d, s%d, 14'%(sA,sI0))
    for i in range(16):
        if i%4==0: e('s_add_u32 s%d, s%d, %d'%(sT0,sA,i*1024))
        e('buffer_load_dwordx4 %s, v4, s[%d:%d], s%d offen offset:%d'%(vr(XR+4*i,4),S_X,S_X+3,sT0,(i%4)*1024))
    e('s_mov_b32 s%d, 0x%08x'%(sB,f32bits(-math.log2(math.e))))
    unpack8(e,WR,8)
    e('s_waitcnt vmcnt(16)')
    unpack8(e,GW,12)
    e('v_mov_b32 v%d, 0'%RES); e('v_mov_b32 v%d, 0'%(RES+1))
    for i in range(16):
        e('s_waitcnt vmcnt(%d)'%(15-i))
        unpack8(e,XU,XR+4*i)
        e('v_pk_mul_f32 %s, %s, %s'%(vr(P,2),vr(XU,2),vr(WR,2)))
        for j in (2,4,6): e('v_pk_fma_f32 %s, %s, %s, %s'%(vr(P,2),vr(XU+j,2),vr(WR+j,2),vr(P,2)))
        e('v_add_f32 v%d, v%d, v%d'%(P,P,P+1))
        for j in (0,2,4,6):
            e('v_pk_mul_f32 %s, %s, %s'%(vr(XU+j,2),vr(XU+j,2),vr(GW+j,2))); rnd2(e,XU+j,P+3)
        e('v_pk_add_f32 %s, %s, %s'%(vr(XU,2),vr(XU,2),vr(XU+2,2))); e('v_pk_add_f32 %s, %s, %s'%(vr(XU+4,2),vr(XU+4,2),vr(XU+6,2)))
        e('v_pk_add_f32 %s, %s, %s'%(vr(XU,2),vr(XU,2),vr(XU+4,2))); e('v_add_f32 v%d, v%d, v%d'%(P+1,XU,XU+1))
        wave_allsum(e,P,P+3); wave_allsum(e,P+1,P+3)
        e('v_cmp_eq_u32 vcc, %d, v1'%i)
        e('v_cndmask_b32 v%d, v%d, v%d, vcc'%(RES,RES,P)); e('v_cndmask_b32 v%d, v%d, v%d, vcc'%(RES+1,RES+1,P+1))
    rnd1(e,RES+1); sigmoid(e,RES+1,sB); rnd1(e,RES+1)
    e('v_cvt_pk_bf16_f32 v%d, v%d, v%d'%(RES,RES,RES)); e('v_and_b32 v%d, 0xffff0000, v%d'%(RES,RES))
    e('v_ashrrev_i32 v%d, 31, v%d'%(P,RES)); e('v_or_b32 v%d, 0x80000000, v%d'%(P,P)); e('v_xor_b32 v%d, v%d, v%d'%(RES,RES,P))
    e('v_and_b32 v%d, 0xffff0000, v%d'%(RES,RES))
    e('s_lshl_b32 s%d, s%d, 4'%(sT0,sI0)); e('s_sub_u32 s%d, 2047, s%d'%(sT0,sT0)); e('v_sub_u32 v%d, s%d, v1'%(P,sT0)); e('v_or_b32 v%d, v%d, v%d'%(RES,RES,P))
    e('v_lshlrev_b32 v5, 2, v1'); e('v_mov_b32 v%d, 0'%P)
    e('s_lshl_b32 s%d, s%d, 6'%(sA,sI0))
    e('s_mov_b64 exec, 0xffff')
    e('s_add_u32 s%d, s%d, 0x%x'%(sT0,sA,WS_G)); e('buffer_store_dword v%d, v5, s[%d:%d], s%d offen%s'%(RES+1,S_WS,S_WS+3,sT0,SC))
    e('s_add_u32 s%d, s%d, 0x%x'%(sT0,sA,WS_KEY)); e('buffer_store_dword v%d, v5, s[%d:%d], s%d offen%s'%(RES,S_WS,S_WS+3,sT0,SC))
    e('s_add_u32 s%d, s%d, 0x%x'%(sT0,sA,WS_SEL)); e('buffer_store_dword v%d, v5, s[%d:%d], s%d offen%s'%(P,S_WS,S_WS+3,sT0,SC))
    e('s_mov_b64 exec, -1')
    e('s_waitcnt vmcnt(0)')

def top8(a, tag, SC=' sc1'):
    e=a.e
    lanes(e)
    e('v_lshlrev_b32 v4, 4, v1')
    K=16; M=8; T=9; RES=10
    for i in range(8):
        if i%4==0: e('s_mov_b32 s%d, 0x%x'%(sT0,WS_KEY+i*1024))
        e('buffer_load_dwordx4 %s, v4, s[%d:%d], s%d offen offset:%d%s'%(vr(K+4*i,4),S_WS,S_WS+3,sT0,(i%4)*1024,SC))
    e('v_mov_b32 v%d, 0'%RES)
    e('s_mov_b32 s%d, 0'%sA)
    e('s_waitcnt vmcnt(0)')
    a.label('L_%s_loop'%tag)
    e('v_max_u32 v%d, v%d, v%d'%(M,K,K+1))
    for i in range(2,32,2): e('v_max3_u32 v%d, v%d, v%d, v%d'%(M,M,K+i,K+i+1))
    for k in (8,4,2,1): e('v_max_u32_dpp v%d, v%d, v%d row_ror:%d row_mask:0xf bank_mask:0xf'%(M,M,M,k))
    e('v_mov_b32 v%d, v%d'%(T,M)); e('v_permlane16_swap_b32 v%d, v%d'%(M,T)); e('v_max_u32 v%d, v%d, v%d'%(M,M,T))
    e('v_mov_b32 v%d, v%d'%(T,M)); e('v_permlane32_swap_b32 v%d, v%d'%(M,T)); e('v_max_u32 v%d, v%d, v%d'%(M,M,T))
    for i in range(32):
        e('v_cmp_eq_u32 vcc, v%d, v%d'%(M,K+i)); e('v_cndmask_b32 v%d, v%d, 0, vcc'%(K+i,K+i) if False else 'v_cndmask_b32 v%d, v%d, v%d, vcc'%(K+i,K+i,11))
    e('v_cmp_eq_u32 vcc, s%d, v1'%sA); e('v_cndmask_b32 v%d, v%d, v%d, vcc'%(RES,RES,M))
    e('s_add_u32 s%d, s%d, 1'%(sA,sA)); e('s_cmp_lt_u32 s%d, 8'%sA)
    a.fence(4)
    e('s_cbranch_scc1 L_%s_loop'%tag)
    e('v_and_b32 v12, 0x7ff, v%d'%RES); e('v_sub_u32 v12, 2047, v12')
    e('v_and_b32 v13, 0xffff0000, v%d'%RES)
    e('v_ashrrev_i32 v14, 31, v13'); e('v_not_b32 v14, v14'); e('v_or_b32 v14, 0x80000000, v14'); e('v_xor_b32 v13, v13, v14'); e('v_and_b32 v13, 0xffff0000, v13')
    e('s_mov_b32 s%d, 0x%08x'%(sB,f32bits(-math.log2(math.e))))
    sigmoid(e,13,sB); rnd1(e,13)
    e('v_lshlrev_b32 v5, 2, v1'); e('v_lshlrev_b32 v6, 2, v12'); e('v_add_u32 v7, 1, v1')
    e('s_mov_b64 exec, 0xff')
    e('s_mov_b32 s%d, 0x%x'%(sT0,WS_IDX)); e('buffer_store_dword v12, v5, s[%d:%d], s%d offen%s'%(S_WS,S_WS+3,sT0,SC))
    e('buffer_store_dword v13, v5, s[%d:%d], s%d offen offset:64%s'%(S_WS,S_WS+3,sT0,SC))
    e('s_mov_b32 s%d, 0x%x'%(sT0,WS_SEL)); e('buffer_store_dword v7, v6, s[%d:%d], s%d offen%s'%(S_WS,S_WS+3,sT0,SC))
    e('s_mov_b64 exec, -1')
    e('s_waitcnt vmcnt(0)')

def moe_common(e):
    lanes(e)
    e('v_lshrrev_b32 v8, 2, v2'); e('v_lshl_add_u32 v8, v3, 3, v8'); e('v_lshlrev_b32 v8, 5, v8')
    e('v_and_b32 v9, 3, v2'); e('v_lshl_add_u32 v8, v9, 3, v8')
    e('s_mul_i32 s%d, s%d, 32768'%(sA,sW)); e('v_add_u32 v6, s%d, v8'%sA)

def moe_up(a, tag, SC=' sc1'):
    e=a.e
    moe_common(e)
    XA=16; WF=80; AC=96
    e('v_lshrrev_b32 v8, 1, v1'); e('s_mov_b32 s%d, 3584'%sT0); e('v_mul_lo_u32 v8, v8, s%d'%sT0); e('v_and_b32 v9, 1, v1'); e('v_lshl_add_u32 v5, v9, 4, v8')
    e('s_lshl_b32 s%d, s%d, 7'%(sB,sI0)); e('s_lshl_b32 s%d, s%d, 5'%(sT0,sW)); e('s_add_u32 s%d, s%d, s%d'%(sB,sB,sT0))
    e('s_barrier')
    for m,ptr in enumerate((sE,sG)):
        srd(e,S_W,ptr,512*3584)
        e('s_mov_b32 s%d, s%d'%(sT0,sB)); e('s_add_u32 s%d, s%d, %d'%(sT1,sA,m*16384))
        for i in range(16):
            e('s_mov_b32 m0, s%d'%sT1)
            e('buffer_load_dwordx4 v5, s[%d:%d], s%d offen lds'%(S_W,S_W+3,sT0))
            e('s_add_u32 s%d, s%d, %d'%(sT0,sT0,32*3584)); e('s_add_u32 s%d, s%d, 0x400'%(sT1,sT1))
    return
def moe_up2(a, tag, SC=' sc1'):
    e=a.e
    XA=16; WF=80; AC=96
    e('v_and_b32 v8, 7, v2'); e('v_lshlrev_b32 v8, 2, v8')
    e('s_mov_b32 s%d, 0x%x'%(sT0,WS_IDX)); e('buffer_load_dword v9, v8, s[%d:%d], s%d offen%s'%(S_WS,S_WS+3,sT0,SC))
    e('s_waitcnt vmcnt(0)')
    e('v_lshlrev_b32 v9, 10, v9'); e('v_lshl_add_u32 v9, v3, 4, v9')
    for ks in range(16): e('buffer_load_dwordx4 %s, v9, s[%d:%d], 0 offen offset:%d'%(vr(XA+4*ks,4),S_X,S_X+3,ks*64))
    e('s_waitcnt vmcnt(0)')
    for ks in range(16):
        for m in range(2):
            for hf in range(2): e('ds_read_b64_tr_b16 %s, v6 offset:%d'%(vr(WF+8*(ks&1)+4*m+2*hf,2),m*16384+(32*ks+4*hf)*32))
        e('s_waitcnt lgkmcnt(0)')
        for m in range(2):
            e('v_mfma_f32_16x16x32_bf16 %s, %s, %s, %s'%(vr(AC+4*m,4),vr(XA+4*ks,4),vr(WF+8*(ks&1)+4*m,4),'0' if ks==0 else vr(AC+4*m,4)))
    e('s_mov_b32 s%d, 0x%08x'%(sC_,f32bits(-math.log2(math.e))))
    G_,U_,S_=AC,AC+4,AC+8
    rnd2(e,G_,8); rnd2(e,G_+2,8); rnd2(e,U_,8); rnd2(e,U_+2,8)
    for r in range(4):
        e('v_mov_b32 v%d, v%d'%(S_+r,G_+r)); sigmoid(e,S_+r,sC_); e('v_mul_f32 v%d, v%d, v%d'%(G_+r,G_+r,S_+r))
    rnd2(e,G_,8); rnd2(e,G_+2,8)
    e('v_pk_mul_f32 %s, %s, %s'%(vr(G_,2),vr(G_,2),vr(U_,2))); e('v_pk_mul_f32 %s, %s, %s'%(vr(G_+2,2),vr(G_+2,2),vr(U_+2,2)))
    for r in range(4): e('v_cvt_pk_bf16_f32 v%d, v%d, v%d'%(S_+r,G_+r,G_+r))
    e('s_mov_b32 s%d, %d'%(sT0,4*3584)); e('v_mul_lo_u32 v8, v3, s%d'%sT0); e('v_lshl_add_u32 v8, v2, 1, v8')
    e('s_add_u32 s%d, s%d, 0x%x'%(sT0,sB,WS_H))
    e('s_mov_b64 exec, 0xffffffff')
    for r in range(4):
        e('buffer_store_short v%d, v8, s[%d:%d], s%d offen%s'%(S_+r,S_WS,S_WS+3,sT0,SC))
        e('s_add_u32 s%d, s%d, 3584'%(sT0,sT0))
    e('s_mov_b64 exec, -1')
    e('s_waitcnt vmcnt(0)')

def moe_down_dma(a,half):
    e=a.e
    e('s_add_u32 s%d, s%d, %d'%(sT0,sB,half*896*1024)); e('s_mov_b32 s%d, s%d'%(sT1,sA))
    for i in range(28):
        e('s_mov_b32 m0, s%d'%sT1)
        e('buffer_load_dwordx4 v5, s[%d:%d], s%d offen lds'%(S_W,S_W+3,sT0))
        e('s_add_u32 s%d, s%d, 0x8000'%(sT0,sT0)); e('s_add_u32 s%d, s%d, 0x400'%(sT1,sT1))
def moe_down(a, tag, SC=' sc1'):
    e=a.e
    moe_common(e)
    e('v_lshrrev_b32 v8, 1, v1'); e('v_lshlrev_b32 v8, 10, v8'); e('v_and_b32 v9, 1, v1'); e('v_lshl_add_u32 v5, v9, 4, v8')
    e('s_lshl_b32 s%d, s%d, 7'%(sB,sI0)); e('s_lshl_b32 s%d, s%d, 5'%(sT0,sW)); e('s_add_u32 s%d, s%d, s%d'%(sB,sB,sT0))
    srd(e,S_W,sE,1792*1024)
    e('s_barrier')
    moe_down_dma(a,0)
def moe_down2(a, tag, SC=' sc1'):
    e=a.e
    HA=16; WF=128; AC=136
    e('v_and_b32 v8, 7, v2'); e('s_mov_b32 s%d, 3584'%sT0); e('v_mul_lo_u32 v8, v8, s%d'%sT0); e('v_lshl_add_u32 v9, v3, 4, v8')
    e('v_lshlrev_b32 v10, 4, v3')
    e('s_mov_b32 s%d, 0x%x'%(sT0,WS_IDX+64)); e('buffer_load_dwordx4 v[12:15], v10, s[%d:%d], s%d offen%s'%(S_WS,S_WS+3,sT0,SC))
    for half in range(2):
        e('s_mov_b32 s%d, 0x%x'%(sC_,WS_H+half*1792))
        for ks in range(28): e('buffer_load_dwordx4 %s, v9, s[%d:%d], s%d offen offset:%d%s'%(vr(HA+4*ks,4),S_WS,S_WS+3,sC_,ks*64,SC))
        e('s_waitcnt vmcnt(0)')
        for ks in range(28):
            for hf in range(2): e('ds_read_b64_tr_b16 %s, v6 offset:%d'%(vr(WF+4*(ks&1)+2*hf,2),(32*ks+4*hf)*32))
            e('s_waitcnt lgkmcnt(0)')
            e('v_mfma_f32_16x16x32_bf16 %s, %s, %s, %s'%(vr(AC,4),vr(HA+4*ks,4),vr(WF+4*(ks&1),4),'0' if (ks==0 and half==0) else vr(AC,4)))
        if half==0: moe_down_dma(a,1)
    rnd2(e,AC,8); rnd2(e,AC+2,8)
    e('v_pk_mul_f32 %s, %s, v[12:13]'%(vr(AC,2),vr(AC,2))); e('v_pk_mul_f32 %s, %s, v[14:15]'%(vr(AC+2,2),vr(AC+2,2)))
    rnd2(e,AC,8); rnd2(e,AC+2,8)
    e('v_lshlrev_b32 v8, 13, v3'); e('v_lshl_add_u32 v8, v2, 2, v8')
    e('s_lshl_b32 s%d, s%d, 1'%(sT0,sB)); e('s_add_u32 s%d, s%d, 0x%x'%(sT0,sT0,WS_Y))
    e('s_mov_b64 exec, 0xffffffff')
    for r in range(4):
        e('buffer_store_dword v%d, v8, s[%d:%d], s%d offen%s'%(AC+r,S_WS,S_WS+3,sT0,SC))
        e('s_add_u32 s%d, s%d, 2048'%(sT0,sT0))
    e('s_mov_b64 exec, -1')
    e('s_waitcnt vmcnt(0)')
```

```python
from asmdsl import *
from layout import *
import math, struct
def f32bits(x): return struct.unpack('<I',struct.pack('<f',x))[0]

S_WS=8; S_DBG=12; S_W=16; S_M0=20
sH=24; sW=25; sS=26; sTAG=27; sRA=28; sRB=29; sRC=30; sT0=31
sP1W=32; sP1R=34
sKX=40; sVX=41; sKM=42; sKM0=44; sT1=45; sT2=46; sT3=47
sC=48; sNC=50; sEXQ=52; sEXM=54
sPWQ=56; sPWK=58; sPWV=60; sPWO=62
sPROG=64; sBUD=65; sFLG=66; sNEED=67
sPN=36
FIL=0
vL16=1; vM2R=2; vQKW=3; vQKR=4; vKX=5; vOW=6; vWO0=7; vWO1=8; vP1W=9; vP1R=10; vM2W=11; vIDX=13; vONE=12
vVM1=14
MQ=16; MF=24; F=24; ACC=56; VACC=72; KX=80; VX=112; PX=120; PM=124; VM0=126
WV=128

def wreg(x,t,ks):
    if x<2: return ar(((x*2+t)*8+ks)*8,8)
    return vr(WV+(t*8+ks)*8,8)
def wreg2(x,t,ks,p):
    if x<2: return ar(((x*2+t)*8+ks)*8+p,2)
    return vr(WV+(t*8+ks)*8+p,2)

def gen_rec(a, nsteps=64, opt=()):
    e=a.e
    SC='' if 'plainpub' in opt else ' sc1'
    P=dict(p2=46,p1=46,r1=40,r2=40,w2=2,mf=8,d1=20,d2=20)
    STL=None
    for o in opt:
        if o.startswith('st='): STL=[int(x) for x in o[3:].split(',')]+[15]
        elif '=' in o: k_,v_=o.split('='); P[k_]=int(v_)
    lg=Cnt(a,'lgkmcnt',15); vm=Cnt(a,'vmcnt',63)
    l,n,g,t0,t1,t2=16,17,18,19,20,21
    e('v_and_b32 v%d, 63, v0'%l); e('v_and_b32 v%d, 15, v0'%n); e('v_bfe_u32 v%d, v0, 4, 2'%g)
    e('v_lshlrev_b32 v%d, 4, v%d'%(vL16,l))
    e('s_lshl_b32 s%d, s%d, 11'%(sT0,sW)); e('v_add_u32 v%d, s%d, v%d'%(vM2R,sT0,vL16))
    e('v_lshrrev_b32 v%d, 2, v%d'%(t0,n)); e('v_xor_b32 v%d, v%d, v%d'%(t0,t0,g)); e('v_lshlrev_b32 v%d, 3, v%d'%(t0,t0))
    e('v_lshl_add_u32 v%d, v%d, 5, v%d'%(t0,n,t0))
    e('s_lshl_b32 s%d, s%d, 10'%(sT0,sW)); e('s_add_u32 s%d, s%d, %d'%(sT0,sT0,L_QK)); e('v_add_u32 v%d, s%d, v%d'%(vQKW,sT0,t0))
    e('v_lshrrev_b32 v%d, 2, v%d'%(t0,n)); e('v_lshl_add_u32 v%d, v%d, 2, v%d'%(t0,g,t0)); e('v_lshlrev_b32 v%d, 5, v%d'%(t0,t0))
    e('v_and_b32 v%d, 3, v%d'%(t1,n)); e('v_xor_b32 v%d, v%d, v%d'%(t1,t1,g)); e('v_lshl_add_u32 v%d, v%d, 3, v%d'%(t0,t1,t0))
    e('v_add_u32 v%d, %d, v%d'%(vQKR,L_QK,t0))
    e('v_add_u32 v%d, %d, v%d'%(vKX,L_KX,vL16))
    e('v_and_b32 v%d, 13, v%d'%(t0,n)); e('v_lshl_add_u32 v%d, v%d, 4, v%d'%(t0,g,t0)); e('v_lshlrev_b32 v%d, 4, v%d'%(t0,t0))
    e('s_lshr_b32 s%d, s%d, 1'%(sT0,sW)); e('s_lshl_b32 s%d, s%d, 10'%(sT0,sT0)); e('s_and_b32 s%d, s%d, 1'%(sT1,sW)); e('s_lshl_b32 s%d, s%d, 5'%(sT1,sT1))
    e('s_add_u32 s%d, s%d, s%d'%(sT0,sT0,sT1)); e('s_add_u32 s%d, s%d, %d'%(sT0,sT0,L_O)); e('v_add_u32 v%d, s%d, v%d'%(vOW,sT0,t0))
    e('s_lshl_b32 s%d, s%d, 14'%(sT0,sW)); e('s_add_u32 s%d, s%d, %d'%(sT0,sT0,L_WO))
    e('v_add_u32 v%d, s%d, v%d'%(vWO0,sT0,vL16)); e('v_add_u32 v%d, 0x10000, v%d'%(vWO1,vWO0))
    e('v_lshrrev_b32 v%d, 2, v%d'%(t0,n)); e('v_lshlrev_b32 v%d, 13, v%d'%(t0,t0)); e('v_lshl_add_u32 v%d, v%d, 6, v%d'%(t0,g,t0))
    e('v_and_b32 v%d, 3, v%d'%(t1,n)); e('v_lshl_add_u32 v%d, v%d, 4, v%d'%(t0,t1,t0))
    e('s_lshl_b32 s%d, s%d, 15'%(sT0,sW)); e('s_lshl_b32 s%d, s%d, 8'%(sT1,sH)); e('s_add_u32 s%d, s%d, s%d'%(sT0,sT0,sT1))
    e('v_add_u32 v%d, s%d, v%d'%(vP1W,sT0,t0))
    e('v_lshrrev_b32 v%d, 2, v%d'%(t0,l)); e('v_lshlrev_b32 v%d, 8, v%d'%(t0,t0)); e('v_and_b32 v%d, 3, v%d'%(t1,l)); e('v_lshl_add_u32 v%d, v%d, 4, v%d'%(t0,t1,t0))
    e('s_lshl_b32 s%d, s%d, 6'%(sT0,sW)); e('v_add_u32 v%d, s%d, v%d'%(vP1R,sT0,t0))
    e('v_and_b32 v%d, 3, v%d'%(t0,l)); e('v_lshlrev_b32 v%d, 2, v%d'%(t0,t0)); e('v_lshl_add_u32 v%d, v%d, 5, v%d'%(t0,g,t0))
    e('s_lshl_b32 s%d, s%d, 8'%(sT0,sH)); e('s_lshl_b32 s%d, s%d, 6'%(sT1,sW)); e('s_add_u32 s%d, s%d, s%d'%(sT0,sT0,sT1))
    e('v_add_u32 v%d, s%d, v%d'%(vM2W,sT0,t0))
    e('v_and_b32 v%d, 2, v%d'%(t0,n)); e('v_cmp_eq_u32 vcc, 0, v%d'%t0)
    e('v_mov_b32 v%d, 0xeeeeeeee'%t0); e('v_mov_b32 v%d, 0x44444444'%t1); e('v_cndmask_b32 v%d, v%d, v%d, vcc'%(vIDX,t0,t1))
    e('v_mov_b32 v15, 0')
    c=(128**-0.5)*math.log2(math.e)
    e('s_mov_b32 s%d, 0x%08x'%(sC,f32bits(c))); e('s_mov_b32 s%d, 0x%08x'%(sC+1,f32bits(c))); e('s_mov_b32 s%d, 0x%08x'%(sNC,f32bits(-c)))
    e('s_mov_b32 s%d, 0xcccccccc'%sEXQ); e('s_mov_b32 s%d, 0xcccccccc'%(sEXQ+1))
    e('s_mov_b32 s%d, 0x000f000f'%sEXM); e('s_mov_b32 s%d, 0'%(sEXM+1))
    for q in range(2): e('s_mov_b32 s%d, 0x%x'%(sP1W+q,WS_P1+q*131072))
    e('s_lshl_b32 s%d, s%d, 13'%(sT0,sH))
    for i in range(2): e('s_add_u32 s%d, s%d, 0x%x'%(sP1R+i,sT0,WS_P1+i*4096))
    e('s_mov_b32 s%d, 0x%x'%(sRA,WS_M2)); e('s_mov_b32 s%d, 0x%x'%(sRB,WS_M2+8192)); e('s_mov_b32 s%d, 0x%x'%(sRC,WS_M2+16384))
    e('s_lshl_b32 s%d, s%d, 13'%(sT0,sH)); e('s_add_u32 s%d, s%d, 0x%x'%(sKX,sT0,WS_K)); e('s_add_u32 s%d, s%d, 0x%x'%(sVX,sT0,WS_V))
    e('s_lshl_b32 s%d, s%d, 12'%(sT0,sH)); e('s_lshl_b32 s%d, s%d, 10'%(sT1,sW)); e('s_add_u32 s%d, s%d, s%d'%(sT0,sT0,sT1)); e('s_add_u32 s%d, s%d, 0x%x'%(sKM,sT0,WS_KM))
    e('s_lshl_b32 s%d, s%d, 11'%(sT0,sW)); e('s_add_u32 s%d, s%d, %d'%(sKM0,sT0,L_KX))
    FUSED='fused' in opt
    e('s_lshl_b32 s%d, s%d, 8'%(sT0,sH)); e('s_add_u32 s%d, s%d, 0x%x'%(sPROG,sT0,FL_REC))
    e('s_lshl_b32 s%d, s%d, 7'%(sT0,sH)); e('s_add_u32 s%d, s%d, 0x%x'%(sFLG,sT0,FL_G))
    e('s_mov_b32 s%d, 0'%sS); e('s_mov_b32 s%d, 1'%sTAG); e('s_mov_b32 s%d, 400000'%sBUD)
    ST='stamps' in opt
    sTM=68; sPREV=70; sACC0=72; NST=16
    if ST:
        for i in range(NST): e('s_mov_b32 s%d, 0'%(sACC0+i))
        e('s_mov_b32 s%d, 0'%sPREV)
    def stamp(i):
        if not ST: return
        if STL is not None and i not in STL: return
        e('s_memtime s[%d:%d]'%(sTM,sTM+1)); e('s_waitcnt lgkmcnt(0)'); lg.q=[]
        e('s_sub_u32 s%d, s%d, s%d'%(sPREV+1,sTM,sPREV)); e('s_add_u32 s%d, s%d, s%d'%(sACC0+i,sACC0+i,sPREV+1)); e('s_mov_b32 s%d, s%d'%(sPREV,sTM))
    def budget(lbl,code):
        e('s_sub_u32 s%d, s%d, 1'%(sBUD,sBUD)); e('s_cmp_eq_u32 s%d, 0'%sBUD); e('s_cbranch_scc0 %s'%lbl)
        e('s_mov_b32 s%d, %d'%(sT0,code)); e('s_branch L_abort')

    L_SEL=L_MISC+1024
    e('v_and_b32 v%d, 1, v%d'%(t0,n)); e('v_cmp_eq_u32 vcc, 0, v%d'%t0)
    e('v_mov_b32 v%d, 0x3f800000'%t0); e('v_mov_b32 v%d, 0x3f80'%t1); e('v_cndmask_b32 v%d, v%d, v%d, vcc'%(t0,t0,t1))
    e('v_lshrrev_b32 v%d, 1, v%d'%(t1,n))
    for i in range(4):
        e('v_cmp_eq_u32 vcc, %d, v%d'%(i,t1)); e('v_cndmask_b32 v%d, v15, v%d, vcc'%(24+i,t0))
    e('ds_write_b128 v%d, v[24:27] offset:%d'%(vL16,L_SEL))
    e('s_waitcnt lgkmcnt(0)')
    for r in range(4): e('v_mov_b32 v%d, 0'%(24+r))
    e('v_mov_b32 v28, -1')
    e('s_lshl_b32 s%d, s%d, 11'%(sT0,sW)); e('s_add_u32 s%d, s%d, s%d'%(sT0,sT0,sP1R))
    for i in range(2): e('buffer_store_dwordx4 v[24:27], v%d, s[%d:%d], s%d offen offset:%d'%(vL16,S_WS,S_WS+3,sT0,i*1024))
    e('s_mov_b64 exec, s[%d:%d]'%(sEXM,sEXM+1))
    for sl in (sRA,sRB,sRC):
        for par in range(2): e('buffer_store_dword v28, v%d, s[%d:%d], s%d offen offset:%d'%(vM2W,S_WS,S_WS+3,sl,16*par))
    e('s_mov_b64 exec, -1')
    e('s_waitcnt vmcnt(0)')
    e('s_barrier')
    e('v_cmp_eq_u32 vcc, 0, v0')
    e('s_and_saveexec_b64 s[%d:%d], vcc'%(sT2,sT3))
    e('v_mov_b32 v24, 1'); e('v_mov_b32 v25, %d'%DBG_INIT)
    e('buffer_atomic_add v24, v25, s[%d:%d], 0 offen'%(S_DBG,S_DBG+3))
    e('s_mov_b64 exec, -1')
    dv=28
    e('v_lshrrev_b32 v%d, 1, v%d'%(t0,g)); e('v_lshlrev_b32 v%d, 1, v%d'%(t0,t0)); e('v_xor_b32 v%d, v%d, v%d'%(t0,t0,n))
    e('v_lshlrev_b32 v%d, 4, v%d'%(t0,t0)); e('v_lshl_add_u32 v%d, v%d, 13, v%d'%(t0,g,t0))
    e('s_lshl_b32 s%d, s%d, 8'%(sT0,sH)); e('v_add_u32 v%d, s%d, v%d'%(dv,sT0,t0))
    for k in range(1,4): e('v_xor_b32 v%d, %d, v%d'%(dv+k,k<<6,dv))
    r_,cc,row0,Fz=32,33,34,35
    tb=36
    e('v_lshrrev_b32 v%d, 2, v%d'%(r_,n)); e('v_and_b32 v%d, 3, v%d'%(cc,n))
    e('v_lshrrev_b32 v%d, 1, v%d'%(t0,g)); e('v_lshlrev_b32 v%d, 4, v%d'%(row0,t0))
    e('v_and_b32 v%d, 1, v%d'%(t0,g)); e('v_lshl_add_u32 v%d, v%d, 1, v%d'%(row0,t0,row0)); e('v_lshl_or_b32 v%d, v%d, 1, v%d'%(Fz,r_,t0))
    e('v_lshl_add_u32 v%d, v%d, 2, v%d'%(row0,r_,row0))
    e('v_lshrrev_b32 v%d, 1, v%d'%(t0,cc)); e('s_lshl_b32 s%d, s%d, 2'%(sT0,sW)); e('v_add_u32 v%d, s%d, v%d'%(t0,sT0,t0))
    e('v_lshlrev_b32 v%d, 1, v%d'%(t1,Fz)); e('v_xor_b32 v%d, v%d, v%d'%(t0,t0,t1)); e('v_lshlrev_b32 v%d, 4, v%d'%(t0,t0))
    e('v_lshl_add_u32 v%d, v%d, 8, v%d'%(t0,row0,t0))
    e('v_and_b32 v%d, 1, v%d'%(t1,cc)); e('v_lshl_add_u32 v%d, v%d, 3, v%d'%(t0,t1,t0))
    e('v_add_u32 v%d, %d, v%d'%(tb,L_WO,t0)); e('v_xor_b32 v%d, 32, v%d'%(tb+1,tb))
    e('v_add_u32 v%d, 0x10000, v%d'%(tb+2,tb)); e('v_add_u32 v%d, 0x10000, v%d'%(tb+3,tb+1))
    wo_b=40
    e('v_and_b32 v%d, 1, v%d'%(t0,g)); e('v_lshlrev_b32 v%d, 4, v%d'%(row0,t0)); e('v_lshlrev_b32 v%d, 3, v%d'%(Fz,t0))
    e('v_lshrrev_b32 v%d, 1, v%d'%(t0,g)); e('v_lshl_add_u32 v%d, v%d, 2, v%d'%(row0,t0,row0))
    e('v_and_b32 v%d, 1, v%d'%(t0,r_)); e('v_add_u32 v%d, v%d, v%d'%(row0,row0,t0)); e('v_or_b32 v%d, v%d, v%d'%(Fz,Fz,t0))
    e('v_lshrrev_b32 v%d, 1, v%d'%(t0,r_)); e('v_lshl_add_u32 v%d, v%d, 5, v%d'%(row0,t0,row0))
    e('v_lshlrev_b32 v%d, 1, v%d'%(t0,cc)); e('s_lshl_b32 s%d, s%d, 3'%(sT0,sW)); e('v_add_u32 v%d, s%d, v%d'%(t0,sT0,t0))
    e('v_xor_b32 v%d, v%d, v%d'%(t0,t0,Fz)); e('v_lshlrev_b32 v%d, 4, v%d'%(t0,t0))
    e('v_lshl_add_u32 v%d, v%d, 10, v%d'%(t0,row0,t0))
    e('v_add_u32 v%d, %d, v%d'%(wo_b,L_WO,t0)); e('v_xor_b32 v%d, 16, v%d'%(wo_b+1,wo_b))
    e('v_add_u32 v%d, 0x10000, v%d'%(wo_b+2,wo_b)); e('v_add_u32 v%d, 0x10000, v%d'%(wo_b+3,wo_b+1))
    def set_w(ptr,nbytes):
        e('s_mov_b32 s%d, s%d'%(S_W,ptr)); e('s_and_b32 s%d, s%d, 0xffff'%(S_W+1,ptr+1))
        e('s_mov_b32 s%d, 0x%x'%(S_W+2,nbytes)); e('s_mov_b32 s%d, 0x20000'%(S_W+3))
    def dma(nidx):
        area=nidx&1
        if nidx<6:
            x=nidx>>1; half=nidx&1
            set_w((sPWQ,sPWK,sPWV)[x],4*MB)
            e('s_lshl_b32 s%d, s%d, 19'%(sT0,sW)); e('s_add_u32 s%d, s%d, 0x%x'%(sT0,sT0,half*256*8192))
            e('s_lshl_b32 s%d, s%d, 14'%(sT1,sW)); e('s_add_u32 s%d, s%d, 0x%x'%(sT1,sT1,L_WO+area*65536))
            for i in range(16):
                e('s_mov_b32 m0, s%d'%sT1)
                e('buffer_load_dwordx4 v%d, s[%d:%d], s%d offen lds'%(dv+(i&3),S_W,S_W+3,sT0)); vm.issue(('dma',nidx))
                e('s_add_u32 s%d, s%d, 0x8000'%(sT0,sT0)); e('s_add_u32 s%d, s%d, 0x400'%(sT1,sT1))
        else:
            half=nidx&1
            set_w(sPWO,4*MB)
            e('s_lshl_b32 s%d, s%d, 17'%(sT0,sH)); e('s_lshl_b32 s%d, s%d, 14'%(sT1,sW)); e('s_add_u32 s%d, s%d, s%d'%(sT0,sT0,sT1))
            e('s_add_u32 s%d, s%d, 0x%x'%(sT0,sT0,half*65536)); e('s_add_u32 s%d, s%d, 0x%x'%(sT1,sT1,L_WO+area*65536))
            e('s_and_b32 s%d, s%d, 1'%(sT2,sW)); e('s_lshl_b32 s%d, s%d, 7'%(sT2,sT2))
            e('v_xor_b32 v44, s%d, v%d'%(sT2,vL16)); e('v_xor_b32 v45, 16, v44')
            for i in range(16):
                e('s_mov_b32 m0, s%d'%sT1)
                e('buffer_load_dwordx4 v%d, s[%d:%d], s%d offen lds'%(44+(i&1),S_W,S_W+3,sT0)); vm.issue(('dma',nidx))
                e('s_add_u32 s%d, s%d, 0x400'%(sT0,sT0)); e('s_add_u32 s%d, s%d, 0x400'%(sT1,sT1))
    vm.issue('atom')
    dma(0); dma(1)
    for nidx in range(8):
        area=nidx&1
        vm.wait(('dma',nidx))
        e('s_barrier')
        cnt=0
        if nidx<6:
            x=nidx>>1; half=nidx&1
            for t in range(2):
                for ksl in range(4):
                    ks=half*4+ksl
                    for p in range(0,8,2):
                        off=(64*ksl+32*(p>>2)+((p>>1)&1))*256
                        e('ds_read_b64_tr_b16 %s, v%d offset:%d'%(wreg2(x,t,ks,p),tb+2*area+t,off))
                        cnt+=1
                        if cnt%12==0: e('s_waitcnt lgkmcnt(4)')
            e('s_waitcnt lgkmcnt(0)'); e('s_barrier')
            dma(nidx+2)
        else:
            for tt in range(8):
                qq=tt>>2
                for p in range(0,8,2):
                    off=(8*(p>>2)+2*((p>>1)&1))*1024 + 32*qq*16 + 8*(tt&1)
                    e('ds_read_b64_tr_b16 %s, v%d offset:%d'%(vr(64+tt*8+p,2),wo_b+2*area+((tt>>1)&1),off))
                    cnt+=1
                    if cnt%12==0: e('s_waitcnt lgkmcnt(4)')
            e('s_waitcnt lgkmcnt(0)'); e('s_barrier')
            for tt in range(8):
                for hf in range(2):
                    e('ds_write_b128 v%d, %s offset:%d'%((vWO0,vWO1)[area],vr(64+tt*8+4*hf,4),tt*2048+hf*1024))
                if tt%4==3: e('s_waitcnt lgkmcnt(0)')
    e('v_mov_b32 v%d, 0'%(PM+1)); e('v_mov_b32 v%d, 0'%(VM0+1))
    if FUSED:
        e('v_mov_b32 v25, %d'%DBG_FRDY)
        a.label('L_frdy')
        e('buffer_load_dword v26, v25, s[%d:%d], 0 offen sc1'%(S_DBG,S_DBG+3)); e('s_waitcnt vmcnt(0)')
        e('v_cmp_eq_u32 vcc, 0, v26'); e('s_cbranch_vccz L_frdy_ok'); e('s_sleep 2')
        budget('L_frdy',4)
        a.label('L_frdy_ok')
        e('v_and_b32 v25, 0x30, v%d'%vL16)
        a.label('L_kv0')
        e('buffer_load_dword v26, v25, s[%d:%d], s%d offen sc1'%(S_WS,S_WS+3,sFLG)); e('s_waitcnt vmcnt(0)')
        e('v_cmp_gt_u32 vcc, 2, v26'); e('s_cbranch_vccz L_kv0_ok'); e('s_sleep 2')
        budget('L_kv0',5)
        a.label('L_kv0_ok')
    e('s_mov_b32 m0, s%d'%sKM0)
    e('buffer_load_dwordx4 v%d, s[%d:%d], s%d offen sc1 lds'%(vM2R,S_WS,S_WS+3,sKX))
    e('buffer_load_dwordx4 v%d, s[%d:%d], s%d offen offset:1024 sc1 lds'%(vM2R,S_WS,S_WS+3,sKX))
    e('s_xor_b32 s%d, s%d, 8192'%(sKM0,sKM0)); e('s_add_u32 s%d, s%d, 0x40000'%(sKX,sKX))
    e('v_lshrrev_b32 v%d, 2, v%d'%(t0,n)); e('v_lshlrev_b32 v%d, 11, v%d'%(t0,t0))
    e('v_and_b32 v%d, 1, v%d'%(t1,n)); e('v_lshl_add_u32 v%d, v%d, 10, v%d'%(t0,t1,t0)); e('v_lshl_add_u32 v%d, v%d, 5, v%d'%(t0,g,t0))
    e('v_bfe_u32 v%d, v%d, 1, 1'%(t1,n)); e('v_lshl_add_u32 v%d, v%d, 4, v%d'%(24,t1,t0))
    e('s_lshl_b32 s%d, s%d, 8'%(sT0,sW))
    e('buffer_load_dwordx4 v[32:35], v24, s[%d:%d], s%d offen'%(S_M0,S_M0+3,sT0))
    e('buffer_load_dwordx4 v[36:39], v24, s[%d:%d], s%d offen offset:128'%(S_M0,S_M0+3,sT0))
    for r in range(ACC,ACC+24,2): e('v_mov_b64 %s, 0'%vr(r,2))
    e('v_mov_b32 v25, %d'%DBG_INIT)
    a.label('L_initwait')
    e('buffer_load_dword v26, v25, s[%d:%d], 0 offen sc1'%(S_DBG,S_DBG+3))
    e('s_waitcnt vmcnt(0)')
    e('v_cmp_gt_u32 vcc, 32, v26')
    e('s_cbranch_vccz L_init_ok')
    budget('L_initwait',1)
    a.label('L_init_ok')
    e('s_mov_b32 s%d, 0x05040100'%sT0); e('s_mov_b32 s%d, 0x07060302'%sT1)
    for k in range(2):
        s_=32+4*k; d_=MQ+4*k
        e('v_perm_b32 v%d, v%d, v%d, s%d'%(d_,s_+2,s_,sT0)); e('v_perm_b32 v%d, v%d, v%d, s%d'%(d_+1,s_+2,s_,sT1))
        e('v_perm_b32 v%d, v%d, v%d, s%d'%(d_+2,s_+3,s_+1,sT0)); e('v_perm_b32 v%d, v%d, v%d, s%d'%(d_+3,s_+3,s_+1,sT1))
    e('ds_write_b128 v%d, %s offset:%d'%(vM2R,vr(MQ,4),L_MEM)); e('ds_write_b128 v%d, %s offset:%d'%(vM2R,vr(MQ+4,4),L_MEM+1024))
    e('s_waitcnt lgkmcnt(0)')
    stamp(15)
    e('s_branch L_have_mem')
    vm.reset(); lg.reset()

    def fill(k):
        if 'nofill' in opt and k<=2: return
        for _ in range(k): e('v_mov_b32 v%d, v%d'%(FIL,vL16))
    a.label('L_step')
    def poll2(first):
        for i in range(2):
            if not first: e('s_mov_b64 exec, s[%d:%d]'%(sPN+2*i,sPN+2*i+1))
            e('buffer_load_dwordx4 %s, v%d, s[%d:%d], s%d offen offset:%d sc1'%(vr(MQ+4*i,4),vM2R,S_WS,S_WS+3,sRA,1024*i))
        if not first: e('s_mov_b64 exec, -1')
        fill(P['p2'] if first else P['r2'])
        e('s_waitcnt vmcnt(0)')
        e('ds_write_b128 v%d, %s offset:%d'%(vM2R,vr(MQ,4),L_MEM))
        e('v_max3_u32 v%d, v%d, v%d, v%d'%(MF,MQ,MQ+1,MQ+2))
        e('v_max3_u32 v%d, v%d, v%d, v%d'%(MF+1,MQ+4,MQ+5,MQ+6))
        e('ds_write_b128 v%d, %s offset:%d'%(vM2R,vr(MQ+4,4),L_MEM+1024))
        e('v_max_u32 v%d, v%d, v%d'%(MF,MF,MQ+3)); e('v_max_u32 v%d, v%d, v%d'%(MF+1,MF+1,MQ+7))
        e('v_cmp_eq_u32 s[%d:%d], -1, v%d'%(sPN,sPN+1,MF)); e('v_cmp_eq_u32 s[%d:%d], -1, v%d'%(sPN+2,sPN+3,MF+1))
        fill(3)
        e('s_or_b64 s[%d:%d], s[%d:%d], s[%d:%d]'%(sT2,sT3,sPN,sPN+1,sPN+2,sPN+3))
    poll2(True)
    e('s_cbranch_scc0 L_poll2_ok')
    a.label('L_poll2')
    e('s_waitcnt lgkmcnt(0)')
    poll2(False)
    e('s_cbranch_scc0 L_poll2_ok')
    budget('L_poll2',2)
    a.label('L_poll2_ok')
    fill(P['w2'])
    e('s_waitcnt lgkmcnt(0)')
    stamp(0)
    a.label('L_have_mem')
    e('s_barrier')
    stamp(1)
    def mfread(ks):
        e('ds_read_b128 %s, v%d offset:%d'%(vr(MF+4*ks,4),vL16,L_MEM+ks*1024)); lg.issue(('mf',ks))
    for ks in range(4): mfread(ks); fill(1)
    e('buffer_load_dwordx4 %s, v%d, s[%d:%d], s%d offen sc1'%(vr(VX,4),vM2R,S_WS,S_WS+3,sVX)); vm.issue('vx')
    e('s_mov_b32 m0, s%d'%sKM0)
    e('v_mov_b32 v%d, s%d'%(MQ,sS))
    fill(P['mf']-6)
    def kxread(f):
        e('ds_read_b128 %s, v%d offset:%d'%(vr(KX+4*f,4),vKX,f*1024)); lg.issue(('kx',f))
    def vx2():
        if 'novm' in opt: fill(1); return
        e('buffer_load_dwordx4 %s, v%d, s[%d:%d], s%d offen offset:1024 sc1'%(vr(VX+4,4),vM2R,S_WS,S_WS+3,sVX)); vm.issue('vx')
    def kdma(i):
        if 'novm' in opt: fill(1); return
        e('buffer_load_dwordx4 v%d, s[%d:%d], s%d offen offset:%d sc1 lds'%(vM2R,S_WS,S_WS+3,sKX,1024*i)); vm.issue('kx')
    def prog():
        if not FUSED: fill(1); return
        e('s_cmp_eq_u32 s%d, 0'%sW)
        e('s_cselect_b64 exec, 1, 0')
        e('buffer_store_dword v%d, v15, s[%d:%d], s%d offen sc1'%(MQ,S_WS,S_WS+3,sPROG)); vm.issue('prog')
        e('s_mov_b64 exec, -1')
    def flagld():
        if not FUSED: fill(1); return
        e('buffer_load_dword v%d, v%d, s[%d:%d], s%d offen sc1'%(vONE,MQ+7,S_WS,S_WS+3,sT1)); vm.issue('flag')
    if FUSED:
        e('s_add_u32 s%d, s%d, 2'%(sT0,sS)); e('s_min_u32 s%d, s%d, 63'%(sT0,sT0))
        e('s_and_b32 s%d, s%d, 15'%(sNEED,sT0)); e('s_lshr_b32 s%d, s%d, 4'%(sT0,sT0)); e('s_lshl_b32 s%d, s%d, 2'%(sT0,sT0)); e('s_add_u32 s%d, s%d, s%d'%(sT1,sT0,sFLG))
        e('v_and_b32 v%d, 0x30, v%d'%(MQ+7,vL16))
    W=lambda ks:(lambda:lg.wait(('mf',ks)))
    gaps=[lambda:mfread(4),lambda:mfread(5),lambda:mfread(6),W(1),
          lambda:mfread(7),vx2,lambda:kdma(0),W(3),
          lambda:kxread(0),lambda:kxread(4),lambda:kdma(1),lambda:kxread(1),
          lambda:kxread(5),lambda:kxread(2),lambda:kxread(6),W(7),
          lambda:kxread(3),lambda:kxread(7),prog,flagld]+[lambda:fill(1)]*12
    lg.wait(('mf',0))
    gi=0
    for ks in range(8):
        A=vr(MF+4*ks,4)
        for x in range(2):
            for t in range(2):
                if 'noQK' not in opt: e('v_smfmac_f32_16x16x64_bf16 %s, %s, %s, v%d'%(vr(ACC+(x*2+t)*4,4),A,wreg(x,t,ks),vIDX))
                gaps[gi](); gi+=1
    stamp(2)
    vq=[(ks,t) for ks in range(8) for t in range(2)]
    def vmf(k=1,f=1):
        for _ in range(k):
            if not vq: return
            ks,t=vq.pop(0)
            if 'noV' not in opt: e('v_smfmac_f32_16x16x64_bf16 %s, %s, %s, v%d'%(vr(VACC+t*4,4),vr(MF+4*ks,4),wreg(2,t,ks),vIDX))
            fill(f)
    vmf(2)
    for t in range(2):
        qa=ACC+t*4; ka=ACC+8+t*4
        e('v_pk_add_f32 %s, %s, %s'%(vr(MQ+4,2),vr(ka,2),vr(ka+2,2)))
        e('v_pk_add_f32 %s, %s, %s'%(vr(MQ+6,2),vr(qa,2),vr(qa+2,2)))
        e('v_cvt_pk_bf16_f32 v%d, v%d, v%d'%(MQ+t,MQ+4,MQ+5))
        e('v_cvt_pk_bf16_f32 v%d, v%d, v%d'%(MQ+2+t,MQ+6,MQ+7))
        e('ds_write2_b32 v%d, v%d, v%d offset0:%d offset1:%d'%(vQKW,MQ+t,MQ+2+t,128*t,128*t+1)); lg.issue(('qkw',t))
    vmf(1,0)
    if 'nopub' not in opt: e('buffer_store_dwordx2 %s, v%d, s[%d:%d], s%d offen%s'%(vr(MQ,2),vL16,S_WS,S_WS+3,sKM,SC)); vm.issue('km')
    vmf(3)
    lg.wait(('qkw',1))
    stamp(3)
    e('s_barrier')
    stamp(4)
    FR=[F,F+4,F+8,PX]
    def fread(c_):
        e('ds_read_b64_tr_b16 %s, v%d offset:%d'%(vr(FR[c_],2),vQKR,1024*c_)); lg.issue(('f',c_,0))
        e('ds_read_b64_tr_b16 %s, v%d offset:%d'%(vr(FR[c_]+2,2),vQKR,1024*c_+512)); lg.issue(('f',c_,1))
    fread(0); fread(1); fread(2); fread(3)
    vmf(2)
    Sm,Sx0,Sx1=ACC,ACC+4,ACC+8
    for c_ in range(4):
        lg.wait(('f',c_,1))
        Fc=vr(FR[c_],4)
        e('v_mfma_f32_16x16x32_bf16 %s, %s, %s, %s'%(vr(Sx0,4),vr(KX+4*c_,4),Fc,'0' if c_==0 else vr(Sx0,4)))
        fill(1)
        e('v_mfma_f32_16x16x32_bf16 %s, %s, %s, %s'%(vr(Sx1,4),vr(KX+16+4*c_,4),Fc,'0' if c_==0 else vr(Sx1,4)))
        fill(1)
        e('v_mfma_f32_16x16x32_bf16 %s, %s, %s, %s'%(vr(Sm,4),Fc,Fc,'0' if c_==0 else vr(Sm,4)))
    stamp(5)
    WB=[KX,KX+8,KX+16,KX+24,MF,MF+8,MF+24]
    NWB=7
    order=[(tt,k2) for tt2 in range(4) for k2 in range(2) for tt in (2*tt2,2*tt2+1)]
    wq=[(i,hf) for i in range(16) for hf in range(2)]
    def wo(k=1):
        for _ in range(k):
            if not wq: return False
            i,hf=wq.pop(0); tt,k2=order[i]; b=WB[i%NWB]
            if 'noWo' in opt: lg.seen.add(('wo',i,hf)); continue
            e('ds_read_b128 %s, v%d offset:%d'%(vr(b+4*hf,4),(vWO0,vWO1)[k2],tt*2048+hf*1024)); lg.issue(('wo',i,hf))
        return True
    vmf(1,0); wo(); vmf(1,0); wo()
    m1,m2=MQ,MQ+1
    e('v_max3_f32 v%d, v%d, v%d, v%d'%(m1,Sx0,Sx0+1,Sx0+2))
    e('v_max3_f32 v%d, v%d, v%d, v%d'%(m2,Sx0+3,Sx1,Sx1+1))
    e('v_max3_f32 v%d, v%d, v%d, v%d'%(m1,m1,Sx1+2,Sx1+3))
    e('v_max3_f32 v%d, v%d, v%d, v%d'%(m2,m2,Sm,Sm+1))
    e('v_max_f32 v%d, v%d, v%d'%(m1,m1,m2))
    e('v_max_f32 v%d, v%d, v%d'%(MQ+2,m1,m2))
    vmf(1,0); wo()
    e('v_permlane32_swap_b32 v%d, v%d'%(m1,MQ+2))
    e('v_max_f32 v%d, v%d, v%d'%(m2,m1,MQ+2))
    e('v_max_f32 v%d, v%d, v%d'%(MQ+3,m1,MQ+2))
    vmf(1,0); wo()
    e('v_permlane16_swap_b32 v%d, v%d'%(m2,MQ+3))
    e('v_max_f32 v%d, v%d, v%d'%(m1,m2,MQ+3))
    e('v_mul_f32 v%d, s%d, v%d'%(MQ+2,sNC,m1))
    for r in (Sx0,Sx0+2,Sx1,Sx1+2,Sm):
        e('v_pk_fma_f32 %s, %s, s[%d:%d], %s op_sel_hi:[1,1,0]'%(vr(r,2),vr(r,2),sC,sC+1,vr(MQ+2,2)))
    wo()
    k=0
    for r in (Sx0,Sx0+1,Sx0+2,Sx0+3,Sx1,Sx1+1,Sx1+2,Sx1+3,Sm,Sm+1):
        if 'noexp' not in opt: e('v_exp_f32 v%d, v%d'%(r,r))
        if k in (0,2,4,6): vmf(1,0)
        if k in (1,3,5): wo()
        if k==3: e('v_cvt_pk_bf16_f32 v%d, v%d, v%d'%(PX,Sx0,Sx0+1))
        if k==5: e('v_cvt_pk_bf16_f32 v%d, v%d, v%d'%(PX+1,Sx0+2,Sx0+3))
        if k==7: e('v_cvt_pk_bf16_f32 v%d, v%d, v%d'%(PX+2,Sx1,Sx1+1))
        if k==8: e('v_cvt_pk_bf16_f32 v%d, v%d, v%d'%(PX+3,Sx1+2,Sx1+3))
        k+=1
    assert not vq, vq
    stamp(6)
    vm.wait('vx')
    stamp(7)
    O=MF+16
    e('v_mfma_f32_16x16x32_bf16 %s, %s, %s, 0'%(vr(O,4),vr(VX,4),vr(PX,4)))
    e('v_cvt_pk_bf16_f32 v%d, v%d, v%d'%(PM,Sm,Sm+1))
    e('v_pk_add_f32 %s, %s, %s'%(vr(MQ+4,2),vr(VACC,2),vr(VACC+2,2)))
    e('v_mfma_f32_16x16x32_bf16 %s, %s, %s, 0'%(vr(O+4,4),vr(VX+4,4),vr(PX,4)))
    e('v_pk_add_f32 %s, %s, %s'%(vr(MQ+6,2),vr(VACC+4,2),vr(VACC+6,2)))
    e('v_cvt_pk_bf16_f32 v%d, v%d, v%d'%(VM0,MQ+4,MQ+5))
    e('v_cvt_pk_bf16_f32 v%d, v%d, v%d'%(vVM1,MQ+6,MQ+7))
    e('v_pk_add_f32 %s, %s, %s'%(vr(MQ,2),vr(Sx0,2),vr(Sx0+2,2)))
    e('v_pk_add_f32 %s, %s, %s'%(vr(MQ+2,2),vr(Sx1,2),vr(Sx1+2,2)))
    e('v_mfma_f32_16x16x16_bf16 %s, %s, %s, %s'%(vr(O,4),vr(VM0,2),vr(PM,2),vr(O,4)))
    e('v_pk_add_f32 %s, %s, %s'%(vr(MQ,2),vr(MQ,2),vr(Sm,2)))
    e('v_mfma_f32_16x16x16_bf16 %s, %s, %s, %s'%(vr(O+4,4),vr(vVM1,2),vr(PM,2),vr(O+4,4)))
    e('v_pk_add_f32 %s, %s, %s'%(vr(MQ,2),vr(MQ,2),vr(MQ+2,2)))
    e('v_add_f32 v%d, v%d, v%d'%(MQ+2,MQ,MQ+1))
    e('v_add_f32 v%d, v%d, v%d'%(MQ+3,MQ,MQ+1))
    wo(2)
    e('v_permlane32_swap_b32 v%d, v%d'%(MQ+2,MQ+3))
    e('v_add_f32 v%d, v%d, v%d'%(MQ,MQ+2,MQ+3))
    e('v_add_f32 v%d, v%d, v%d'%(MQ+1,MQ+2,MQ+3))
    wo(2)
    e('v_permlane16_swap_b32 v%d, v%d'%(MQ,MQ+1))
    e('v_add_f32 v%d, v%d, v%d'%(MQ,MQ,MQ+1))
    e('v_rcp_f32 v%d, v%d'%(MQ,MQ))
    e('v_cvt_pk_bf16_f32 v%d, v%d, v%d'%(MQ+2,MQ+4,MQ+5))
    for r in range(0,8,2):
        e('v_pk_mul_f32 %s, %s, %s op_sel_hi:[1,0]'%(vr(O+r,2),vr(O+r,2),vr(MQ,2)))
    e('v_cvt_pk_bf16_f32 v%d, v%d, v%d'%(MQ+3,MQ+6,MQ+7))
    for r in range(4):
        e('v_cvt_pk_bf16_f32 v%d, v%d, v%d'%(MQ+4+r,O+2*r,O+2*r+1))
    e('s_mov_b64 exec, s[%d:%d]'%(sEXQ,sEXQ+1))
    e('ds_write_b128 v%d, %s'%(vOW,vr(MQ+4,4))); lg.issue('ow')
    e('s_mov_b64 exec, -1')
    if 'nopub' not in opt: e('buffer_store_dwordx2 %s, v%d, s[%d:%d], s%d offen offset:8%s'%(vr(MQ+2,2),vL16,S_WS,S_WS+3,sKM,SC)); vm.issue('vmst')
    OACC=[ACC,ACC+4,ACC+8,ACC+12,VACC,VACC+4,O,O+4]
    e('s_cmp_eq_u32 s%d, %d'%(sS,nsteps-1))
    e('s_cbranch_scc1 L_rec_done')
    for b in OACC[:6]:
        e('v_mov_b64 %s, 0'%vr(b,2)); e('v_mov_b64 %s, 0'%vr(b+2,2))
    lg.wait('ow')
    stamp(8)
    e('s_barrier')
    stamp(9)
    OA=VX
    e('ds_read_b128 %s, v%d offset:%d'%(vr(OA,4),vL16,L_O)); lg.issue('oa0')
    e('ds_read_b128 %s, v%d offset:%d'%(vr(OA+4,4),vL16,L_O+1024)); lg.issue('oa1')
    wo(2)
    for b in OACC[6:]:
        e('v_mov_b64 %s, 0'%vr(b,2)); e('v_mov_b64 %s, 0'%vr(b+2,2))
    fill(P.get('oa',5))
    post=[]
    done_first=False
    def mkpost(tt):
        b=OACC[tt]; T=MQ+4*(tt>>2)+(tt&3)
        r=['v_pk_add_f32 %s, %s, %s'%(vr(b,2),vr(b,2),vr(b+2,2)), 'v_cvt_pk_bf16_f32 v%d, v%d, v%d'%(T,b,b+1)]
        if tt&3==0: r.append('v_and_or_b32 v%d, v%d, -2, s%d'%(T,T,sTAG))
        if tt&3==3 and 'nost' not in opt: r.append('buffer_store_dwordx4 %s, v%d, s[%d:%d], s%d offen'%(vr(MQ+4*(tt>>2),4),vP1W,S_WS,S_WS+3,sP1W+(tt>>2)))
        return r
    for i,(tt,k2) in enumerate(order):
        if i==0: lg.wait('oa0')
        if i==2: lg.wait('oa1')
        lg.wait(('wo',i,1))
        if 'noO' not in opt: e('v_smfmac_f32_16x16x64_bf16 %s, %s, %s, v%d'%(vr(OACC[tt],4),vr(OA+4*k2,4),vr(WB[i%NWB],8),vIDX))
        if wq: wo(2)
        else:
            if not post and i>=10 and not done_first:
                for t_ in range(4): post+=mkpost(t_)
                done_first=True
            if post: e(post.pop(0))
            else: fill(1)
    assert not wq
    if not done_first:
        for t_ in range(4): post+=mkpost(t_)
    for t_ in range(4,8): post+=mkpost(t_)
    for x in post: e(x)
    SEL=KX
    e('ds_read_b128 %s, v%d offset:%d'%(vr(SEL,4),vL16,L_SEL))
    e('v_xor_b32 v%d, 8192, v%d'%(vKX,vKX))
    e('s_xor_b32 s%d, s%d, 8192'%(sKM0,sKM0)); e('s_add_u32 s%d, s%d, 0x40000'%(sVX,sVX)); e('s_add_u32 s%d, s%d, 0x20000'%(sKM,sKM))
    e('s_add_u32 s%d, s%d, 1'%(sS,sS)); e('s_cmp_lt_u32 s%d, 62'%sS); e('s_cselect_b32 s%d, 0x40000, 0'%sT0); e('s_add_u32 s%d, s%d, s%d'%(sKX,sKX,sT0))
    for r in range(ACC,ACC+24,2): e('v_mov_b64 %s, 0'%vr(r,2))
    stamp(10)
    if 'solo' in opt:
        e('s_waitcnt vmcnt(0) lgkmcnt(0)')
        fill(30)
        e('s_branch L_have_mem')
    fill(P['d1'])
    P1=MF; X=KX+8
    def poll1(first):
        for i in range(2):
            if not first: e('s_mov_b64 exec, s[%d:%d]'%(sPN+2*i,sPN+2*i+1))
            e('buffer_load_dwordx4 %s, v%d, s[%d:%d], s%d offen sc1'%(vr(P1+4*i,4),vP1R,S_WS,S_WS+3,sP1R+i))
        if not first: e('s_mov_b64 exec, -1')
        fill(P['p1'] if first else P['r1'])
        e('s_waitcnt vmcnt(0) lgkmcnt(0)')
        e('v_mfma_f32_16x16x32_bf16 %s, %s, %s, 0'%(vr(X,4),vr(SEL,4),vr(P1,4)))
        for i in range(2): e('v_and_b32 v%d, 1, v%d'%(MQ+i,P1+4*i))
        e('v_mfma_f32_16x16x32_bf16 %s, %s, %s, %s'%(vr(X,4),vr(SEL,4),vr(P1+4,4),vr(X,4)))
        for i in range(2): e('v_cmp_ne_u32 s[%d:%d], s%d, v%d'%(sPN+2*i,sPN+2*i+1,sTAG,MQ+i))
        e('v_mov_b32 v%d, -1'%(X+6))
        fill(3)
        e('s_or_b64 s[%d:%d], s[%d:%d], s[%d:%d]'%(sT2,sT3,sPN,sPN+1,sPN+2,sPN+3))
    poll1(True)
    e('s_cbranch_scc0 L_poll1_ok')
    a.label('L_poll1')
    poll1(False)
    e('s_cbranch_scc0 L_poll1_ok')
    budget('L_poll1',3)
    a.label('L_poll1_ok')
    stamp(12)
    a.fence(1)
    for k in (8,4):
        for r in range(4):
            e('v_add_f32_dpp v%d, v%d, v%d row_ror:%d row_mask:0xf bank_mask:0xf'%(X+r,X+r,X+r,k))
    e('v_cvt_pk_bf16_f32 v%d, v%d, v%d'%(X+4,X,X+2)); e('v_cvt_pk_bf16_f32 v%d, v%d, v%d'%(X+5,X+1,X+3))
    e('v_min_u32 v%d, -2, v%d'%(X+4,X+4)); e('v_min_u32 v%d, -2, v%d'%(X+5,X+5))
    e('s_mov_b64 exec, s[%d:%d]'%(sEXM,sEXM+1))
    e('buffer_store_dword v%d, v%d, s[%d:%d], s%d offen'%(X+4,vM2W,S_WS,S_WS+3,sRB))
    e('buffer_store_dword v%d, v%d, s[%d:%d], s%d offen offset:16'%(X+5,vM2W,S_WS,S_WS+3,sRB))
    e('buffer_store_dword v%d, v%d, s[%d:%d], s%d offen'%(X+6,vM2W,S_WS,S_WS+3,sRA))
    e('buffer_store_dword v%d, v%d, s[%d:%d], s%d offen offset:16'%(X+6,vM2W,S_WS,S_WS+3,sRA))
    e('s_mov_b64 exec, -1')
    fill(1)
    e('s_mov_b32 s%d, s%d'%(sT0,sRA)); e('s_mov_b32 s%d, s%d'%(sRA,sRB)); fill(1); e('s_mov_b32 s%d, s%d'%(sRB,sRC)); e('s_mov_b32 s%d, s%d'%(sRC,sT0))
    fill(1)
    e('s_xor_b32 s%d, s%d, 1'%(sTAG,sTAG))
    if FUSED:
        e('v_cmp_ge_u32 vcc, s%d, v%d'%(sNEED,vONE))
        fill(4)
        e('s_cbranch_vccz L_kv_ok')
        e('v_and_b32 v%d, 0x30, v%d'%(MQ+7,vL16))
        a.label('L_kvspin')
        e('buffer_load_dword v%d, v%d, s[%d:%d], s%d offen sc1'%(vONE,MQ+7,S_WS,S_WS+3,sT1)); e('s_waitcnt vmcnt(0)')
        e('v_cmp_ge_u32 vcc, s%d, v%d'%(sNEED,vONE)); e('s_cbranch_vccz L_kv_ok')
        budget('L_kvspin',6)
        a.label('L_kv_ok')
    stamp(13)
    fill(P['d2'])
    e('s_branch L_step')
    a.label('L_rec_done')
    e('s_waitcnt vmcnt(0) lgkmcnt(0)')
    if ST:
        e('s_lshl_b32 s%d, s%d, 2'%(sT0,sH)); e('s_add_u32 s%d, s%d, s%d'%(sT0,sT0,sW)); e('s_lshl_b32 s%d, s%d, 7'%(sT0,sT0)); e('s_add_u32 s%d, s%d, 0x%x'%(sT0,sT0,WS_MISC))
        e('s_mov_b64 exec, 1')
        for i in range(NST):
            e('v_mov_b32 v16, s%d'%(sACC0+i))
            e('buffer_store_dword v16, v15, s[%d:%d], s%d offen offset:%d'%(S_WS,S_WS+3,sT0,4*i))
        e('v_mov_b32 v16, s%d'%sBUD)
        e('buffer_store_dword v16, v15, s[%d:%d], s%d offen offset:%d'%(S_WS,S_WS+3,sT0,4*NST))
        e('s_mov_b64 exec, -1')
    if FUSED:
        e('s_barrier')
        e('v_mov_b32 v%d, %d'%(MQ,nsteps))
        e('s_cmp_eq_u32 s%d, 0'%sW)
        e('s_cselect_b64 exec, 1, 0')
        e('buffer_store_dword v%d, v15, s[%d:%d], s%d offen sc1'%(MQ,S_WS,S_WS+3,sPROG))
        e('s_mov_b64 exec, -1')
    e('s_waitcnt vmcnt(0)')
    e('s_endpgm')
    a.label('L_abort')
    e('s_waitcnt vmcnt(0) lgkmcnt(0)')
    e('s_lshl_b32 s%d, s%d, 8'%(sT1,sS)); e('s_or_b32 s%d, s%d, s%d'%(sT0,sT0,sT1))
    e('v_mov_b32 v16, s%d'%sT0); e('v_mov_b32 v17, %d'%DBG_ABORT)
    e('s_mov_b64 exec, 1')
    e('buffer_store_dword v16, v17, s[%d:%d], 0 offen sc1'%(S_DBG,S_DBG+3))
    e('s_waitcnt vmcnt(0)')
    e('s_endpgm')

from gen_rec import HEADER, kd, srd

def rec_only_kernel(nsteps=64,opt=()):
    a=Asm()
    name='rec_kernel'
    a.raw(HEADER+'; @launch kernel=%s grid=(256,1,1) block=(256,1,1) lds=%d'%(name,LDS_BYTES))
    a.raw('.amdgcn_target "amdgcn-amd-amdhsa--gfx950"\n.text\n.globl %s\n.p2align 8\n.type %s,@function\n%s:'%(name,name,name))
    rec_body(a,nsteps,opt)
    a.raw(kd(name))
    return a

def rec_body(a,nsteps,opt):
    e=a.e
    e('s_load_dwordx2 s[4:5], s[0:1], 8')
    e('s_load_dwordx4 s[%d:%d], s[0:1], 16'%(sPWQ,sPWQ+3))
    e('s_load_dwordx4 s[%d:%d], s[0:1], 32'%(sPWV,sPWV+3))
    e('s_load_dwordx4 s[68:71], s[0:1], 112')
    e('s_getreg_b32 s3, hwreg(HW_REG_XCC_ID, 0, 4)')
    e('v_lshrrev_b32 v1, 6, v0')
    e('v_readfirstlane_b32 s%d, v1'%sW)
    e('s_waitcnt lgkmcnt(0)')
    srd(e,S_WS,70,WS_BYTES); srd(e,S_DBG,68,256); srd(e,S_M0,4,8192); srd(e,S_W,sPWQ,4*MB)
    e('s_cmp_lg_u32 s3, 0')
    e('s_cbranch_scc1 L_exit')
    e('v_cmp_eq_u32 vcc, 0, v0')
    e('s_and_saveexec_b64 s[%d:%d], vcc'%(sT2,sT3))
    e('s_cbranch_execz L_noticket')
    e('v_mov_b32 v1, 1'); e('v_mov_b32 v2, %d'%DBG_TICKET)
    e('buffer_atomic_add v1, v2, s[%d:%d], 0 offen sc0'%(S_DBG,S_DBG+3))
    e('s_waitcnt vmcnt(0)')
    e('v_mov_b32 v2, %d'%L_MISC)
    e('ds_write_b32 v2, v1')
    e('s_waitcnt lgkmcnt(0)')
    a.label('L_noticket')
    e('s_mov_b64 exec, -1')
    e('s_barrier')
    e('v_mov_b32 v2, %d'%L_MISC)
    e('ds_read_b32 v1, v2')
    e('s_waitcnt lgkmcnt(0)')
    e('v_readfirstlane_b32 s%d, v1'%sH)
    e('s_nop 3')
    e('s_cmp_ge_u32 s%d, 32'%sH)
    e('s_cbranch_scc1 L_exit')
    gen_rec(a,nsteps,opt)
    a.label('L_exit')
    e('s_endpgm')

if __name__=='__main__':
    import sys
    ns=int(sys.argv[2]) if len(sys.argv)>2 else 64
    a=rec_only_kernel(ns,tuple(sys.argv[3:]))
    open(sys.argv[1],'w').write(a.text())
    print('nops inserted',a.nops,'lines',len(a.out))
```

```python
MB=1<<20
WS_Q  = 0*MB
WS_K  = 16*MB
WS_V  = 32*MB
WS_KM = 48*MB
WS_VM = 56*MB
WS_P1 = 60*MB
WS_M2 = 61*MB
WS_O  = 64*MB
WS_MISC = 80*MB
WS_BYTES = 256*MB
L_MEM=0; L_QK=8192; L_O=12288; L_MISC=14336; L_KX=16384; L_WO=32768; LDS_BYTES=163840
DBG_TICKET=0
DBG_INIT=8*4
DBG_PROG=64
DBG_KV=192
WS_G   = WS_MISC + 0x100000
WS_KEY = WS_MISC + 0x110000
WS_SEL = WS_MISC + 0x120000
WS_IDX = WS_MISC + 0x130000
WS_H   = WS_MISC + 0x140000
WS_Y   = WS_MISC + 0x150000
WS_FL   = WS_MISC + 0x200000
FL_REC  = WS_FL
FL_G    = WS_FL + 8192
FL_O    = WS_FL + 12288
FL_W    = WS_FL + 20480
FL_BYTES= 24576
WS_WOF  = WS_MISC + 0x400000
DBG_ABORT=9*4; DBG_BT=10*4; DBG_RT=11*4; DBG_T8=12*4; DBG_UP=13*4; DBG_DN=14*4; DBG_FRDY=15*4
```

```python
from asmdsl import *
from layout import *
import gen_rec2 as R
import gen_bulk as B
import sys
NAME='gated_mix__memory_aug_recurrent_mem_tr__moe_arch_mod__prompt_kernel'
def ticket(a,tag,off,dst):
    e=a.e
    e('v_cmp_eq_u32 vcc, 0, v0')
    e('s_and_saveexec_b64 s[46:47], vcc')
    e('s_cbranch_execz L_nt_%s'%tag)
    e('v_mov_b32 v1, 1'); e('v_mov_b32 v2, %s'%off)
    e('buffer_atomic_add v1, v2, s[%d:%d], 0 offen sc0'%(B.S_DBG,B.S_DBG+3))
    e('s_waitcnt vmcnt(0)')
    e('v_mov_b32 v2, %d'%L_MISC); e('ds_write_b32 v2, v1'); e('s_waitcnt lgkmcnt(0)')
    a.label('L_nt_%s'%tag)
    e('s_mov_b64 exec, -1')
    e('s_barrier')
    e('v_mov_b32 v2, %d'%L_MISC); e('ds_read_b32 v1, v2'); e('s_waitcnt lgkmcnt(0)')
    e('v_readfirstlane_b32 s%d, v1'%dst)
    e('s_nop 3')
    e('s_barrier')
def ldp(a,reg,off): a.e('s_load_dwordx2 s[%d:%d], s[0:1], %d'%(reg,reg+1,off))

def build(opt):
    a=Asm(); e=a.e
    a.raw(R.HEADER+'; @launch grid=(256,1,1) block=(256,1,1) lds=%d'%LDS_BYTES)
    a.raw('.amdgcn_target "amdgcn-amd-amdhsa--gfx950"\n.text\n.globl %s\n.p2align 8\n.type %s,@function\n%s:'%(NAME,NAME,NAME))
    e('s_load_dwordx4 s[4:7], s[0:1], 0')
    e('s_load_dwordx4 s[%d:%d], s[0:1], 16'%(B.sPWQ,B.sPWQ+3))
    e('s_load_dwordx4 s[%d:%d], s[0:1], 32'%(B.sPWV,B.sPWV+3))
    e('s_load_dwordx2 s[%d:%d], s[0:1], 104'%(B.sPOUT,B.sPOUT+1))
    e('s_load_dwordx4 s[72:75], s[0:1], 112')
    e('s_getreg_b32 s3, hwreg(HW_REG_XCC_ID, 0, 4)')
    e('v_lshrrev_b32 v1, 6, v0')
    e('v_readfirstlane_b32 s%d, v1'%B.sW)
    e('s_waitcnt lgkmcnt(0)')
    B.srd(e,B.S_WS,74,WS_BYTES); B.srd(e,B.S_DBG,72,256); B.srd(e,B.S_W,B.sPWQ,4*MB)
    B.srd(e,R.S_M0,6,8192)
    B.srd(e,B.S_OUT,B.sPOUT,2*MB)
    e('s_cmp_lg_u32 s3, 0')
    e('s_cbranch_scc1 L_bulk')
    ticket(a,'rec',DBG_TICKET,R.sH)
    e('s_cmp_ge_u32 s%d, 32'%R.sH)
    e('s_cbranch_scc1 L_bulk')
    R.gen_rec(a,64,('fused',)+opt)
    a.label('L_bulk')
    a.hist=[]
    B.srd(e,B.S_X,4,2*MB)
    sB_=99
    ticket(a,'bulk',DBG_BT,sB_)
    e('s_cmp_ge_u32 s%d, 224'%sB_); e('s_cbranch_scc1 L_end')
    e('s_mov_b32 s%d, 300000'%B.sBUD)
    e('s_cmp_lg_u32 s%d, 0'%sB_); e('s_cbranch_scc1 L_noinit')
    e('v_lshlrev_b32 v1, 4, v0')
    for r in range(4,8): e('v_mov_b32 v%d, 0'%r)
    for i in range(FL_BYTES//4096):
        e('s_mov_b32 s%d, 0x%x'%(B.sT0,WS_FL+i*4096)); e('buffer_store_dwordx4 v[4:7], v1, s[%d:%d], s%d offen sc1'%(B.S_WS,B.S_WS+3,B.sT0))
    e('s_waitcnt vmcnt(0)'); e('s_barrier')
    e('s_cmp_lg_u32 s%d, 0'%B.sW); e('s_cbranch_scc1 L_noinit')
    B.dbg_add(a,DBG_FRDY)
    a.label('L_noinit')
    e('s_cmp_ge_u32 s%d, 192'%sB_); e('s_cbranch_scc1 L_moe')
    e('s_mov_b32 s%d, 0'%B.sI1); e('s_mov_b32 s%d, s%d'%(B.sI0,sB_))
    for k in range(3):
        e('s_cmp_ge_u32 s%d, 48'%B.sI0); e('s_cselect_b32 s%d, 48, 0'%B.sT0); e('s_cselect_b32 s%d, 1, 0'%B.sT1)
        e('s_sub_u32 s%d, s%d, s%d'%(B.sI0,B.sI0,B.sT0)); e('s_add_u32 s%d, s%d, s%d'%(B.sI1,B.sI1,B.sT1))
    B.gen_gemm(a,'g',flags=True)
    e('s_cmp_lt_u32 s%d, 160'%sB_); e('s_cbranch_scc1 L_oproj')
    e('s_sub_u32 s%d, s%d, 128'%(sB_,sB_))
    e('s_branch L_attn')
    a.label('L_moe')
    e('s_sub_u32 s%d, s%d, 192'%(sB_,sB_))
    ldp(a,B.sE,64); ldp(a,B.sG,96); e('s_waitcnt lgkmcnt(0)')
    e('s_lshl_b32 s%d, s%d, 2'%(B.sI0,sB_)); e('s_add_u32 s%d, s%d, s%d'%(B.sI0,B.sI0,B.sW))
    B.router(a,'r')
    B.dbg_add(a,DBG_RT)
    e('s_cmp_ge_u32 s%d, 28'%sB_); e('s_cbranch_scc1 L_down')
    ldp(a,B.sE,72); ldp(a,B.sG,80); e('s_waitcnt lgkmcnt(0)')
    e('s_mov_b32 s%d, s%d'%(B.sI0,sB_))
    B.moe_up(a,'u')
    B.spin_dbg(a,'L_w_t8',DBG_T8,1,11)
    B.moe_up2(a,'u')
    B.dbg_add(a,DBG_UP)
    e('s_branch L_attn')
    a.label('L_down')
    e('s_cmp_lg_u32 s%d, 28'%sB_); e('s_cbranch_scc1 L_not8')
    e('s_cmp_lg_u32 s%d, 0'%B.sW); e('s_cbranch_scc1 L_not8')
    B.spin_dbg(a,'L_w_rt',DBG_RT,128,12)
    e('v_mov_b32 v11, 0')
    B.top8(a,'t')
    B.dbg_add(a,DBG_T8)
    a.label('L_not8')
    ldp(a,B.sE,88); e('s_waitcnt lgkmcnt(0)')
    e('s_sub_u32 s%d, s%d, 28'%(B.sI0,sB_)); e('s_lshl_b32 s%d, s%d, 1'%(B.sI0,B.sI0))
    e('s_mov_b32 s%d, 0'%B.sI1)
    a.label('L_down_loop')
    B.moe_down(a,'d')
    B.spin_dbg(a,'L_w_up',DBG_UP,112,13)
    B.moe_down2(a,'d')
    e('s_add_u32 s%d, s%d, 1'%(B.sI0,B.sI0)); e('s_add_u32 s%d, s%d, 1'%(B.sI1,B.sI1)); e('s_cmp_lt_u32 s%d, 2'%B.sI1)
    a.fence(); e('s_cbranch_scc1 L_down_loop')
    B.dbg_add(a,DBG_DN)
    a.label('L_attn')
    a.fence()
    e('s_waitcnt vmcnt(0) lgkmcnt(0)')
    e('s_barrier')
    B.attn_setup(a,0)
    B.spin_dbg(a,'L_a_frdy',DBG_FRDY,1,14)
    e('s_lshl_b32 s%d, s%d, 2'%(B.sT0,sB_)); e('s_add_u32 s%d, s%d, s%d'%(B.sT0,B.sT0,B.sW))
    e('s_and_b32 s%d, s%d, 31'%(B.sI1,B.sT0)); e('s_lshr_b32 s%d, s%d, 5'%(B.sI0,B.sT0))
    e('v_min_u32 v10, 5, v1'); e('v_lshlrev_b32 v10, 4, v10'); e('v_mov_b32 v11, 0'); e('v_mov_b32 v12, 1')
    a.label('L_attn_loop')
    e('s_lshl_b32 s%d, s%d, 7'%(B.sD,B.sI1)); e('s_lshr_b32 s%d, s%d, 4'%(B.sT0,B.sI0)); e('s_lshl_b32 s%d, s%d, 2'%(B.sT0,B.sT0))
    e('s_add_u32 s%d, s%d, s%d'%(B.sD,B.sD,B.sT0)); e('s_add_u32 s%d, s%d, 0x%x'%(B.sD,B.sD,FL_G))
    e('s_and_b32 s%d, s%d, 15'%(B.sE,B.sI0))
    B.spin(a,'L_a_wg','buffer_load_dword v13, v10, s[%d:%d], s%d offen sc1'%(B.S_WS,B.S_WS+3,B.sD),'v_cmp_ge_u32 vcc, s%d, v13'%B.sE,15)
    B.attn_loads_x(a)
    e('s_lshl_b32 s%d, s%d, 8'%(B.sD,B.sI1)); e('s_add_u32 s%d, s%d, 0x%x'%(B.sD,B.sD,FL_REC))
    B.spin(a,'L_a_wr','buffer_load_dword v13, v11, s[%d:%d], s%d offen sc1'%(B.S_WS,B.S_WS+3,B.sD),'v_cmp_ge_u32 vcc, s%d, v13'%B.sI0,16,sleep=2)
    B.attn_item(a)
    e('s_lshl_b32 s%d, s%d, 7'%(B.sD,B.sI0)); e('s_lshl_b32 s%d, s%d, 2'%(B.sT0,B.sI1)); e('s_add_u32 s%d, s%d, s%d'%(B.sD,B.sD,B.sT0)); e('s_add_u32 s%d, s%d, 0x%x'%(B.sD,B.sD,FL_O))
    e('s_waitcnt vmcnt(0)')
    e('s_mov_b64 exec, 1'); e('buffer_store_dword v12, v11, s[%d:%d], s%d offen sc1'%(B.S_WS,B.S_WS+3,B.sD)); e('s_mov_b64 exec, -1')
    e('s_add_u32 s%d, s%d, 8'%(B.sI0,B.sI0)); e('s_cmp_lt_u32 s%d, 64'%B.sI0)
    a.fence(); e('s_cbranch_scc1 L_attn_loop')
    e('s_branch L_end')
    a.label('L_oproj')
    a.fence()
    e('s_waitcnt vmcnt(0) lgkmcnt(0)')
    e('s_and_b32 s%d, s%d, 15'%(B.sI1,sB_))
    B.oproj_setup(a)
    B.spin_dbg(a,'L_o_dn',DBG_DN,16,17)
    e('s_lshr_b32 s%d, s%d, 4'%(B.sI0,sB_))
    e('v_and_b32 v14, 31, v1'); e('v_lshlrev_b32 v14, 2, v14')
    a.label('L_o_loop')
    e('s_lshl_b32 s%d, s%d, 7'%(B.sD,B.sI0)); e('s_add_u32 s%d, s%d, 0x%x'%(B.sD,B.sD,FL_O))
    B.spin(a,'L_o_w','buffer_load_dword v15, v14, s[%d:%d], s%d offen sc1'%(B.S_WS,B.S_WS+3,B.sD),'v_cmp_eq_u32 vcc, 0, v15',18,sleep=2)
    B.oproj_item(a,'o')
    e('s_add_u32 s%d, s%d, 10'%(B.sI0,B.sI0)); e('s_cmp_lt_u32 s%d, 64'%B.sI0)
    a.fence(); e('s_cbranch_scc1 L_o_loop')
    a.label('L_end')
    e('s_waitcnt vmcnt(0)')
    e('s_endpgm')
    a.label('L_babort')
    e('v_mov_b32 v16, s%d'%B.sT0); e('v_mov_b32 v17, %d'%DBG_ABORT)
    e('s_mov_b64 exec, 1')
    e('buffer_store_dword v16, v17, s[%d:%d], 0 offen sc1'%(B.S_DBG,B.S_DBG+3))
    e('s_waitcnt vmcnt(0)')
    e('s_endpgm')
    a.raw(R.kd(NAME,sgpr=102))
    return a
if __name__=='__main__':
    a=build(tuple(sys.argv[2:]))
    open(sys.argv[1],'w').write(a.text())
    print('nops',a.nops,'lines',len(a.out))
```

```python
from asmdsl import *
from layout import *
import math, struct
def f32bits(x): return struct.unpack('<I',struct.pack('<f',x))[0]

S_WS=8; S_DBG=12; S_W=16; S_M0=20
sH=24; sW=25; sS=26; sTAG=27; sRA=28; sRB=29; sRC=30; sT0=31
sP1W=32; sP1R=34
sKX=40; sVX=41; sKM=42; sKM0=44; sT1=45; sT2=46; sT3=47
sC=48; sNC=50; sEXQ=52; sEXM=54
sPWQ=56; sPWK=58; sPWV=60; sPWO=62
sPROG=64; sBUD=65; sFLG=66; sNEED=67
sPN=92
sEX0=4
sPAR=6
FIL=0
vL16=1; vM2R=2; vQKW=3; vQKR=4; vKX=5; vOW=6; vWO0=7; vWO1=8; vP1W=9; vP1R=10; vM2W=11; vIDX=13; vONE=12
vVM1=14
MQ=16; MF=24; F=24; ACC=56; VACC=72; KX=80; VX=112; PX=120; PM=124; VM0=126
WV=128

def wreg(x,t,ks):
    if x<2: return ar(((x*2+t)*8+ks)*8,8)
    return vr(WV+(t*8+ks)*8,8)
def wreg2(x,t,ks,p):
    if x<2: return ar(((x*2+t)*8+ks)*8+p,2)
    return vr(WV+(t*8+ks)*8+p,2)

def gen_rec(a, nsteps=64, opt=()):
    e=a.e
    SC='' if 'plainpub' in opt else ' sc1'
    P=dict(p2=46,p1=46,r1=40,r2=40,w2=2,mf=6,d1=20,d2=20,ds=10,f1=8,f2=8,g1=30,g2=30)
    STL=None
    for o in opt:
        if o.startswith('st='): STL=[int(x) for x in o[3:].split(',')]+[15]
        elif '=' in o: k_,v_=o.split('='); P[k_]=int(v_)
    lg=Cnt(a,'lgkmcnt',15); vm=Cnt(a,'vmcnt',63)
    l,n,g,t0,t1,t2=16,17,18,19,20,21
    e('v_and_b32 v%d, 63, v0'%l); e('v_and_b32 v%d, 15, v0'%n); e('v_bfe_u32 v%d, v0, 4, 2'%g)
    e('v_lshlrev_b32 v%d, 4, v%d'%(vL16,l))
    e('s_lshl_b32 s%d, s%d, 11'%(sT0,sW)); e('v_add_u32 v%d, s%d, v%d'%(vM2R,sT0,vL16))
    e('v_lshrrev_b32 v%d, 2, v%d'%(t0,n)); e('v_xor_b32 v%d, v%d, v%d'%(t0,t0,g)); e('v_lshlrev_b32 v%d, 3, v%d'%(t0,t0))
    e('v_lshl_add_u32 v%d, v%d, 5, v%d'%(t0,n,t0))
    e('s_lshl_b32 s%d, s%d, 10'%(sT0,sW)); e('s_add_u32 s%d, s%d, %d'%(sT0,sT0,L_QK)); e('v_add_u32 v%d, s%d, v%d'%(vQKW,sT0,t0))
    e('v_lshrrev_b32 v%d, 2, v%d'%(t0,n)); e('v_lshl_add_u32 v%d, v%d, 2, v%d'%(t0,g,t0)); e('v_lshlrev_b32 v%d, 5, v%d'%(t0,t0))
    e('v_and_b32 v%d, 3, v%d'%(t1,n)); e('v_xor_b32 v%d, v%d, v%d'%(t1,t1,g)); e('v_lshl_add_u32 v%d, v%d, 3, v%d'%(t0,t1,t0))
    e('v_add_u32 v%d, %d, v%d'%(vQKR,L_QK,t0))
    e('v_add_u32 v%d, %d, v%d'%(vKX,L_KX,vL16))
    e('v_and_b32 v%d, 13, v%d'%(t0,n)); e('v_lshl_add_u32 v%d, v%d, 4, v%d'%(t0,g,t0)); e('v_lshlrev_b32 v%d, 4, v%d'%(t0,t0))
    e('s_lshr_b32 s%d, s%d, 1'%(sT0,sW)); e('s_lshl_b32 s%d, s%d, 10'%(sT0,sT0)); e('s_and_b32 s%d, s%d, 1'%(sT1,sW)); e('s_lshl_b32 s%d, s%d, 5'%(sT1,sT1))
    e('s_add_u32 s%d, s%d, s%d'%(sT0,sT0,sT1)); e('s_add_u32 s%d, s%d, %d'%(sT0,sT0,L_O)); e('v_add_u32 v%d, s%d, v%d'%(vOW,sT0,t0))
    e('s_lshl_b32 s%d, s%d, 14'%(sT0,sW)); e('s_add_u32 s%d, s%d, %d'%(sT0,sT0,L_WO))
    e('v_add_u32 v%d, s%d, v%d'%(vWO0,sT0,vL16)); e('v_add_u32 v%d, 0x10000, v%d'%(vWO1,vWO0))
    e('v_lshrrev_b32 v%d, 2, v%d'%(t0,n)); e('v_lshlrev_b32 v%d, 13, v%d'%(t0,t0)); e('v_lshl_add_u32 v%d, v%d, 6, v%d'%(t0,g,t0))
    e('v_and_b32 v%d, 3, v%d'%(t1,n)); e('v_lshl_add_u32 v%d, v%d, 4, v%d'%(t0,t1,t0))
    e('s_lshl_b32 s%d, s%d, 15'%(sT0,sW)); e('s_lshl_b32 s%d, s%d, 8'%(sT1,sH)); e('s_add_u32 s%d, s%d, s%d'%(sT0,sT0,sT1))
    e('v_add_u32 v%d, s%d, v%d'%(vP1W,sT0,t0))
    e('v_lshrrev_b32 v%d, 3, v%d'%(t0,l)); e('v_lshlrev_b32 v%d, 8, v%d'%(t0,t0)); e('v_and_b32 v%d, 7, v%d'%(t1,l)); e('v_lshl_add_u32 v%d, v%d, 4, v%d'%(t0,t1,t0))
    e('s_and_b32 s%d, s%d, 1'%(sT0,sW)); e('s_lshl_b32 s%d, s%d, 7'%(sT0,sT0)); e('v_add_u32 v%d, s%d, v%d'%(vP1R,sT0,t0))
    e('v_and_b32 v%d, 3, v%d'%(t0,l)); e('v_lshlrev_b32 v%d, 2, v%d'%(t0,t0)); e('v_lshl_add_u32 v%d, v%d, 5, v%d'%(t0,g,t0))
    e('v_bfe_u32 v%d, v%d, 2, 1'%(t1,l)); e('v_lshl_add_u32 v%d, v%d, 6, v%d'%(t0,t1,t0))
    e('v_bfe_u32 v%d, v%d, 3, 1'%(t1,l)); e('v_lshl_add_u32 v%d, v%d, 4, v%d'%(t0,t1,t0))
    e('s_lshl_b32 s%d, s%d, 8'%(sT0,sH)); e('s_and_b32 s%d, s%d, 1'%(sT1,sW)); e('s_lshl_b32 s%d, s%d, 7'%(sT1,sT1)); e('s_add_u32 s%d, s%d, s%d'%(sT0,sT0,sT1))
    e('v_add_u32 v%d, s%d, v%d'%(vM2W,sT0,t0))
    e('s_mov_b32 s%d, 0xff00ff00'%sPAR); e('s_mov_b32 s%d, 0xff00ff00'%(sPAR+1))
    e('v_and_b32 v%d, 2, v%d'%(t0,n)); e('v_cmp_eq_u32 vcc, 0, v%d'%t0)
    e('v_mov_b32 v%d, 0xeeeeeeee'%t0); e('v_mov_b32 v%d, 0x44444444'%t1); e('v_cndmask_b32 v%d, v%d, v%d, vcc'%(vIDX,t0,t1))
    e('v_mov_b32 v15, 0')
    c=(128**-0.5)*math.log2(math.e)
    e('s_mov_b32 s%d, 0x%08x'%(sC,f32bits(c))); e('s_mov_b32 s%d, 0x%08x'%(sC+1,f32bits(c))); e('s_mov_b32 s%d, 0x%08x'%(sNC,f32bits(-c)))
    e('s_mov_b32 s%d, 0xcccccccc'%sEXQ); e('s_mov_b32 s%d, 0xcccccccc'%(sEXQ+1))
    e('s_cmp_eq_u32 s%d, 0'%sW); e('s_cselect_b64 s[%d:%d], 1, 0'%(sEX0,sEX0+1))
    e('s_cmp_lt_u32 s%d, 2'%sW); e('s_cselect_b32 s%d, -1, 0'%sEXM); e('s_mov_b32 s%d, 0'%(sEXM+1))
    for q in range(2): e('s_mov_b32 s%d, 0x%x'%(sP1W+q,WS_P1+q*131072))
    e('s_lshl_b32 s%d, s%d, 13'%(sT0,sH))
    for i in range(2): e('s_add_u32 s%d, s%d, 0x%x'%(sP1R+i,sT0,WS_P1+i*4096))
    e('s_mov_b32 s%d, 0x%x'%(sRA,WS_M2)); e('s_mov_b32 s%d, 0x%x'%(sRB,WS_M2+8192)); e('s_mov_b32 s%d, 0x%x'%(sRC,WS_M2+16384))
    e('s_lshl_b32 s%d, s%d, 13'%(sT0,sH)); e('s_add_u32 s%d, s%d, 0x%x'%(sKX,sT0,WS_K)); e('s_add_u32 s%d, s%d, 0x%x'%(sVX,sT0,WS_V))
    e('s_lshl_b32 s%d, s%d, 12'%(sT0,sH)); e('s_lshl_b32 s%d, s%d, 10'%(sT1,sW)); e('s_add_u32 s%d, s%d, s%d'%(sT0,sT0,sT1)); e('s_add_u32 s%d, s%d, 0x%x'%(sKM,sT0,WS_KM))
    e('s_lshl_b32 s%d, s%d, 11'%(sT0,sW)); e('s_add_u32 s%d, s%d, %d'%(sKM0,sT0,L_KX))
    FUSED='fused' in opt
    e('s_lshl_b32 s%d, s%d, 8'%(sT0,sH)); e('s_add_u32 s%d, s%d, 0x%x'%(sPROG,sT0,FL_REC))
    e('s_lshl_b32 s%d, s%d, 7'%(sT0,sH)); e('s_add_u32 s%d, s%d, 0x%x'%(sFLG,sT0,FL_G))
    e('s_mov_b32 s%d, 0'%sS); e('s_mov_b32 s%d, 1'%sTAG); e('s_mov_b32 s%d, 400000'%sBUD)
    ST='stamps' in opt
    sTM=68; sPREV=70; sACC0=72; NST=16
    if ST:
        for i in range(NST): e('s_mov_b32 s%d, 0'%(sACC0+i))
        e('s_mov_b32 s%d, 0'%sPREV)
    def stamp(i):
        if not ST: return
        if STL is not None and i not in STL: return
        e('s_memtime s[%d:%d]'%(sTM,sTM+1)); e('s_waitcnt lgkmcnt(0)'); lg.q=[]
        e('s_sub_u32 s%d, s%d, s%d'%(sPREV+1,sTM,sPREV)); e('s_add_u32 s%d, s%d, s%d'%(sACC0+i,sACC0+i,sPREV+1)); e('s_mov_b32 s%d, s%d'%(sPREV,sTM))
    def rt(i):
        if 'prof' not in opt: return
        e('s_memrealtime s[%d:%d]'%(sTM,sTM+1)); e('s_waitcnt lgkmcnt(0)'); lg.q=[]
        e('v_mov_b32 v22, s%d'%sTM); e('v_mov_b32 v23, 0')
        e('s_lshl_b32 s%d, s%d, 5'%(sTM+2,sH)); e('s_add_u32 s%d, s%d, 0x%x'%(sTM+2,sTM+2,WS_MISC+0x8000+4*i))
        e('s_mov_b64 exec, 1'); e('buffer_store_dword v22, v23, s[%d:%d], s%d offen'%(S_WS,S_WS+3,sTM+2)); e('s_mov_b64 exec, -1')
        e('s_waitcnt vmcnt(0)'); vm.q=[]
    rt(0)
    def budget(lbl,code):
        e('s_sub_u32 s%d, s%d, 1'%(sBUD,sBUD)); e('s_cmp_eq_u32 s%d, 0'%sBUD); e('s_cbranch_scc0 %s'%lbl)
        e('s_mov_b32 s%d, %d'%(sT0,code)); e('s_branch L_abort')

    L_SEL=L_MISC+1024
    e('v_and_b32 v%d, 1, v%d'%(t0,n)); e('v_cmp_eq_u32 vcc, 0, v%d'%t0)
    e('v_mov_b32 v%d, 0x3f800000'%t0); e('v_mov_b32 v%d, 0x3f80'%t1); e('v_cndmask_b32 v%d, v%d, v%d, vcc'%(t0,t0,t1))
    e('v_lshrrev_b32 v%d, 1, v%d'%(t1,n))
    for i in range(4):
        e('v_cmp_eq_u32 vcc, %d, v%d'%(i,t1)); e('v_cndmask_b32 v%d, v15, v%d, vcc'%(24+i,t0))
    e('ds_write_b128 v%d, v[24:27] offset:%d'%(vL16,L_SEL))
    e('s_waitcnt lgkmcnt(0)')
    for r in range(4): e('v_mov_b32 v%d, 0'%(24+r))
    e('v_mov_b32 v28, -1')
    e('s_lshl_b32 s%d, s%d, 11'%(sT0,sW)); e('s_add_u32 s%d, s%d, s%d'%(sT0,sT0,sP1R))
    for i in range(2): e('buffer_store_dwordx4 v[24:27], v%d, s[%d:%d], s%d offen offset:%d'%(vL16,S_WS,S_WS+3,sT0,i*1024))
    e('s_mov_b64 exec, s[%d:%d]'%(sEXM,sEXM+1))
    for sl in (sRA,sRB,sRC):
        e('buffer_store_dword v28, v%d, s[%d:%d], s%d offen'%(vM2W,S_WS,S_WS+3,sl))
    e('s_mov_b64 exec, -1')
    e('s_waitcnt vmcnt(0)')
    e('s_barrier')
    e('v_cmp_eq_u32 vcc, 0, v0')
    e('s_and_saveexec_b64 s[%d:%d], vcc'%(sT2,sT3))
    e('v_mov_b32 v24, 1'); e('v_mov_b32 v25, %d'%DBG_INIT)
    e('buffer_atomic_add v24, v25, s[%d:%d], 0 offen'%(S_DBG,S_DBG+3))
    e('s_mov_b64 exec, -1')
    dv=28
    e('v_lshrrev_b32 v%d, 1, v%d'%(t0,g)); e('v_lshlrev_b32 v%d, 1, v%d'%(t0,t0)); e('v_xor_b32 v%d, v%d, v%d'%(t0,t0,n))
    e('v_lshlrev_b32 v%d, 4, v%d'%(t0,t0)); e('v_lshl_add_u32 v%d, v%d, 13, v%d'%(t0,g,t0))
    e('s_lshl_b32 s%d, s%d, 8'%(sT0,sH)); e('v_add_u32 v%d, s%d, v%d'%(dv,sT0,t0))
    for k in range(1,4): e('v_xor_b32 v%d, %d, v%d'%(dv+k,k<<6,dv))
    r_,cc,row0,Fz=32,33,34,35
    tb=36
    e('v_lshrrev_b32 v%d, 2, v%d'%(r_,n)); e('v_and_b32 v%d, 3, v%d'%(cc,n))
    e('v_lshrrev_b32 v%d, 1, v%d'%(t0,g)); e('v_lshlrev_b32 v%d, 4, v%d'%(row0,t0))
    e('v_and_b32 v%d, 1, v%d'%(t0,g)); e('v_lshl_add_u32 v%d, v%d, 1, v%d'%(row0,t0,row0)); e('v_lshl_or_b32 v%d, v%d, 1, v%d'%(Fz,r_,t0))
    e('v_lshl_add_u32 v%d, v%d, 2, v%d'%(row0,r_,row0))
    e('v_lshrrev_b32 v%d, 1, v%d'%(t0,cc)); e('s_lshl_b32 s%d, s%d, 2'%(sT0,sW)); e('v_add_u32 v%d, s%d, v%d'%(t0,sT0,t0))
    e('v_lshlrev_b32 v%d, 1, v%d'%(t1,Fz)); e('v_xor_b32 v%d, v%d, v%d'%(t0,t0,t1)); e('v_lshlrev_b32 v%d, 4, v%d'%(t0,t0))
    e('v_lshl_add_u32 v%d, v%d, 8, v%d'%(t0,row0,t0))
    e('v_and_b32 v%d, 1, v%d'%(t1,cc)); e('v_lshl_add_u32 v%d, v%d, 3, v%d'%(t0,t1,t0))
    e('v_add_u32 v%d, %d, v%d'%(tb,L_WO,t0)); e('v_xor_b32 v%d, 32, v%d'%(tb+1,tb))
    e('v_add_u32 v%d, 0x10000, v%d'%(tb+2,tb)); e('v_add_u32 v%d, 0x10000, v%d'%(tb+3,tb+1))
    wo_b=40
    e('v_and_b32 v%d, 1, v%d'%(t0,g)); e('v_lshlrev_b32 v%d, 4, v%d'%(row0,t0)); e('v_lshlrev_b32 v%d, 3, v%d'%(Fz,t0))
    e('v_lshrrev_b32 v%d, 1, v%d'%(t0,g)); e('v_lshl_add_u32 v%d, v%d, 2, v%d'%(row0,t0,row0))
    e('v_and_b32 v%d, 1, v%d'%(t0,r_)); e('v_add_u32 v%d, v%d, v%d'%(row0,row0,t0)); e('v_or_b32 v%d, v%d, v%d'%(Fz,Fz,t0))
    e('v_lshrrev_b32 v%d, 1, v%d'%(t0,r_)); e('v_lshl_add_u32 v%d, v%d, 5, v%d'%(row0,t0,row0))
    e('v_lshlrev_b32 v%d, 1, v%d'%(t0,cc)); e('s_lshl_b32 s%d, s%d, 3'%(sT0,sW)); e('v_add_u32 v%d, s%d, v%d'%(t0,sT0,t0))
    e('v_xor_b32 v%d, v%d, v%d'%(t0,t0,Fz)); e('v_lshlrev_b32 v%d, 4, v%d'%(t0,t0))
    e('v_lshl_add_u32 v%d, v%d, 10, v%d'%(t0,row0,t0))
    e('v_add_u32 v%d, %d, v%d'%(wo_b,L_WO,t0)); e('v_xor_b32 v%d, 16, v%d'%(wo_b+1,wo_b))
    e('v_add_u32 v%d, 0x10000, v%d'%(wo_b+2,wo_b)); e('v_add_u32 v%d, 0x10000, v%d'%(wo_b+3,wo_b+1))
    def set_w(ptr,nbytes):
        e('s_mov_b32 s%d, s%d'%(S_W,ptr)); e('s_and_b32 s%d, s%d, 0xffff'%(S_W+1,ptr+1))
        e('s_mov_b32 s%d, 0x%x'%(S_W+2,nbytes)); e('s_mov_b32 s%d, 0x20000'%(S_W+3))
    def dma(nidx):
        area=nidx&1
        if nidx<6:
            x=nidx>>1; half=nidx&1
            set_w((sPWQ,sPWK,sPWV)[x],4*MB)
            e('s_lshl_b32 s%d, s%d, 19'%(sT0,sW)); e('s_add_u32 s%d, s%d, 0x%x'%(sT0,sT0,half*256*8192))
            e('s_lshl_b32 s%d, s%d, 14'%(sT1,sW)); e('s_add_u32 s%d, s%d, 0x%x'%(sT1,sT1,L_WO+area*65536))
            for i in range(16):
                e('s_mov_b32 m0, s%d'%sT1)
                e('buffer_load_dwordx4 v%d, s[%d:%d], s%d offen lds'%(dv+(i&3),S_W,S_W+3,sT0)); vm.issue(('dma',nidx))
                e('s_add_u32 s%d, s%d, 0x8000'%(sT0,sT0)); e('s_add_u32 s%d, s%d, 0x400'%(sT1,sT1))
        else:
            half=nidx&1
            set_w(sPWO,4*MB)
            e('s_lshl_b32 s%d, s%d, 17'%(sT0,sH)); e('s_lshl_b32 s%d, s%d, 14'%(sT1,sW)); e('s_add_u32 s%d, s%d, s%d'%(sT0,sT0,sT1))
            e('s_add_u32 s%d, s%d, 0x%x'%(sT0,sT0,half*65536)); e('s_add_u32 s%d, s%d, 0x%x'%(sT1,sT1,L_WO+area*65536))
            e('s_and_b32 s%d, s%d, 1'%(sT2,sW)); e('s_lshl_b32 s%d, s%d, 7'%(sT2,sT2))
            e('v_xor_b32 v44, s%d, v%d'%(sT2,vL16)); e('v_xor_b32 v45, 16, v44')
            for i in range(16):
                e('s_mov_b32 m0, s%d'%sT1)
                e('buffer_load_dwordx4 v%d, s[%d:%d], s%d offen lds'%(44+(i&1),S_W,S_W+3,sT0)); vm.issue(('dma',nidx))
                e('s_add_u32 s%d, s%d, 0x400'%(sT0,sT0)); e('s_add_u32 s%d, s%d, 0x400'%(sT1,sT1))
    vm.issue('atom')
    dma(0); dma(1)
    for nidx in range(8):
        area=nidx&1
        vm.wait(('dma',nidx))
        e('s_barrier')
        cnt=0
        if nidx<6:
            x=nidx>>1; half=nidx&1
            for t in range(2):
                for ksl in range(4):
                    ks=half*4+ksl
                    for p in range(0,8,2):
                        off=(64*ksl+32*(p>>2)+((p>>1)&1))*256
                        e('ds_read_b64_tr_b16 %s, v%d offset:%d'%(wreg2(x,t,ks,p),tb+2*area+t,off))
                        cnt+=1
                        if cnt%12==0: e('s_waitcnt lgkmcnt(4)')
            e('s_waitcnt lgkmcnt(0)'); e('s_barrier')
            dma(nidx+2)
        else:
            for tt in range(8):
                qq=tt>>2
                for p in range(0,8,2):
                    off=(8*(p>>2)+2*((p>>1)&1))*1024 + 32*qq*16 + 8*(tt&1)
                    e('ds_read_b64_tr_b16 %s, v%d offset:%d'%(vr(64+tt*8+p,2),wo_b+2*area+((tt>>1)&1),off))
                    cnt+=1
                    if cnt%12==0: e('s_waitcnt lgkmcnt(4)')
            e('s_waitcnt lgkmcnt(0)'); e('s_barrier')
            for tt in range(8):
                for hf in range(2):
                    e('ds_write_b128 v%d, %s offset:%d'%((vWO0,vWO1)[area],vr(64+tt*8+4*hf,4),tt*2048+hf*1024))
                if tt%4==3: e('s_waitcnt lgkmcnt(0)')
    e('v_mov_b32 v%d, 0'%(PM+1)); e('v_mov_b32 v%d, 0'%(VM0+1))
    rt(1)
    if FUSED:
        e('v_mov_b32 v25, %d'%DBG_FRDY)
        a.label('L_frdy')
        e('buffer_load_dword v26, v25, s[%d:%d], 0 offen sc1'%(S_DBG,S_DBG+3)); e('s_waitcnt vmcnt(0)')
        e('v_cmp_eq_u32 vcc, 0, v26'); e('s_cbranch_vccz L_frdy_ok'); e('s_sleep 2')
        budget('L_frdy',4)
        a.label('L_frdy_ok')
        e('v_and_b32 v25, 0x30, v%d'%vL16)
        a.label('L_kv0')
        e('buffer_load_dword v26, v25, s[%d:%d], s%d offen sc1'%(S_WS,S_WS+3,sFLG)); e('s_waitcnt vmcnt(0)')
        e('v_cmp_gt_u32 vcc, 2, v26'); e('s_cbranch_vccz L_kv0_ok'); e('s_sleep 2')
        budget('L_kv0',5)
        a.label('L_kv0_ok')
    e('s_mov_b32 m0, s%d'%sKM0)
    e('buffer_load_dwordx4 v%d, s[%d:%d], s%d offen sc1 lds'%(vM2R,S_WS,S_WS+3,sKX))
    e('buffer_load_dwordx4 v%d, s[%d:%d], s%d offen offset:1024 sc1 lds'%(vM2R,S_WS,S_WS+3,sKX))
    e('s_xor_b32 s%d, s%d, 8192'%(sKM0,sKM0)); e('s_add_u32 s%d, s%d, 0x40000'%(sKX,sKX))
    e('v_lshrrev_b32 v%d, 2, v%d'%(t0,n)); e('v_lshlrev_b32 v%d, 11, v%d'%(t0,t0))
    e('v_and_b32 v%d, 1, v%d'%(t1,n)); e('v_lshl_add_u32 v%d, v%d, 10, v%d'%(t0,t1,t0)); e('v_lshl_add_u32 v%d, v%d, 5, v%d'%(t0,g,t0))
    e('v_bfe_u32 v%d, v%d, 1, 1'%(t1,n)); e('v_lshl_add_u32 v%d, v%d, 4, v%d'%(24,t1,t0))
    e('s_lshl_b32 s%d, s%d, 8'%(sT0,sW))
    e('buffer_load_dwordx4 v[32:35], v24, s[%d:%d], s%d offen'%(S_M0,S_M0+3,sT0))
    e('buffer_load_dwordx4 v[36:39], v24, s[%d:%d], s%d offen offset:128'%(S_M0,S_M0+3,sT0))
    for r in range(ACC,ACC+24,2): e('v_mov_b64 %s, 0'%vr(r,2))
    e('v_mov_b32 v25, %d'%DBG_INIT)
    a.label('L_initwait')
    e('buffer_load_dword v26, v25, s[%d:%d], 0 offen sc1'%(S_DBG,S_DBG+3))
    e('s_waitcnt vmcnt(0)')
    e('v_cmp_gt_u32 vcc, 32, v26')
    e('s_cbranch_vccz L_init_ok')
    budget('L_initwait',1)
    a.label('L_init_ok')
    e('s_mov_b32 s%d, 0x05040100'%sT0); e('s_mov_b32 s%d, 0x07060302'%sT1)
    for k in range(2):
        s_=32+4*k; d_=MQ+4*k
        e('v_perm_b32 v%d, v%d, v%d, s%d'%(d_,s_+2,s_,sT0)); e('v_perm_b32 v%d, v%d, v%d, s%d'%(d_+1,s_+2,s_,sT1))
        e('v_perm_b32 v%d, v%d, v%d, s%d'%(d_+2,s_+3,s_+1,sT0)); e('v_perm_b32 v%d, v%d, v%d, s%d'%(d_+3,s_+3,s_+1,sT1))
    e('ds_write_b128 v%d, %s offset:%d'%(vM2R,vr(MQ,4),L_MEM)); e('ds_write_b128 v%d, %s offset:%d'%(vM2R,vr(MQ+4,4),L_MEM+1024))
    e('s_waitcnt lgkmcnt(0)')
    e('s_mov_b32 m0, s%d'%sKM0)
    e('s_mov_b32 s%d, 2'%sNEED); e('s_mov_b32 s%d, s%d'%(sT1,sFLG))
    rt(2)
    stamp(15)
    e('s_branch L_have_mem')
    vm.reset(); lg.reset()

    def slowpath():
        a.label('L_sm_slow')
        e('s_waitcnt lgkmcnt(0)')
        for f in range(8): e('ds_read_b128 %s, v%d offset:%d'%(vr(KX+4*f,4),vKX,f*1024))
        FR2=[F,F+4,F+8,F+12]
        e('s_waitcnt lgkmcnt(0)')
        for c_ in range(4):
            e('ds_read_b64_tr_b16 %s, v%d offset:%d'%(vr(FR2[c_],2),vQKR,1024*c_))
            e('ds_read_b64_tr_b16 %s, v%d offset:%d'%(vr(FR2[c_]+2,2),vQKR,1024*c_+512))
        e('s_waitcnt lgkmcnt(0)')
        Sm,Sx0,Sx1=ACC,ACC+4,ACC+8
        for acc,Af in ((Sx0,lambda c:vr(KX+4*c,4)),(Sx1,lambda c:vr(KX+16+4*c,4)),(Sm,lambda c:vr(FR2[c],4))):
            for c_ in range(4):
                e('v_mfma_f32_16x16x32_bf16 %s, %s, %s, %s'%(vr(acc,4),Af(c_),vr(FR2[c_],4),'0' if c_==0 else vr(acc,4)))
        vals=[Sx0+i for i in range(4)]+[Sx1+i for i in range(4)]+[Sm,Sm+1]
        m,m2=PX,PX+1
        e('v_max_f32 v%d, v%d, v%d'%(m,vals[0],vals[1]))
        for i in range(2,10,2): e('v_max3_f32 v%d, v%d, v%d, v%d'%(m,m,vals[i],vals[i+1]))
        e('v_mov_b32 v%d, v%d'%(m2,m)); e('v_permlane32_swap_b32 v%d, v%d'%(m,m2)); e('v_max_f32 v%d, v%d, v%d'%(m,m,m2))
        e('v_mov_b32 v%d, v%d'%(m2,m)); e('v_permlane16_swap_b32 v%d, v%d'%(m,m2)); e('v_max_f32 v%d, v%d, v%d'%(m,m,m2))
        for v in vals: e('v_sub_f32 v%d, v%d, v%d'%(v,v,m))
        for v in vals: e('v_exp_f32 v%d, v%d'%(v,v))
        for i in range(4): e('v_cvt_pk_bf16_f32 v%d, v%d, v%d'%(MQ+4+i,vals[2*i],vals[2*i+1]))
        e('v_cvt_pk_bf16_f32 v%d, v%d, v%d'%(PM,Sm,Sm+1))
        O=MF+16
        e('v_mfma_f32_16x16x32_bf16 %s, %s, %s, 0'%(vr(O,4),vr(VX,4),vr(MQ+4,4)))
        e('v_mfma_f32_16x16x32_bf16 %s, %s, %s, 0'%(vr(O+4,4),vr(VX+4,4),vr(MQ+4,4)))
        e('v_mfma_f32_16x16x16_bf16 %s, %s, %s, %s'%(vr(O,4),vr(VM0,2),vr(PM,2),vr(O,4)))
        e('v_mfma_f32_16x16x16_bf16 %s, %s, %s, %s'%(vr(O+4,4),vr(vVM1,2),vr(PM,2),vr(O+4,4)))
        e('v_add_f32 v%d, v%d, v%d'%(m,vals[0],vals[1]))
        for v in vals[2:]: e('v_add_f32 v%d, v%d, v%d'%(m,m,v))
        e('v_mov_b32 v%d, v%d'%(m2,m)); e('v_permlane32_swap_b32 v%d, v%d'%(m,m2)); e('v_add_f32 v%d, v%d, v%d'%(m,m,m2))
        e('v_mov_b32 v%d, v%d'%(m2,m)); e('v_permlane16_swap_b32 v%d, v%d'%(m,m2)); e('v_add_f32 v%d, v%d, v%d'%(m,m,m2))
        e('v_rcp_f32 v%d, v%d'%(m,m))
        for (i,hf) in SLOW['wsnap']:
            tt,k2=SLOW['order'][i]; b=SLOW['WB'][i%8]
            e('ds_read_b128 %s, v%d offset:%d'%(vr(b+4*hf,4),(vWO0,vWO1)[k2],tt*2048+hf*1024))
        e('s_mov_b64 vcc, 0')
        e('s_waitcnt lgkmcnt(0)')
        a.fence()
        e('s_branch L_sm_back')
    SLOW={}
    def flagprep():
        e('s_add_u32 s%d, s%d, 2'%(sT0,sS)); e('s_min_u32 s%d, s%d, 63'%(sT0,sT0))
        e('s_and_b32 s%d, s%d, 15'%(sNEED,sT0)); e('s_lshr_b32 s%d, s%d, 4'%(sT0,sT0)); e('s_lshl_b32 s%d, s%d, 2'%(sT0,sT0)); e('s_add_u32 s%d, s%d, s%d'%(sT1,sT0,sFLG))
    def fill(k):
        if 'nofill' in opt and k<=2: return
        for _ in range(k): e('v_mov_b32 v%d, v%d'%(FIL,vL16))
    a.label('L_step')
    SA,SB=KX+16,KX+24
    def iss2(R):
        for i in range(2):
            e('buffer_load_dwordx4 %s, v%d, s[%d:%d], s%d offen offset:%d sc1'%(vr(R+4*i,4),vM2R,S_WS,S_WS+3,sRA,1024*i))
    def chk2(R,lbl):
        fill(P['f2'])
        e('s_waitcnt vmcnt(2)')
        e('ds_write_b128 v%d, %s offset:%d'%(vM2R,vr(R,4),L_MEM))
        e('v_max3_u32 v%d, v%d, v%d, v%d'%(MQ,R,R+1,R+2))
        e('v_max3_u32 v%d, v%d, v%d, v%d'%(MQ+1,R+4,R+5,R+6))
        e('ds_write_b128 v%d, %s offset:%d'%(vM2R,vr(R+4,4),L_MEM+1024))
        e('v_max3_u32 v%d, v%d, v%d, v%d'%(MQ,MQ,R+3,R+7))
        e('v_max_u32 v%d, v%d, v%d'%(MQ,MQ,MQ+1))
        e('v_cmp_eq_u32 vcc, -1, v%d'%MQ)
        fill(3)
        e('s_waitcnt lgkmcnt(0)')
        e('s_cbranch_vccz %s'%lbl)
    iss2(SA)
    fill(P['g2'])
    a.label('L_poll2')
    iss2(SB)
    chk2(SA,'L_poll2_ok')
    if ST: e('s_add_u32 s%d, s%d, 63'%(sACC0+6,sACC0+6))
    iss2(SA)
    chk2(SB,'L_poll2_ok')
    if ST: e('s_add_u32 s%d, s%d, 63'%(sACC0+6,sACC0+6))
    budget('L_poll2',2)
    a.label('L_poll2_ok')
    stamp(0)
    a.label('L_have_mem')
    e('s_barrier')
    stamp(1)
    if 'tl' in P:
        e0=a.e; cnt=[0]
        def e_tl(t):
            if cnt[0]==P['tl']:
                cnt[0]+=1
                a.e=e0
                e0('s_memtime s[%d:%d]'%(sTM+20,sTM+21))
                a.tl_text=t
                a.e=e_tl
            else: cnt[0]+=1
            e0(t)
        a.e=e_tl; e=e_tl; lg.a=a;
    def compute():
        def mfread(ks):
            e('ds_read_b128 %s, v%d offset:%d'%(vr(MF+4*ks,4),vL16,L_MEM+ks*1024)); lg.issue(('mf',ks))
        for ks in range(4): mfread(ks)
        fill(P['mf'])
        def kxread(f):
            e('ds_read_b128 %s, v%d offset:%d'%(vr(KX+4*f,4),vKX,f*1024)); lg.issue(('kx',f))
        def vxl(i):
            if 'novm' in opt: vm.issue('vx'); fill(1); return
            e('buffer_load_dwordx4 %s, v%d, s[%d:%d], s%d offen offset:%d sc1'%(vr(VX+4*i,4),vM2R,S_WS,S_WS+3,sVX,1024*i)); vm.issue('vx')
        def kdma(i):
            if 'novm' in opt: fill(1); return
            e('buffer_load_dwordx4 v%d, s[%d:%d], s%d offen offset:%d sc1 lds'%(vM2R,S_WS,S_WS+3,sKX,1024*i)); vm.issue('kx')
        def prog():
            if not FUSED: fill(1); return
            e('s_mov_b64 exec, s[%d:%d]'%(sEX0,sEX0+1))
            e('buffer_store_dword v%d, v15, s[%d:%d], s%d offen sc1'%(MQ+6,S_WS,S_WS+3,sPROG)); vm.issue('prog')
            e('s_mov_b64 exec, -1')
        def flagld():
            if not FUSED: fill(1); return
            e('buffer_load_dword v%d, v%d, s[%d:%d], s%d offen sc1'%(vONE,MQ+7,S_WS,S_WS+3,sT1)); vm.issue('flag')
        def kx0():
            e('s_waitcnt vmcnt(2)'); kxread(0)
        def rs1():
            e('v_mov_b32 v%d, -1'%(MQ+5))
        def rs2():
            e('s_mov_b64 exec, s[%d:%d]'%(sEXM,sEXM+1))
            e('buffer_store_dword v%d, v%d, s[%d:%d], s%d offen'%(MQ+5,vM2W,S_WS,S_WS+3,sRC)); vm.issue('rst')
            e('s_mov_b64 exec, -1')
        def pv():
            e('v_mov_b32 v%d, s%d'%(MQ+6,sS))
        def fa():
            e('v_and_b32 v%d, 0x30, v%d'%(MQ+7,vL16))
        W=lambda ks:(lambda:lg.wait(('mf',ks)))
        F1=lambda:fill(1)
        gaps=[lambda:mfread(4),lambda:mfread(5),lambda:mfread(6),W(1),
              lambda:mfread(7),lambda:vxl(0),lambda:vxl(1),W(3),
              kx0,lambda:kdma(0),lambda:kxread(1),lambda:kdma(1),
              lambda:kxread(2),lambda:kxread(3),lambda:kxread(4),W(7),
              lambda:kxread(5),lambda:kxread(6),lambda:kxread(7),pv,
              fa,prog,rs1,flagld,F1,rs2]+[F1]*6
        lg.wait(('mf',0))
        gi=0
        for ks in range(8):
            A=vr(MF+4*ks,4)
            for x in range(2):
                for t in range(2):
                    e('v_smfmac_f32_16x16x64_bf16 %s, %s, %s, v%d'%(vr(ACC+(x*2+t)*4,4),A,wreg(x,t,ks),vIDX))
                    gaps[gi](); gi+=1
        stamp(2)
        vq=[(ks,t) for ks in range(8) for t in range(2)]
        def vmf(k=1,f=1):
            for _ in range(k):
                ks,t=vq.pop(0)
                e('v_smfmac_f32_16x16x64_bf16 %s, %s, %s, v%d'%(vr(VACC+t*4,4),vr(MF+4*ks,4),wreg(2,t,ks),vIDX))
                fill(f)
        vmf(1,0)
        e('v_pk_add_f32 %s, %s, %s'%(vr(MQ+4,2),vr(ACC,2),vr(ACC+2,2)))
        e('v_pk_add_f32 %s, %s, %s'%(vr(MQ+6,2),vr(ACC+4,2),vr(ACC+6,2)))
        e('v_pk_mul_f32 %s, %s, s[%d:%d]'%(vr(MQ+4,2),vr(MQ+4,2),sC,sC+1))
        e('v_pk_mul_f32 %s, %s, s[%d:%d]'%(vr(MQ+6,2),vr(MQ+6,2),sC,sC+1))
        e('v_pk_add_f32 %s, %s, %s'%(vr(ACC,2),vr(ACC+8,2),vr(ACC+10,2)))
        e('v_pk_add_f32 %s, %s, %s'%(vr(ACC+2,2),vr(ACC+12,2),vr(ACC+14,2)))
        e('v_cvt_pk_bf16_f32 v%d, v%d, v%d'%(MQ+2,MQ+4,MQ+5))
        e('v_cvt_pk_bf16_f32 v%d, v%d, v%d'%(MQ,ACC,ACC+1))
        e('v_cvt_pk_bf16_f32 v%d, v%d, v%d'%(MQ+3,MQ+6,MQ+7))
        e('ds_write2_b32 v%d, v%d, v%d offset0:0 offset1:1'%(vQKW,MQ,MQ+2)); lg.issue(('qkw',0))
        e('v_cvt_pk_bf16_f32 v%d, v%d, v%d'%(MQ+1,ACC+2,ACC+3))
        e('ds_write2_b32 v%d, v%d, v%d offset0:128 offset1:129'%(vQKW,MQ+1,MQ+3)); lg.issue(('qkw',1))
        vmf(5)
        lg.wait(('qkw',1))
        stamp(3)
        e('s_barrier')
        stamp(4)
        FR=[F,F+4,F+8,PX]
        def fread(c_):
            e('ds_read_b64_tr_b16 %s, v%d offset:%d'%(vr(FR[c_],2),vQKR,1024*c_)); lg.issue(('f',c_,0))
            e('ds_read_b64_tr_b16 %s, v%d offset:%d'%(vr(FR[c_]+2,2),vQKR,1024*c_+512)); lg.issue(('f',c_,1))
        Sm,Sx0,Sx1=ACC,ACC+4,ACC+8
        WB=[KX,KX+8,KX+16,KX+24,MF,MF+8,MF+24,MQ]
        NWB=8
        order=[(tt,k2) for tt2 in range(4) for k2 in range(2) for tt in (2*tt2,2*tt2+1)]
        wq=[(i,hf) for i in range(16) for hf in range(2)]
        wdone=[]
        def wo(k=1):
            for _ in range(k):
                if not wq: return False
                i,hf=wq.pop(0); wdone.append((i,hf)); tt,k2=order[i]; b=WB[i%NWB]
                e('ds_read_b128 %s, v%d offset:%d'%(vr(b+4*hf,4),(vWO0,vWO1)[k2],tt*2048+hf*1024)); lg.issue(('wo',i,hf))
            return True
        def smf(acc,A,c_):
            e('v_mfma_f32_16x16x32_bf16 %s, %s, %s, %s'%(vr(acc,4),A,vr(FR[c_],4),'0' if c_==0 else vr(acc,4)))
        def ex(r): e('v_exp_f32 v%d, v%d'%(r,r))
        def cv(d,r): e('v_cvt_pk_bf16_f32 v%d, v%d, v%d'%(d,r,r+1))
        PXT=MQ+4
        for c_ in range(4): fread(c_)
        vmf(1,0)
        if 'nopub' not in opt: e('buffer_store_dwordx2 %s, v%d, s[%d:%d], s%d offen%s'%(vr(MQ,2),vL16,S_WS,S_WS+3,sKM,SC)); vm.issue('km')
        vmf(1,0)
        for c_ in range(4):
            lg.wait(('f',c_,1)); smf(Sx0,vr(KX+4*c_,4),c_)
            fill(1)
        for c_ in range(4):
            smf(Sx1,vr(KX+16+4*c_,4),c_)
            if c_<2: wo(2)
            else: ex(Sx0+c_-2)
        for c_ in range(4):
            smf(Sm,vr(FR[c_],4),c_)
            if c_<2: ex(Sx0+2+c_)
            else: ex(Sx1+c_-2)
        stamp(5)
        vmf(1,0); cv(PXT,Sx0)
        vmf(1,0); ex(Sx1+2)
        vmf(1,0); ex(Sx1+3)
        vmf(1,0); cv(PXT+1,Sx0+2)
        vmf(1,0); ex(Sm)
        vmf(1,0); ex(Sm+1)
        vmf(1,0); cv(PXT+2,Sx1)
        vmf(1,0); cv(PXT+3,Sx1+2)
        assert not vq, vq
        stamp(6)
        vm.wait('vx')
        stamp(7)
        O=MF+16
        L0=PX
        cv(PM,Sm)
        e('v_mfma_f32_16x16x32_bf16 %s, %s, %s, 0'%(vr(O,4),vr(VX,4),vr(PXT,4)))
        e('v_pk_add_f32 %s, %s, %s'%(vr(L0,2),vr(Sx0,2),vr(Sx0+2,2)))
        e('v_pk_add_f32 %s, %s, %s'%(vr(L0+2,2),vr(Sx1,2),vr(Sx1+2,2)))
        e('v_mfma_f32_16x16x32_bf16 %s, %s, %s, 0'%(vr(O+4,4),vr(VX+4,4),vr(PXT,4)))
        e('v_pk_add_f32 %s, %s, %s'%(vr(VACC,2),vr(VACC,2),vr(VACC+2,2)))
        e('v_pk_add_f32 %s, %s, %s'%(vr(VACC+4,2),vr(VACC+4,2),vr(VACC+6,2)))
        cv(VM0,VACC); cv(vVM1,VACC+4)
        e('v_pk_add_f32 %s, %s, %s'%(vr(L0,2),vr(L0,2),vr(Sm,2)))
        e('v_pk_add_f32 %s, %s, %s'%(vr(L0,2),vr(L0,2),vr(L0+2,2)))
        e('v_mfma_f32_16x16x16_bf16 %s, %s, %s, %s'%(vr(O,4),vr(VM0,2),vr(PM,2),vr(O,4)))
        e('v_add_f32 v%d, v%d, v%d'%(L0+2,L0,L0+1)); e('v_add_f32 v%d, v%d, v%d'%(L0+3,L0,L0+1))
        e('v_mfma_f32_16x16x16_bf16 %s, %s, %s, %s'%(vr(O+4,4),vr(vVM1,2),vr(PM,2),vr(O+4,4)))
        wo(1)
        e('v_permlane32_swap_b32 v%d, v%d'%(L0+2,L0+3))
        e('v_add_f32 v%d, v%d, v%d'%(L0,L0+2,L0+3)); e('v_add_f32 v%d, v%d, v%d'%(L0+1,L0+2,L0+3))
        wo(1); cv(MQ+2,VACC)
        e('v_permlane16_swap_b32 v%d, v%d'%(L0,L0+1))
        e('v_add_f32 v%d, v%d, v%d'%(L0+2,L0,L0+1))
        e('v_rcp_f32 v%d, v%d'%(L0,L0+2))
        e('v_lshrrev_b32 v%d, 23, v%d'%(L0+3,L0+2))
        e('v_subrev_u32 v%d, 27, v%d'%(L0+3,L0+3))
        e('v_cmp_lt_u32 vcc, %d, v%d'%(0 if 'forceslow' in opt else 200,L0+3))
        a.label('L_sm_back')
        for r in range(0,8,2):
            e('v_pk_mul_f32 %s, %s, %s op_sel_hi:[1,0]'%(vr(O+r,2),vr(O+r,2),vr(L0,2)))
        cv(MQ+3,VACC+4)
        e('s_and_b64 vcc, vcc, s[%d:%d]'%(sEXQ,sEXQ+1))
        for r in range(4): cv(MQ+4+r,O+2*r)
        e('s_cbranch_scc1 L_sm_slow')
        wsnap=list(wdone)
        e('s_mov_b64 exec, s[%d:%d]'%(sEXQ,sEXQ+1))
        e('ds_write_b128 v%d, %s'%(vOW,vr(MQ+4,4))); lg.issue('ow')
        e('s_mov_b64 exec, -1')
        if 'nopub' not in opt: e('buffer_store_dwordx2 %s, v%d, s[%d:%d], s%d offen offset:8%s'%(vr(MQ+2,2),vL16,S_WS,S_WS+3,sKM,SC)); vm.issue('vmst')
        OACC=[ACC,ACC+4,ACC+8,ACC+12,VACC,VACC+4,O,O+4]
        e('s_cmp_eq_u32 s%d, %d'%(sS,nsteps-1))
        e('s_cbranch_scc1 L_rec_done')
        k=0
        for b in OACC:
            e('v_mov_b64 %s, 0'%vr(b,2)); e('v_mov_b64 %s, 0'%vr(b+2,2))
            if k<8: wo(1)
            k+=1
        lg.wait('ow')
        stamp(8)
        e('s_barrier')
        stamp(9)
        OA=VX
        e('ds_read_b128 %s, v%d offset:%d'%(vr(OA,4),vL16,L_O)); lg.issue('oa0')
        e('ds_read_b128 %s, v%d offset:%d'%(vr(OA+4,4),vL16,L_O+1024)); lg.issue('oa1')
        wo(2)
        fill(P.get('oa',0))
        post=[]
        def mkpost(tt):
            b=OACC[tt]; T=OACC[tt&4]+(tt&3)
            r=['v_pk_add_f32 %s, %s, %s'%(vr(b,2),vr(b,2),vr(b+2,2)), 'v_cvt_pk_bf16_f32 v%d, v%d, v%d'%(T,b,b+1)]
            if tt&3==0: r.append('v_and_or_b32 v%d, v%d, -2, s%d'%(T,T,sTAG))
            if tt&3==3 and 'nost' not in opt: r.append('buffer_store_dwordx4 %s, v%d, s[%d:%d], s%d offen'%(vr(OACC[tt&4],4),vP1W,S_WS,S_WS+3,sP1W+(tt>>2)))
            return r
        for i,(tt,k2) in enumerate(order):
            if i==0: lg.wait('oa0')
            if i==2: lg.wait('oa1')
            if i%2==0: lg.wait(('wo',i+1,1))
            e('v_smfmac_f32_16x16x64_bf16 %s, %s, %s, v%d'%(vr(OACC[tt],4),vr(OA+4*k2,4),vr(WB[i%NWB],8),vIDX))
            if wq: wo(2)
            else:
                if i==10:
                    for t_ in range(4): post+=mkpost(t_)
                if post:
                    e(post.pop(0))
                    if i>=12 and post: e(post.pop(0))
                else: fill(1)
        assert not wq
        for t_ in range(4,8): post+=mkpost(t_)
        for x in post: e(x)
        SLOW.update(wsnap=wsnap,order=order,WB=WB)
    def skeleton():
        e('v_mov_b32 v%d, -1'%(MQ+5))
        e('s_mov_b64 exec, s[%d:%d]'%(sEXM,sEXM+1))
        e('buffer_store_dword v%d, v%d, s[%d:%d], s%d offen'%(MQ+5,vM2W,S_WS,S_WS+3,sRC))
        e('s_mov_b64 exec, -1')
        fill(P.get('sk',200))
        e('s_cmp_eq_u32 s%d, %d'%(sS,nsteps-1))
        e('s_cbranch_scc1 L_rec_done')
        e('s_barrier')
        stamp(9)
        for qq in range(2):
            T=ACC+4*qq
            e('v_and_or_b32 v%d, v%d, -2, s%d'%(T,15,sTAG))
            e('buffer_store_dwordx4 %s, v%d, s[%d:%d], s%d offen'%(vr(T,4),vP1W,S_WS,S_WS+3,sP1W+qq))
            if qq==0: fill(P.get('sg',8))
    if 'skel' in opt: skeleton()
    else: compute()
    SEL=KX
    e('ds_read_b128 %s, v%d offset:%d'%(vr(SEL,4),vL16,L_SEL))
    e('v_xor_b32 v%d, 8192, v%d'%(vKX,vKX))
    e('s_xor_b32 s%d, s%d, 8192'%(sKM0,sKM0)); e('s_add_u32 s%d, s%d, 0x40000'%(sVX,sVX)); e('s_add_u32 s%d, s%d, 0x20000'%(sKM,sKM))
    e('s_add_u32 s%d, s%d, 1'%(sS,sS)); e('s_cmp_lt_u32 s%d, 62'%sS); e('s_cselect_b32 s%d, 0x40000, 0'%sT0); e('s_add_u32 s%d, s%d, s%d'%(sKX,sKX,sT0))
    for r in range(ACC,ACC+24,2): e('v_mov_b64 %s, 0'%vr(r,2))
    e('s_mov_b32 m0, s%d'%sKM0)
    stamp(10)
    if 'solo' in opt:
        e('s_waitcnt vmcnt(0) lgkmcnt(0)')
        if 'tl' in P:
            e('s_sub_u32 s%d, s%d, s%d'%(sTM+22,sTM+20,sPREV)); e('s_add_u32 s%d, s%d, s%d'%(sACC0+2,sACC0+2,sTM+22))
        fill(30)
        e('s_branch L_have_mem')
    e('s_cmp_ge_u32 s%d, 2'%sW)
    e('s_cbranch_scc1 L_side')
    fill(P['d1'])
    P1=MF; X=KX+8
    PA,PB=MF,MF+16
    def iss1(R):
        for i in range(4):
            e('buffer_load_dwordx4 %s, v%d, s[%d:%d], s%d offen offset:%d sc1'%(vr(R+4*i,4),vP1R,S_WS,S_WS+3,sP1R+(i>>1),2048*(i&1)))
    def chk1(R,lbl):
        fill(P['f1'])
        for i in range(4):
            e('s_waitcnt vmcnt(%d)%s'%(7-i,' lgkmcnt(0)' if i==0 else ''))
            e('v_mfma_f32_16x16x32_bf16 %s, %s, %s, %s'%(vr(X,4),vr(SEL,4),vr(R+4*i,4),'0' if i==0 else vr(X,4)))
            if i==1: e('v_bitop3_b32 v%d, v%d, v%d, s%d bitop3:0x7e'%(MQ,R,R+4,sTAG))
        e('v_bitop3_b32 v%d, v%d, v%d, s%d bitop3:0x7e'%(MQ+1,R+8,R+12,sTAG))
        e('v_or_b32 v%d, v%d, v%d'%(MQ,MQ,MQ+1))
        e('v_and_b32 v%d, 1, v%d'%(MQ,MQ))
        e('v_cmp_ne_u32 vcc, 0, v%d'%MQ)
        fill(4)
        e('s_cbranch_vccz %s'%lbl)
    iss1(PA)
    fill(P['g1'])
    a.label('L_poll1')
    iss1(PB)
    chk1(PA,'L_poll1_ok')
    if ST: e('s_add_u32 s%d, s%d, 63'%(sACC0+5,sACC0+5))
    iss1(PA)
    chk1(PB,'L_poll1_ok')
    if ST: e('s_add_u32 s%d, s%d, 63'%(sACC0+5,sACC0+5))
    budget('L_poll1',3)
    a.label('L_poll1_ok')
    stamp(12)
    for r in range(4):
        e('v_add_f32_dpp v%d, v%d, v%d row_ror:8 row_mask:0xf bank_mask:0xf'%(X+4+r,X+r,X+r))
    e('v_cndmask_b32 v%d, v%d, v%d, s[%d:%d]'%(X,X+4,X+5,sPAR,sPAR+1)); e('v_cndmask_b32 v%d, v%d, v%d, s[%d:%d]'%(X+2,X+6,X+7,sPAR,sPAR+1))
    e('v_cvt_pk_bf16_f32 v%d, v%d, v%d'%(X+4,X,X+2))
    e('s_mov_b64 exec, s[%d:%d]'%(sEXM,sEXM+1))
    e('v_min_u32 v%d, -2, v%d'%(X+4,X+4))
    e('buffer_store_dword v%d, v%d, s[%d:%d], s%d offen'%(X+4,vM2W,S_WS,S_WS+3,sRB))
    e('s_mov_b64 exec, -1')
    stamp(13)
    fill(P['d2'])
    e('s_branch L_join')
    a.label('L_side')
    e('s_waitcnt vmcnt(0) lgkmcnt(0)')
    if FUSED:
        e('v_cmp_ge_u32 vcc, s%d, v%d'%(sNEED,vONE))
        fill(4)
        e('s_cbranch_vccz L_kv_ok')
        e('v_and_b32 v%d, 0x30, v%d'%(MQ+7,vL16))
        a.label('L_kvspin')
        e('buffer_load_dword v%d, v%d, s[%d:%d], s%d offen sc1'%(vONE,MQ+7,S_WS,S_WS+3,sT1)); e('s_waitcnt vmcnt(0)')
        e('v_cmp_ge_u32 vcc, s%d, v%d'%(sNEED,vONE)); e('s_cbranch_vccz L_kv_ok')
        budget('L_kvspin',6)
        a.label('L_kv_ok')
    e('s_mov_b32 s%d, %d'%(sT0,P['ds']))
    a.label('L_sidefill')
    fill(8)
    e('s_sub_u32 s%d, s%d, 1'%(sT0,sT0)); e('s_cmp_lg_u32 s%d, 0'%sT0); e('s_cbranch_scc1 L_sidefill')
    a.label('L_join')
    if FUSED: flagprep()
    fill(1)
    e('s_mov_b32 s%d, s%d'%(sT0,sRA)); e('s_mov_b32 s%d, s%d'%(sRA,sRB)); fill(1); e('s_mov_b32 s%d, s%d'%(sRB,sRC)); e('s_mov_b32 s%d, s%d'%(sRC,sT0))
    fill(1)
    e('s_xor_b32 s%d, s%d, 1'%(sTAG,sTAG))
    if 'tl' in P and 'solo' not in opt:
        e('s_waitcnt lgkmcnt(0)')
        e('s_sub_u32 s%d, s%d, s%d'%(sTM+22,sTM+20,sPREV)); e('s_add_u32 s%d, s%d, s%d'%(sACC0+2,sACC0+2,sTM+22))
    e('s_branch L_step')
    if 'skel' not in opt: slowpath()
    a.label('L_rec_done')
    e('s_waitcnt vmcnt(0) lgkmcnt(0)')
    rt(3)
    if ST:
        e('s_lshl_b32 s%d, s%d, 2'%(sT0,sH)); e('s_add_u32 s%d, s%d, s%d'%(sT0,sT0,sW)); e('s_lshl_b32 s%d, s%d, 7'%(sT0,sT0)); e('s_add_u32 s%d, s%d, 0x%x'%(sT0,sT0,WS_MISC))
        e('s_mov_b64 exec, 1')
        for i in range(NST):
            e('v_mov_b32 v16, s%d'%(sACC0+i))
            e('buffer_store_dword v16, v15, s[%d:%d], s%d offen offset:%d'%(S_WS,S_WS+3,sT0,4*i))
        e('v_mov_b32 v16, s%d'%sBUD)
        e('buffer_store_dword v16, v15, s[%d:%d], s%d offen offset:%d'%(S_WS,S_WS+3,sT0,4*NST))
        e('s_mov_b64 exec, -1')
    if FUSED:
        e('s_barrier')
        e('v_mov_b32 v%d, %d'%(MQ,nsteps))
        e('s_cmp_eq_u32 s%d, 0'%sW)
        e('s_cselect_b64 exec, 1, 0')
        e('buffer_store_dword v%d, v15, s[%d:%d], s%d offen sc1'%(MQ,S_WS,S_WS+3,sPROG))
        e('s_mov_b64 exec, -1')
    e('s_waitcnt vmcnt(0)')
    e('s_endpgm')
    a.label('L_abort')
    e('s_waitcnt vmcnt(0) lgkmcnt(0)')
    e('s_lshl_b32 s%d, s%d, 8'%(sT1,sS)); e('s_or_b32 s%d, s%d, s%d'%(sT0,sT0,sT1))
    e('v_mov_b32 v16, s%d'%sT0); e('v_mov_b32 v17, %d'%DBG_ABORT)
    e('s_mov_b64 exec, 1')
    e('buffer_store_dword v16, v17, s[%d:%d], 0 offen sc1'%(S_DBG,S_DBG+3))
    e('s_waitcnt vmcnt(0)')
    e('s_endpgm')

from gen_rec import HEADER, kd, srd

def rec_only_kernel(nsteps=64,opt=()):
    a=Asm()
    name='rec_kernel'
    a.raw(HEADER+'; @launch kernel=%s grid=(256,1,1) block=(256,1,1) lds=%d'%(name,LDS_BYTES))
    a.raw('.amdgcn_target "amdgcn-amd-amdhsa--gfx950"\n.text\n.globl %s\n.p2align 8\n.type %s,@function\n%s:'%(name,name,name))
    rec_body(a,nsteps,opt)
    a.raw(kd(name,sgpr=102))
    return a

def rec_body(a,nsteps,opt):
    e=a.e
    e('s_load_dwordx2 s[4:5], s[0:1], 8')
    e('s_load_dwordx4 s[%d:%d], s[0:1], 16'%(sPWQ,sPWQ+3))
    e('s_load_dwordx4 s[%d:%d], s[0:1], 32'%(sPWV,sPWV+3))
    e('s_load_dwordx4 s[68:71], s[0:1], 112')
    e('s_getreg_b32 s3, hwreg(HW_REG_XCC_ID, 0, 4)')
    e('v_lshrrev_b32 v1, 6, v0')
    e('v_readfirstlane_b32 s%d, v1'%sW)
    e('s_waitcnt lgkmcnt(0)')
    srd(e,S_WS,70,WS_BYTES); srd(e,S_DBG,68,256); srd(e,S_M0,4,8192); srd(e,S_W,sPWQ,4*MB)
    e('s_cmp_lg_u32 s3, 0')
    e('s_cbranch_scc1 L_exit')
    e('v_cmp_eq_u32 vcc, 0, v0')
    e('s_and_saveexec_b64 s[%d:%d], vcc'%(sT2,sT3))
    e('s_cbranch_execz L_noticket')
    e('v_mov_b32 v1, 1'); e('v_mov_b32 v2, %d'%DBG_TICKET)
    e('buffer_atomic_add v1, v2, s[%d:%d], 0 offen sc0'%(S_DBG,S_DBG+3))
    e('s_waitcnt vmcnt(0)')
    e('v_mov_b32 v2, %d'%L_MISC)
    e('ds_write_b32 v2, v1')
    e('s_waitcnt lgkmcnt(0)')
    a.label('L_noticket')
    e('s_mov_b64 exec, -1')
    e('s_barrier')
    e('v_mov_b32 v2, %d'%L_MISC)
    e('ds_read_b32 v1, v2')
    e('s_waitcnt lgkmcnt(0)')
    e('v_readfirstlane_b32 s%d, v1'%sH)
    e('s_nop 3')
    e('s_cmp_ge_u32 s%d, 32'%sH)
    e('s_cbranch_scc1 L_exit')
    gen_rec(a,nsteps,opt)
    a.label('L_exit')
    e('s_endpgm')

if __name__=='__main__':
    import sys
    ns=int(sys.argv[2]) if len(sys.argv)>2 else 64
    a=rec_only_kernel(ns,tuple(sys.argv[3:]))
    open(sys.argv[1],'w').write(a.text())
    print('nops inserted',a.nops,'lines',len(a.out))
```

```python
from asmdsl import *
from layout import *
import gen_rec3 as R
import gen_bulk as B
import sys
NAME='gated_mix__memory_aug_recurrent_mem_tr__moe_arch_mod__prompt_kernel'
def ticket(a,tag,off,dst):
    e=a.e
    e('v_cmp_eq_u32 vcc, 0, v0')
    e('s_and_saveexec_b64 s[46:47], vcc')
    e('s_cbranch_execz L_nt_%s'%tag)
    e('v_mov_b32 v1, 1'); e('v_mov_b32 v2, %s'%off)
    e('buffer_atomic_add v1, v2, s[%d:%d], 0 offen sc0'%(B.S_DBG,B.S_DBG+3))
    e('s_waitcnt vmcnt(0)')
    e('v_mov_b32 v2, %d'%L_MISC); e('ds_write_b32 v2, v1'); e('s_waitcnt lgkmcnt(0)')
    a.label('L_nt_%s'%tag)
    e('s_mov_b64 exec, -1')
    e('s_barrier')
    e('v_mov_b32 v2, %d'%L_MISC); e('ds_read_b32 v1, v2'); e('s_waitcnt lgkmcnt(0)')
    e('v_readfirstlane_b32 s%d, v1'%dst)
    e('s_nop 3')
    e('s_barrier')
def ldp(a,reg,off): a.e('s_load_dwordx2 s[%d:%d], s[0:1], %d'%(reg,reg+1,off))

def build(opt):
    a=Asm(); e=a.e
    def brt(i):
        if 'prof' not in opt: return
        e('s_memrealtime s[100:101]'); e('s_waitcnt lgkmcnt(0)')
        e('v_mov_b32 v252, s100'); e('v_mov_b32 v253, 0')
        e('s_lshl_b32 s100, s2, 5'); e('s_add_u32 s100, s100, 0x%x'%(WS_MISC+0x10000+4*i))
        e('s_mov_b64 exec, 1'); e('buffer_store_dword v252, v253, s[%d:%d], s100 offen'%(B.S_WS,B.S_WS+3)); e('s_mov_b64 exec, -1')
    a.raw(R.HEADER+'; @launch grid=(256,1,1) block=(256,1,1) lds=%d'%LDS_BYTES)
    a.raw('.amdgcn_target "amdgcn-amd-amdhsa--gfx950"\n.text\n.globl %s\n.p2align 8\n.type %s,@function\n%s:'%(NAME,NAME,NAME))
    e('s_load_dwordx4 s[4:7], s[0:1], 0')
    e('s_load_dwordx4 s[%d:%d], s[0:1], 16'%(B.sPWQ,B.sPWQ+3))
    e('s_load_dwordx4 s[%d:%d], s[0:1], 32'%(B.sPWV,B.sPWV+3))
    e('s_load_dwordx2 s[%d:%d], s[0:1], 104'%(B.sPOUT,B.sPOUT+1))
    e('s_load_dwordx4 s[72:75], s[0:1], 112')
    e('s_getreg_b32 s3, hwreg(HW_REG_XCC_ID, 0, 4)')
    e('v_lshrrev_b32 v1, 6, v0')
    e('v_readfirstlane_b32 s%d, v1'%B.sW)
    e('s_waitcnt lgkmcnt(0)')
    B.srd(e,B.S_WS,74,WS_BYTES); B.srd(e,B.S_DBG,72,256); B.srd(e,B.S_W,B.sPWQ,4*MB)
    B.srd(e,R.S_M0,6,8192)
    B.srd(e,B.S_OUT,B.sPOUT,2*MB)
    brt(0)
    e('s_cmp_lg_u32 s3, 0')
    e('s_cbranch_scc1 L_bulk')
    ticket(a,'rec',DBG_TICKET,R.sH)
    e('s_cmp_ge_u32 s%d, 32'%R.sH)
    e('s_cbranch_scc1 L_bulk')
    R.gen_rec(a,64,('fused',)+opt)
    a.label('L_bulk')
    a.hist=[]
    B.srd(e,B.S_X,4,2*MB)
    sB_=99
    ticket(a,'bulk',DBG_BT,sB_)
    e('s_cmp_ge_u32 s%d, 224'%sB_); e('s_cbranch_scc1 L_end')
    e('s_mov_b32 s%d, 300000'%B.sBUD)
    e('s_cmp_lg_u32 s%d, 0'%sB_); e('s_cbranch_scc1 L_noinit')
    e('v_lshlrev_b32 v1, 4, v0')
    for r in range(4,8): e('v_mov_b32 v%d, 0'%r)
    for i in range(FL_BYTES//4096):
        e('s_mov_b32 s%d, 0x%x'%(B.sT0,WS_FL+i*4096)); e('buffer_store_dwordx4 v[4:7], v1, s[%d:%d], s%d offen sc1'%(B.S_WS,B.S_WS+3,B.sT0))
    e('s_waitcnt vmcnt(0)'); e('s_barrier')
    e('s_cmp_lg_u32 s%d, 0'%B.sW); e('s_cbranch_scc1 L_noinit')
    B.dbg_add(a,DBG_FRDY)
    a.label('L_noinit')
    e('s_cmp_ge_u32 s%d, 192'%sB_); e('s_cbranch_scc1 L_moe')
    e('s_mov_b32 s%d, 0'%B.sI1); e('s_mov_b32 s%d, s%d'%(B.sI0,sB_))
    for k in range(3):
        e('s_cmp_ge_u32 s%d, 48'%B.sI0); e('s_cselect_b32 s%d, 48, 0'%B.sT0); e('s_cselect_b32 s%d, 1, 0'%B.sT1)
        e('s_sub_u32 s%d, s%d, s%d'%(B.sI0,B.sI0,B.sT0)); e('s_add_u32 s%d, s%d, s%d'%(B.sI1,B.sI1,B.sT1))
    brt(1)
    B.gen_gemm(a,'g',flags=True)
    brt(2)
    e('s_cmp_lt_u32 s%d, 160'%sB_); e('s_cbranch_scc1 L_oproj')
    e('s_sub_u32 s%d, s%d, 128'%(sB_,sB_))
    e('s_branch L_attn')
    a.label('L_moe')
    e('s_sub_u32 s%d, s%d, 192'%(sB_,sB_))
    ldp(a,B.sE,64); ldp(a,B.sG,96); e('s_waitcnt lgkmcnt(0)')
    e('s_lshl_b32 s%d, s%d, 2'%(B.sI0,sB_)); e('s_add_u32 s%d, s%d, s%d'%(B.sI0,B.sI0,B.sW))
    B.router(a,'r')
    B.dbg_add(a,DBG_RT)
    e('s_cmp_ge_u32 s%d, 28'%sB_); e('s_cbranch_scc1 L_down')
    ldp(a,B.sE,72); ldp(a,B.sG,80); e('s_waitcnt lgkmcnt(0)')
    e('s_mov_b32 s%d, s%d'%(B.sI0,sB_))
    B.moe_up(a,'u')
    B.spin_dbg(a,'L_w_t8',DBG_T8,1,11)
    B.moe_up2(a,'u')
    B.dbg_add(a,DBG_UP)
    e('s_branch L_attn')
    a.label('L_down')
    e('s_cmp_lg_u32 s%d, 28'%sB_); e('s_cbranch_scc1 L_not8')
    e('s_cmp_lg_u32 s%d, 0'%B.sW); e('s_cbranch_scc1 L_not8')
    B.spin_dbg(a,'L_w_rt',DBG_RT,128,12)
    e('v_mov_b32 v11, 0')
    B.top8(a,'t')
    B.dbg_add(a,DBG_T8)
    a.label('L_not8')
    ldp(a,B.sE,88); e('s_waitcnt lgkmcnt(0)')
    e('s_sub_u32 s%d, s%d, 28'%(B.sI0,sB_)); e('s_lshl_b32 s%d, s%d, 1'%(B.sI0,B.sI0))
    e('s_mov_b32 s%d, 0'%B.sI1)
    a.label('L_down_loop')
    B.moe_down(a,'d')
    B.spin_dbg(a,'L_w_up',DBG_UP,112,13)
    B.moe_down2(a,'d')
    e('s_add_u32 s%d, s%d, 1'%(B.sI0,B.sI0)); e('s_add_u32 s%d, s%d, 1'%(B.sI1,B.sI1)); e('s_cmp_lt_u32 s%d, 2'%B.sI1)
    a.fence(); e('s_cbranch_scc1 L_down_loop')
    B.dbg_add(a,DBG_DN)
    brt(3)
    a.label('L_attn')
    a.fence()
    e('s_waitcnt vmcnt(0) lgkmcnt(0)')
    e('s_barrier')
    B.attn_setup(a,0)
    B.spin_dbg(a,'L_a_frdy',DBG_FRDY,1,14)
    e('s_lshl_b32 s%d, s%d, 2'%(B.sT0,sB_)); e('s_add_u32 s%d, s%d, s%d'%(B.sT0,B.sT0,B.sW))
    e('s_and_b32 s%d, s%d, 31'%(B.sI1,B.sT0)); e('s_lshr_b32 s%d, s%d, 5'%(B.sI0,B.sT0))
    e('v_min_u32 v10, 5, v1'); e('v_lshlrev_b32 v10, 4, v10'); e('v_mov_b32 v11, 0'); e('v_mov_b32 v12, 1')
    a.label('L_attn_loop')
    e('s_lshl_b32 s%d, s%d, 7'%(B.sD,B.sI1)); e('s_lshr_b32 s%d, s%d, 4'%(B.sT0,B.sI0)); e('s_lshl_b32 s%d, s%d, 2'%(B.sT0,B.sT0))
    e('s_add_u32 s%d, s%d, s%d'%(B.sD,B.sD,B.sT0)); e('s_add_u32 s%d, s%d, 0x%x'%(B.sD,B.sD,FL_G))
    e('s_and_b32 s%d, s%d, 15'%(B.sE,B.sI0))
    B.spin(a,'L_a_wg','buffer_load_dword v13, v10, s[%d:%d], s%d offen sc1'%(B.S_WS,B.S_WS+3,B.sD),'v_cmp_ge_u32 vcc, s%d, v13'%B.sE,15)
    B.attn_loads_x(a)
    e('s_lshl_b32 s%d, s%d, 8'%(B.sD,B.sI1)); e('s_add_u32 s%d, s%d, 0x%x'%(B.sD,B.sD,FL_REC))
    B.spin(a,'L_a_wr','buffer_load_dword v13, v11, s[%d:%d], s%d offen sc1'%(B.S_WS,B.S_WS+3,B.sD),'v_cmp_ge_u32 vcc, s%d, v13'%B.sI0,16,sleep=2)
    B.attn_item(a)
    e('s_lshl_b32 s%d, s%d, 7'%(B.sD,B.sI0)); e('s_lshl_b32 s%d, s%d, 2'%(B.sT0,B.sI1)); e('s_add_u32 s%d, s%d, s%d'%(B.sD,B.sD,B.sT0)); e('s_add_u32 s%d, s%d, 0x%x'%(B.sD,B.sD,FL_O))
    e('s_waitcnt vmcnt(0)')
    e('s_mov_b64 exec, 1'); e('buffer_store_dword v12, v11, s[%d:%d], s%d offen sc1'%(B.S_WS,B.S_WS+3,B.sD)); e('s_mov_b64 exec, -1')
    e('s_add_u32 s%d, s%d, 8'%(B.sI0,B.sI0)); e('s_cmp_lt_u32 s%d, 64'%B.sI0)
    a.fence(); e('s_cbranch_scc1 L_attn_loop')
    e('s_branch L_end')
    a.label('L_oproj')
    a.fence()
    e('s_waitcnt vmcnt(0) lgkmcnt(0)')
    e('s_and_b32 s%d, s%d, 15'%(B.sI1,sB_))
    B.oproj_setup(a)
    brt(4)
    B.spin_dbg(a,'L_o_dn',DBG_DN,16,17)
    e('s_lshr_b32 s%d, s%d, 4'%(B.sI0,sB_))
    e('v_and_b32 v14, 31, v1'); e('v_lshlrev_b32 v14, 2, v14')
    a.label('L_o_loop')
    e('s_lshl_b32 s%d, s%d, 7'%(B.sD,B.sI0)); e('s_add_u32 s%d, s%d, 0x%x'%(B.sD,B.sD,FL_O))
    B.spin(a,'L_o_w','buffer_load_dword v15, v14, s[%d:%d], s%d offen sc1'%(B.S_WS,B.S_WS+3,B.sD),'v_cmp_eq_u32 vcc, 0, v15',18,sleep=2)
    B.oproj_item(a,'o')
    e('s_add_u32 s%d, s%d, 10'%(B.sI0,B.sI0)); e('s_cmp_lt_u32 s%d, 64'%B.sI0)
    a.fence(); e('s_cbranch_scc1 L_o_loop')
    a.label('L_end')
    e('s_waitcnt vmcnt(0)')
    brt(5)
    e('s_waitcnt vmcnt(0)')
    e('s_endpgm')
    a.label('L_babort')
    e('v_mov_b32 v16, s%d'%B.sT0); e('v_mov_b32 v17, %d'%DBG_ABORT)
    e('s_mov_b64 exec, 1')
    e('buffer_store_dword v16, v17, s[%d:%d], 0 offen sc1'%(B.S_DBG,B.S_DBG+3))
    e('s_waitcnt vmcnt(0)')
    e('s_endpgm')
    a.raw(R.kd(NAME,sgpr=102))
    return a
if __name__=='__main__':
    a=build(tuple(sys.argv[2:]))
    open(sys.argv[1],'w').write(a.text())
    print('nops',a.nops,'lines',len(a.out))
```

```python
from asmdsl import *
from layout import *
import math, struct
def f32bits(x): return struct.unpack('<I',struct.pack('<f',x))[0]

S_WS=8; S_DBG=12; S_W=16; S_M0=20
sH=24; sW=25; sS=26; sTAG=27; sRA=28; sRB=29; sRC=30; sT0=31
sP1W=32; sP1R=34
sKX=40; sVX=41; sKM=42; sKM0=44; sT1=45; sT2=46; sT3=47
sC=48; sNC=50; sEXQ=52; sEXM=54
sPWQ=56; sPWK=58; sPWV=60; sPWO=62
sPROG=64; sBUD=65; sFLG=66; sNEED=67
sPN=92
sEX0=4
sPAR=6
FIL=0
vL16=1; vM2R=2; vQKW=3; vQKR=4; vKX=5; vOW=6; vWO0=7; vWO1=8; vP1W=9; vP1R=10; vM2W=11; vIDX=13; vONE=12
vVM1=14
MQ=16; MF=24; F=24; ACC=56; VACC=72; KX=80; VX=112; PX=120; PM=124; VM0=126
WV=128

def wreg(x,t,ks):
    if x<2: return ar(((x*2+t)*8+ks)*8,8)
    return vr(WV+(t*8+ks)*8,8)
def wreg2(x,t,ks,p):
    if x<2: return ar(((x*2+t)*8+ks)*8+p,2)
    return vr(WV+(t*8+ks)*8+p,2)

def gen_rec(a, nsteps=64, opt=()):
    e=a.e
    SC='' if 'plainpub' in opt else ' sc1'
    P=dict(p2=46,p1=46,r1=40,r2=40,w2=2,mf=6,d1=20,d2=20,ds=10,f1=8,f2=8,g1=30,g2=30)
    STL=None
    for o in opt:
        if o.startswith('st='): STL=[int(x) for x in o[3:].split(',')]+[15]
        elif '=' in o: k_,v_=o.split('='); P[k_]=int(v_)
    lg=Cnt(a,'lgkmcnt',15); vm=Cnt(a,'vmcnt',63)
    l,n,g,t0,t1,t2=16,17,18,19,20,21
    e('v_and_b32 v%d, 63, v0'%l); e('v_and_b32 v%d, 15, v0'%n); e('v_bfe_u32 v%d, v0, 4, 2'%g)
    e('v_lshlrev_b32 v%d, 4, v%d'%(vL16,l))
    e('s_lshl_b32 s%d, s%d, 11'%(sT0,sW)); e('v_add_u32 v%d, s%d, v%d'%(vM2R,sT0,vL16))
    e('v_lshrrev_b32 v%d, 2, v%d'%(t0,n)); e('v_xor_b32 v%d, v%d, v%d'%(t0,t0,g)); e('v_lshlrev_b32 v%d, 3, v%d'%(t0,t0))
    e('v_lshl_add_u32 v%d, v%d, 5, v%d'%(t0,n,t0))
    e('s_lshl_b32 s%d, s%d, 10'%(sT0,sW)); e('s_add_u32 s%d, s%d, %d'%(sT0,sT0,L_QK)); e('v_add_u32 v%d, s%d, v%d'%(vQKW,sT0,t0))
    e('v_lshrrev_b32 v%d, 2, v%d'%(t0,n)); e('v_lshl_add_u32 v%d, v%d, 2, v%d'%(t0,g,t0)); e('v_lshlrev_b32 v%d, 5, v%d'%(t0,t0))
    e('v_and_b32 v%d, 3, v%d'%(t1,n)); e('v_xor_b32 v%d, v%d, v%d'%(t1,t1,g)); e('v_lshl_add_u32 v%d, v%d, 3, v%d'%(t0,t1,t0))
    e('v_add_u32 v%d, %d, v%d'%(vQKR,L_QK,t0))
    e('v_add_u32 v%d, %d, v%d'%(vKX,L_KX,vL16))
    e('v_and_b32 v%d, 13, v%d'%(t0,n)); e('v_lshl_add_u32 v%d, v%d, 4, v%d'%(t0,g,t0)); e('v_lshlrev_b32 v%d, 4, v%d'%(t0,t0))
    e('s_lshr_b32 s%d, s%d, 1'%(sT0,sW)); e('s_lshl_b32 s%d, s%d, 10'%(sT0,sT0)); e('s_and_b32 s%d, s%d, 1'%(sT1,sW)); e('s_lshl_b32 s%d, s%d, 5'%(sT1,sT1))
    e('s_add_u32 s%d, s%d, s%d'%(sT0,sT0,sT1)); e('s_add_u32 s%d, s%d, %d'%(sT0,sT0,L_O)); e('v_add_u32 v%d, s%d, v%d'%(vOW,sT0,t0))
    e('s_lshl_b32 s%d, s%d, 14'%(sT0,sW)); e('s_add_u32 s%d, s%d, %d'%(sT0,sT0,L_WO))
    e('v_add_u32 v%d, s%d, v%d'%(vWO0,sT0,vL16)); e('v_add_u32 v%d, 0x10000, v%d'%(vWO1,vWO0))
    e('v_lshrrev_b32 v%d, 2, v%d'%(t0,n)); e('v_lshlrev_b32 v%d, 13, v%d'%(t0,t0)); e('v_lshl_add_u32 v%d, v%d, 6, v%d'%(t0,g,t0))
    e('v_and_b32 v%d, 3, v%d'%(t1,n)); e('v_lshl_add_u32 v%d, v%d, 4, v%d'%(t0,t1,t0))
    e('s_lshl_b32 s%d, s%d, 15'%(sT0,sW)); e('s_lshl_b32 s%d, s%d, 8'%(sT1,sH)); e('s_add_u32 s%d, s%d, s%d'%(sT0,sT0,sT1))
    e('v_add_u32 v%d, s%d, v%d'%(vP1W,sT0,t0))
    e('v_lshrrev_b32 v%d, 3, v%d'%(t0,l)); e('v_lshlrev_b32 v%d, 8, v%d'%(t0,t0)); e('v_and_b32 v%d, 7, v%d'%(t1,l)); e('v_lshl_add_u32 v%d, v%d, 4, v%d'%(t0,t1,t0))
    e('s_and_b32 s%d, s%d, 1'%(sT0,sW)); e('s_lshl_b32 s%d, s%d, 7'%(sT0,sT0)); e('v_add_u32 v%d, s%d, v%d'%(vP1R,sT0,t0))
    e('v_and_b32 v%d, 3, v%d'%(t0,l)); e('v_lshlrev_b32 v%d, 2, v%d'%(t0,t0)); e('v_lshl_add_u32 v%d, v%d, 5, v%d'%(t0,g,t0))
    e('v_bfe_u32 v%d, v%d, 2, 1'%(t1,l)); e('v_lshl_add_u32 v%d, v%d, 6, v%d'%(t0,t1,t0))
    e('v_bfe_u32 v%d, v%d, 3, 1'%(t1,l)); e('v_lshl_add_u32 v%d, v%d, 4, v%d'%(t0,t1,t0))
    e('s_lshl_b32 s%d, s%d, 8'%(sT0,sH)); e('s_and_b32 s%d, s%d, 1'%(sT1,sW)); e('s_lshl_b32 s%d, s%d, 7'%(sT1,sT1)); e('s_add_u32 s%d, s%d, s%d'%(sT0,sT0,sT1))
    e('v_add_u32 v%d, s%d, v%d'%(vM2W,sT0,t0))
    e('s_mov_b32 s%d, 0xff00ff00'%sPAR); e('s_mov_b32 s%d, 0xff00ff00'%(sPAR+1))
    e('v_and_b32 v%d, 2, v%d'%(t0,n)); e('v_cmp_eq_u32 vcc, 0, v%d'%t0)
    e('v_mov_b32 v%d, 0xeeeeeeee'%t0); e('v_mov_b32 v%d, 0x44444444'%t1); e('v_cndmask_b32 v%d, v%d, v%d, vcc'%(vIDX,t0,t1))
    e('v_mov_b32 v15, 0')
    c=(128**-0.5)*math.log2(math.e)
    e('s_mov_b32 s%d, 0x%08x'%(sC,f32bits(c))); e('s_mov_b32 s%d, 0x%08x'%(sC+1,f32bits(c))); e('s_mov_b32 s%d, 0x%08x'%(sNC,f32bits(-c)))
    e('s_mov_b32 s%d, 0xcccccccc'%sEXQ); e('s_mov_b32 s%d, 0xcccccccc'%(sEXQ+1))
    e('s_cmp_eq_u32 s%d, 0'%sW); e('s_cselect_b64 s[%d:%d], 1, 0'%(sEX0,sEX0+1))
    e('s_cmp_lt_u32 s%d, 2'%sW); e('s_cselect_b32 s%d, -1, 0'%sEXM); e('s_mov_b32 s%d, 0'%(sEXM+1))
    for q in range(2): e('s_mov_b32 s%d, 0x%x'%(sP1W+q,WS_P1+q*131072))
    e('s_lshl_b32 s%d, s%d, 13'%(sT0,sH))
    for i in range(2): e('s_add_u32 s%d, s%d, 0x%x'%(sP1R+i,sT0,WS_P1+i*4096))
    e('s_mov_b32 s%d, 0x%x'%(sRA,WS_M2)); e('s_mov_b32 s%d, 0x%x'%(sRB,WS_M2+8192)); e('s_mov_b32 s%d, 0x%x'%(sRC,WS_M2+16384))
    e('s_lshl_b32 s%d, s%d, 13'%(sT0,sH)); e('s_add_u32 s%d, s%d, 0x%x'%(sKX,sT0,WS_K)); e('s_add_u32 s%d, s%d, 0x%x'%(sVX,sT0,WS_V))
    e('s_lshl_b32 s%d, s%d, 12'%(sT0,sH)); e('s_lshl_b32 s%d, s%d, 10'%(sT1,sW)); e('s_add_u32 s%d, s%d, s%d'%(sT0,sT0,sT1)); e('s_add_u32 s%d, s%d, 0x%x'%(sKM,sT0,WS_KM))
    e('s_lshl_b32 s%d, s%d, 11'%(sT0,sW)); e('s_add_u32 s%d, s%d, %d'%(sKM0,sT0,L_KX))
    FUSED='fused' in opt
    e('s_lshl_b32 s%d, s%d, 8'%(sT0,sH)); e('s_add_u32 s%d, s%d, 0x%x'%(sPROG,sT0,FL_REC))
    e('s_lshl_b32 s%d, s%d, 7'%(sT0,sH)); e('s_add_u32 s%d, s%d, 0x%x'%(sFLG,sT0,FL_G))
    e('s_mov_b32 s%d, 0'%sS); e('s_mov_b32 s%d, 1'%sTAG); e('s_mov_b32 s%d, 400000'%sBUD)
    ST='stamps' in opt
    sTM=68; sPREV=70; sACC0=72; NST=16
    if ST:
        for i in range(NST): e('s_mov_b32 s%d, 0'%(sACC0+i))
        e('s_mov_b32 s%d, 0'%sPREV)
    def stamp(i):
        if not ST: return
        if STL is not None and i not in STL: return
        e('s_memtime s[%d:%d]'%(sTM,sTM+1)); e('s_waitcnt lgkmcnt(0)'); lg.q=[]
        e('s_sub_u32 s%d, s%d, s%d'%(sPREV+1,sTM,sPREV)); e('s_add_u32 s%d, s%d, s%d'%(sACC0+i,sACC0+i,sPREV+1)); e('s_mov_b32 s%d, s%d'%(sPREV,sTM))
    def rt(i):
        if 'prof' not in opt: return
        e('s_memrealtime s[%d:%d]'%(sTM,sTM+1)); e('s_waitcnt lgkmcnt(0)'); lg.q=[]
        e('v_mov_b32 v22, s%d'%sTM); e('v_mov_b32 v23, 0')
        e('s_lshl_b32 s%d, s%d, 5'%(sTM+2,sH)); e('s_add_u32 s%d, s%d, 0x%x'%(sTM+2,sTM+2,WS_MISC+0x8000+4*i))
        e('s_mov_b64 exec, 1'); e('buffer_store_dword v22, v23, s[%d:%d], s%d offen'%(S_WS,S_WS+3,sTM+2)); e('s_mov_b64 exec, -1')
        e('s_waitcnt vmcnt(0)'); vm.q=[]
    rt(0)
    def budget(lbl,code):
        e('s_sub_u32 s%d, s%d, 1'%(sBUD,sBUD)); e('s_cmp_eq_u32 s%d, 0'%sBUD); e('s_cbranch_scc0 %s'%lbl)
        e('s_mov_b32 s%d, %d'%(sT0,code)); e('s_branch L_abort')

    L_SEL=L_MISC+1024
    e('v_and_b32 v%d, 1, v%d'%(t0,n)); e('v_cmp_eq_u32 vcc, 0, v%d'%t0)
    e('v_mov_b32 v%d, 0x3f800000'%t0); e('v_mov_b32 v%d, 0x3f80'%t1); e('v_cndmask_b32 v%d, v%d, v%d, vcc'%(t0,t0,t1))
    e('v_lshrrev_b32 v%d, 1, v%d'%(t1,n))
    for i in range(4):
        e('v_cmp_eq_u32 vcc, %d, v%d'%(i,t1)); e('v_cndmask_b32 v%d, v15, v%d, vcc'%(24+i,t0))
    e('ds_write_b128 v%d, v[24:27] offset:%d'%(vL16,L_SEL))
    e('s_waitcnt lgkmcnt(0)')
    for r in range(4): e('v_mov_b32 v%d, 0'%(24+r))
    e('v_mov_b32 v28, -1')
    e('s_lshl_b32 s%d, s%d, 11'%(sT0,sW)); e('s_add_u32 s%d, s%d, s%d'%(sT0,sT0,sP1R))
    for i in range(2): e('buffer_store_dwordx4 v[24:27], v%d, s[%d:%d], s%d offen offset:%d'%(vL16,S_WS,S_WS+3,sT0,i*1024))
    e('s_mov_b64 exec, s[%d:%d]'%(sEXM,sEXM+1))
    for sl in (sRA,sRB,sRC):
        e('buffer_store_dword v28, v%d, s[%d:%d], s%d offen'%(vM2W,S_WS,S_WS+3,sl))
    e('s_mov_b64 exec, -1')
    e('s_waitcnt vmcnt(0)')
    e('s_barrier')
    e('v_cmp_eq_u32 vcc, 0, v0')
    e('s_and_saveexec_b64 s[%d:%d], vcc'%(sT2,sT3))
    e('v_mov_b32 v24, 1'); e('v_mov_b32 v25, %d'%DBG_INIT)
    e('buffer_atomic_add v24, v25, s[%d:%d], 0 offen'%(S_DBG,S_DBG+3))
    e('s_mov_b64 exec, -1')
    dv=28
    e('v_lshrrev_b32 v%d, 1, v%d'%(t0,g)); e('v_lshlrev_b32 v%d, 1, v%d'%(t0,t0)); e('v_xor_b32 v%d, v%d, v%d'%(t0,t0,n))
    e('v_lshlrev_b32 v%d, 4, v%d'%(t0,t0)); e('v_lshl_add_u32 v%d, v%d, 13, v%d'%(t0,g,t0))
    e('s_lshl_b32 s%d, s%d, 8'%(sT0,sH)); e('v_add_u32 v%d, s%d, v%d'%(dv,sT0,t0))
    for k in range(1,4): e('v_xor_b32 v%d, %d, v%d'%(dv+k,k<<6,dv))
    r_,cc,row0,Fz=32,33,34,35
    tb=36
    e('v_lshrrev_b32 v%d, 2, v%d'%(r_,n)); e('v_and_b32 v%d, 3, v%d'%(cc,n))
    e('v_lshrrev_b32 v%d, 1, v%d'%(t0,g)); e('v_lshlrev_b32 v%d, 4, v%d'%(row0,t0))
    e('v_and_b32 v%d, 1, v%d'%(t0,g)); e('v_lshl_add_u32 v%d, v%d, 1, v%d'%(row0,t0,row0)); e('v_lshl_or_b32 v%d, v%d, 1, v%d'%(Fz,r_,t0))
    e('v_lshl_add_u32 v%d, v%d, 2, v%d'%(row0,r_,row0))
    e('v_lshrrev_b32 v%d, 1, v%d'%(t0,cc)); e('s_lshl_b32 s%d, s%d, 2'%(sT0,sW)); e('v_add_u32 v%d, s%d, v%d'%(t0,sT0,t0))
    e('v_lshlrev_b32 v%d, 1, v%d'%(t1,Fz)); e('v_xor_b32 v%d, v%d, v%d'%(t0,t0,t1)); e('v_lshlrev_b32 v%d, 4, v%d'%(t0,t0))
    e('v_lshl_add_u32 v%d, v%d, 8, v%d'%(t0,row0,t0))
    e('v_and_b32 v%d, 1, v%d'%(t1,cc)); e('v_lshl_add_u32 v%d, v%d, 3, v%d'%(t0,t1,t0))
    e('v_add_u32 v%d, %d, v%d'%(tb,L_WO,t0)); e('v_xor_b32 v%d, 32, v%d'%(tb+1,tb))
    e('v_add_u32 v%d, 0x10000, v%d'%(tb+2,tb)); e('v_add_u32 v%d, 0x10000, v%d'%(tb+3,tb+1))
    wo_b=40
    e('v_and_b32 v%d, 1, v%d'%(t0,g)); e('v_lshlrev_b32 v%d, 4, v%d'%(row0,t0)); e('v_lshlrev_b32 v%d, 3, v%d'%(Fz,t0))
    e('v_lshrrev_b32 v%d, 1, v%d'%(t0,g)); e('v_lshl_add_u32 v%d, v%d, 2, v%d'%(row0,t0,row0))
    e('v_and_b32 v%d, 1, v%d'%(t0,r_)); e('v_add_u32 v%d, v%d, v%d'%(row0,row0,t0)); e('v_or_b32 v%d, v%d, v%d'%(Fz,Fz,t0))
    e('v_lshrrev_b32 v%d, 1, v%d'%(t0,r_)); e('v_lshl_add_u32 v%d, v%d, 5, v%d'%(row0,t0,row0))
    e('v_lshlrev_b32 v%d, 1, v%d'%(t0,cc)); e('s_lshl_b32 s%d, s%d, 3'%(sT0,sW)); e('v_add_u32 v%d, s%d, v%d'%(t0,sT0,t0))
    e('v_xor_b32 v%d, v%d, v%d'%(t0,t0,Fz)); e('v_lshlrev_b32 v%d, 4, v%d'%(t0,t0))
    e('v_lshl_add_u32 v%d, v%d, 10, v%d'%(t0,row0,t0))
    e('v_add_u32 v%d, %d, v%d'%(wo_b,L_WO,t0)); e('v_xor_b32 v%d, 16, v%d'%(wo_b+1,wo_b))
    e('v_add_u32 v%d, 0x10000, v%d'%(wo_b+2,wo_b)); e('v_add_u32 v%d, 0x10000, v%d'%(wo_b+3,wo_b+1))
    def set_w(ptr,nbytes):
        e('s_mov_b32 s%d, s%d'%(S_W,ptr)); e('s_and_b32 s%d, s%d, 0xffff'%(S_W+1,ptr+1))
        e('s_mov_b32 s%d, 0x%x'%(S_W+2,nbytes)); e('s_mov_b32 s%d, 0x20000'%(S_W+3))
    def dma(nidx):
        area=nidx&1
        if nidx<6:
            x=nidx>>1; half=nidx&1
            set_w((sPWQ,sPWK,sPWV)[x],4*MB)
            e('s_lshl_b32 s%d, s%d, 19'%(sT0,sW)); e('s_add_u32 s%d, s%d, 0x%x'%(sT0,sT0,half*256*8192))
            e('s_lshl_b32 s%d, s%d, 14'%(sT1,sW)); e('s_add_u32 s%d, s%d, 0x%x'%(sT1,sT1,L_WO+area*65536))
            for i in range(16):
                e('s_mov_b32 m0, s%d'%sT1)
                e('buffer_load_dwordx4 v%d, s[%d:%d], s%d offen lds'%(dv+(i&3),S_W,S_W+3,sT0)); vm.issue(('dma',nidx))
                e('s_add_u32 s%d, s%d, 0x8000'%(sT0,sT0)); e('s_add_u32 s%d, s%d, 0x400'%(sT1,sT1))
        else:
            half=nidx&1
            set_w(sPWO,4*MB)
            e('s_lshl_b32 s%d, s%d, 17'%(sT0,sH)); e('s_lshl_b32 s%d, s%d, 14'%(sT1,sW)); e('s_add_u32 s%d, s%d, s%d'%(sT0,sT0,sT1))
            e('s_add_u32 s%d, s%d, 0x%x'%(sT0,sT0,half*65536)); e('s_add_u32 s%d, s%d, 0x%x'%(sT1,sT1,L_WO+area*65536))
            e('s_and_b32 s%d, s%d, 1'%(sT2,sW)); e('s_lshl_b32 s%d, s%d, 7'%(sT2,sT2))
            e('v_xor_b32 v44, s%d, v%d'%(sT2,vL16)); e('v_xor_b32 v45, 16, v44')
            for i in range(16):
                e('s_mov_b32 m0, s%d'%sT1)
                e('buffer_load_dwordx4 v%d, s[%d:%d], s%d offen lds'%(44+(i&1),S_W,S_W+3,sT0)); vm.issue(('dma',nidx))
                e('s_add_u32 s%d, s%d, 0x400'%(sT0,sT0)); e('s_add_u32 s%d, s%d, 0x400'%(sT1,sT1))
    vm.issue('atom')
    dma(0); dma(1)
    for nidx in range(8):
        area=nidx&1
        vm.wait(('dma',nidx))
        if nidx==7:
            e('v_mov_b32 v46, %d'%DBG_INIT); e('v_and_b32 v47, 0x30, v%d'%vL16)
            e('buffer_load_dword v48, v46, s[%d:%d], 0 offen sc1'%(S_DBG,S_DBG+3))
            if FUSED:
                e('buffer_load_dword v49, v46, s[%d:%d], 0 offen offset:%d sc1'%(S_DBG,S_DBG+3,DBG_FRDY-DBG_INIT))
                e('s_waitcnt vmcnt(0)')
                e('buffer_load_dword v50, v47, s[%d:%d], s%d offen sc1'%(S_WS,S_WS+3,sFLG))
        e('s_barrier')
        cnt=0
        if nidx<6:
            x=nidx>>1; half=nidx&1
            for t in range(2):
                for ksl in range(4):
                    ks=half*4+ksl
                    for p in range(0,8,2):
                        off=(64*ksl+32*(p>>2)+((p>>1)&1))*256
                        e('ds_read_b64_tr_b16 %s, v%d offset:%d'%(wreg2(x,t,ks,p),tb+2*area+t,off))
                        cnt+=1
                        if cnt%12==0: e('s_waitcnt lgkmcnt(4)')
            e('s_waitcnt lgkmcnt(0)'); e('s_barrier')
            dma(nidx+2)
        else:
            for tt in range(8):
                qq=tt>>2
                for p in range(0,8,2):
                    off=(8*(p>>2)+2*((p>>1)&1))*1024 + 32*qq*16 + 8*(tt&1)
                    e('ds_read_b64_tr_b16 %s, v%d offset:%d'%(vr(64+tt*8+p,2),wo_b+2*area+((tt>>1)&1),off))
                    cnt+=1
                    if cnt%12==0: e('s_waitcnt lgkmcnt(4)')
            e('s_waitcnt lgkmcnt(0)'); e('s_barrier')
            for tt in range(8):
                for hf in range(2):
                    e('ds_write_b128 v%d, %s offset:%d'%((vWO0,vWO1)[area],vr(64+tt*8+4*hf,4),tt*2048+hf*1024))
                if tt%4==3: e('s_waitcnt lgkmcnt(0)')
    e('v_mov_b32 v%d, 0'%(PM+1)); e('v_mov_b32 v%d, 0'%(VM0+1))
    rt(1)
    if FUSED:
        e('s_waitcnt vmcnt(0)')
        e('v_cmp_eq_u32 vcc, 0, v49'); e('v_cmp_gt_u32 s[%d:%d], 2, v50'%(sT2,sT3)); e('s_nop 3'); e('s_or_b64 vcc, vcc, s[%d:%d]'%(sT2,sT3))
        e('s_cbranch_vccz L_kv0_ok')
        e('v_mov_b32 v25, %d'%DBG_FRDY)
        a.label('L_frdy')
        e('buffer_load_dword v26, v25, s[%d:%d], 0 offen sc1'%(S_DBG,S_DBG+3)); e('s_waitcnt vmcnt(0)')
        e('v_cmp_eq_u32 vcc, 0, v26'); e('s_cbranch_vccz L_frdy_ok'); e('s_sleep 2')
        budget('L_frdy',4)
        a.label('L_frdy_ok')
        e('v_and_b32 v25, 0x30, v%d'%vL16)
        a.label('L_kv0')
        e('buffer_load_dword v26, v25, s[%d:%d], s%d offen sc1'%(S_WS,S_WS+3,sFLG)); e('s_waitcnt vmcnt(0)')
        e('v_cmp_gt_u32 vcc, 2, v26'); e('s_cbranch_vccz L_kv0_ok'); e('s_sleep 2')
        budget('L_kv0',5)
        a.label('L_kv0_ok')
    e('s_mov_b32 m0, s%d'%sKM0)
    e('buffer_load_dwordx4 v%d, s[%d:%d], s%d offen sc1 lds'%(vM2R,S_WS,S_WS+3,sKX))
    e('buffer_load_dwordx4 v%d, s[%d:%d], s%d offen offset:1024 sc1 lds'%(vM2R,S_WS,S_WS+3,sKX))
    e('s_xor_b32 s%d, s%d, 8192'%(sKM0,sKM0)); e('s_add_u32 s%d, s%d, 0x40000'%(sKX,sKX))
    e('v_lshrrev_b32 v%d, 2, v%d'%(t0,n)); e('v_lshlrev_b32 v%d, 11, v%d'%(t0,t0))
    e('v_and_b32 v%d, 1, v%d'%(t1,n)); e('v_lshl_add_u32 v%d, v%d, 10, v%d'%(t0,t1,t0)); e('v_lshl_add_u32 v%d, v%d, 5, v%d'%(t0,g,t0))
    e('v_bfe_u32 v%d, v%d, 1, 1'%(t1,n)); e('v_lshl_add_u32 v%d, v%d, 4, v%d'%(24,t1,t0))
    e('s_lshl_b32 s%d, s%d, 8'%(sT0,sW))
    e('buffer_load_dwordx4 v[32:35], v24, s[%d:%d], s%d offen'%(S_M0,S_M0+3,sT0))
    e('buffer_load_dwordx4 v[36:39], v24, s[%d:%d], s%d offen offset:128'%(S_M0,S_M0+3,sT0))
    for r in range(ACC,ACC+24,2): e('v_mov_b64 %s, 0'%vr(r,2))
    e('v_mov_b32 v25, %d'%DBG_INIT)
    e('s_waitcnt vmcnt(0)')
    e('v_cmp_gt_u32 vcc, 32, v48')
    e('s_cbranch_vccz L_init_ok')
    a.label('L_initwait')
    e('buffer_load_dword v26, v25, s[%d:%d], 0 offen sc1'%(S_DBG,S_DBG+3))
    e('s_waitcnt vmcnt(0)')
    e('v_cmp_gt_u32 vcc, 32, v26')
    e('s_cbranch_vccz L_init_ok')
    budget('L_initwait',1)
    a.label('L_init_ok')
    e('s_mov_b32 s%d, 0x05040100'%sT0); e('s_mov_b32 s%d, 0x07060302'%sT1)
    for k in range(2):
        s_=32+4*k; d_=MQ+4*k
        e('v_perm_b32 v%d, v%d, v%d, s%d'%(d_,s_+2,s_,sT0)); e('v_perm_b32 v%d, v%d, v%d, s%d'%(d_+1,s_+2,s_,sT1))
        e('v_perm_b32 v%d, v%d, v%d, s%d'%(d_+2,s_+3,s_+1,sT0)); e('v_perm_b32 v%d, v%d, v%d, s%d'%(d_+3,s_+3,s_+1,sT1))
    e('ds_write_b128 v%d, %s offset:%d'%(vM2R,vr(MQ,4),L_MEM)); e('ds_write_b128 v%d, %s offset:%d'%(vM2R,vr(MQ+4,4),L_MEM+1024))
    for r in range(0,8,2): e('v_mov_b64 %s, %s'%(vr(KX+24+r,2),vr(MQ+r,2)))
    e('s_waitcnt lgkmcnt(0)')
    e('s_mov_b32 m0, s%d'%sKM0)
    e('s_mov_b32 s%d, 2'%sNEED); e('s_mov_b32 s%d, s%d'%(sT1,sFLG))
    rt(2)
    stamp(15)
    e('s_branch L_have_mem')
    vm.reset(); lg.reset()

    def slowpath():
        a.label('L_sm_slow')
        e('s_waitcnt lgkmcnt(0)')
        for f in range(8): e('ds_read_b128 %s, v%d offset:%d'%(vr(KX+4*f,4),vKX,f*1024))
        FR2=[F,F+4,F+8,F+12]
        e('s_waitcnt lgkmcnt(0)')
        for c_ in range(4):
            e('ds_read_b64_tr_b16 %s, v%d offset:%d'%(vr(FR2[c_],2),vQKR,1024*c_))
            e('ds_read_b64_tr_b16 %s, v%d offset:%d'%(vr(FR2[c_]+2,2),vQKR,1024*c_+512))
        e('s_waitcnt lgkmcnt(0)')
        Sm,Sx0,Sx1=ACC,ACC+4,ACC+8
        for acc,Af in ((Sx0,lambda c:vr(KX+4*c,4)),(Sx1,lambda c:vr(KX+16+4*c,4)),(Sm,lambda c:vr(FR2[c],4))):
            for c_ in range(4):
                e('v_mfma_f32_16x16x32_bf16 %s, %s, %s, %s'%(vr(acc,4),Af(c_),vr(FR2[c_],4),'0' if c_==0 else vr(acc,4)))
        vals=[Sx0+i for i in range(4)]+[Sx1+i for i in range(4)]+[Sm,Sm+1]
        m,m2=PX,PX+1
        e('v_max_f32 v%d, v%d, v%d'%(m,vals[0],vals[1]))
        for i in range(2,10,2): e('v_max3_f32 v%d, v%d, v%d, v%d'%(m,m,vals[i],vals[i+1]))
        e('v_mov_b32 v%d, v%d'%(m2,m)); e('v_permlane32_swap_b32 v%d, v%d'%(m,m2)); e('v_max_f32 v%d, v%d, v%d'%(m,m,m2))
        e('v_mov_b32 v%d, v%d'%(m2,m)); e('v_permlane16_swap_b32 v%d, v%d'%(m,m2)); e('v_max_f32 v%d, v%d, v%d'%(m,m,m2))
        for v in vals: e('v_sub_f32 v%d, v%d, v%d'%(v,v,m))
        for v in vals: e('v_exp_f32 v%d, v%d'%(v,v))
        for i in range(4): e('v_cvt_pk_bf16_f32 v%d, v%d, v%d'%(MQ+4+i,vals[2*i],vals[2*i+1]))
        e('v_cvt_pk_bf16_f32 v%d, v%d, v%d'%(PM,Sm,Sm+1))
        O=MF+16
        e('v_mfma_f32_16x16x32_bf16 %s, %s, %s, 0'%(vr(O,4),vr(VX,4),vr(MQ+4,4)))
        e('v_mfma_f32_16x16x32_bf16 %s, %s, %s, 0'%(vr(O+4,4),vr(VX+4,4),vr(MQ+4,4)))
        e('v_mfma_f32_16x16x16_bf16 %s, %s, %s, %s'%(vr(O,4),vr(VM0,2),vr(PM,2),vr(O,4)))
        e('v_mfma_f32_16x16x16_bf16 %s, %s, %s, %s'%(vr(O+4,4),vr(vVM1,2),vr(PM,2),vr(O+4,4)))
        e('v_add_f32 v%d, v%d, v%d'%(m,vals[0],vals[1]))
        for v in vals[2:]: e('v_add_f32 v%d, v%d, v%d'%(m,m,v))
        e('v_mov_b32 v%d, v%d'%(m2,m)); e('v_permlane32_swap_b32 v%d, v%d'%(m,m2)); e('v_add_f32 v%d, v%d, v%d'%(m,m,m2))
        e('v_mov_b32 v%d, v%d'%(m2,m)); e('v_permlane16_swap_b32 v%d, v%d'%(m,m2)); e('v_add_f32 v%d, v%d, v%d'%(m,m,m2))
        e('v_rcp_f32 v%d, v%d'%(m,m))
        for (i,hf) in SLOW['wsnap']:
            tt,k2=SLOW['order'][i]; b=SLOW['WB'][i%8]
            e('ds_read_b128 %s, v%d offset:%d'%(vr(b+4*hf,4),(vWO0,vWO1)[k2],tt*2048+hf*1024))
        e('s_mov_b64 vcc, 0')
        e('s_waitcnt lgkmcnt(0)')
        a.fence()
        e('s_branch L_sm_back')
    SLOW={}
    def flagprep():
        e('s_add_u32 s%d, s%d, 2'%(sT0,sS)); e('s_min_u32 s%d, s%d, 63'%(sT0,sT0))
        e('s_and_b32 s%d, s%d, 15'%(sNEED,sT0)); e('s_lshr_b32 s%d, s%d, 4'%(sT0,sT0)); e('s_lshl_b32 s%d, s%d, 2'%(sT0,sT0)); e('s_add_u32 s%d, s%d, s%d'%(sT1,sT0,sFLG))
    def fill(k):
        if 'nofill' in opt and k<=2: return
        for _ in range(k): e('v_mov_b32 v%d, v%d'%(FIL,vL16))
    a.label('L_step')
    SA,SB,SA2=KX+24,KX+16,KX+8
    def iss2(R):
        for i in range(2):
            e('buffer_load_dwordx4 %s, v%d, s[%d:%d], s%d offen offset:%d sc1'%(vr(R+4*i,4),vM2R,S_WS,S_WS+3,sRA,1024*i))
    def chk2(R,lbl):
        fill(P['f2'])
        e('s_waitcnt vmcnt(2)')
        e('ds_write_b128 v%d, %s offset:%d'%(vM2R,vr(R,4),L_MEM))
        e('v_max3_u32 v%d, v%d, v%d, v%d'%(MQ,R,R+1,R+2))
        e('v_max3_u32 v%d, v%d, v%d, v%d'%(MQ+1,R+4,R+5,R+6))
        e('ds_write_b128 v%d, %s offset:%d'%(vM2R,vr(R+4,4),L_MEM+1024))
        e('v_max3_u32 v%d, v%d, v%d, v%d'%(MQ,MQ,R+3,R+7))
        e('v_max_u32 v%d, v%d, v%d'%(MQ,MQ,MQ+1))
        e('v_cmp_eq_u32 vcc, -1, v%d'%MQ)
        fill(3)
        e('s_waitcnt lgkmcnt(0)')
        e('s_cbranch_vccz %s'%lbl)
    iss2(SA)
    fill(P['g2'])
    a.label('L_poll2')
    iss2(SB)
    chk2(SA,'L_poll2_ok')
    if ST: e('s_add_u32 s%d, s%d, 63'%(sACC0+6,sACC0+6))
    iss2(SA)
    chk2(SB,'L_poll2_okB')
    if ST: e('s_add_u32 s%d, s%d, 63'%(sACC0+6,sACC0+6))
    budget('L_poll2',2)
    a.label('L_poll2_okB')
    for r in range(0,8,2): e('v_mov_b64 %s, %s'%(vr(SA+r,2),vr(SB+r,2)))
    a.label('L_poll2_ok')
    stamp(0)
    a.label('L_have_mem')
    e('s_barrier')
    stamp(1)
    if 'tl' in P:
        e0=a.e; cnt=[0]
        def e_tl(t):
            if cnt[0]==P['tl']:
                cnt[0]+=1
                a.e=e0
                e0('s_memtime s[%d:%d]'%(sTM+20,sTM+21))
                a.tl_text=t
                a.e=e_tl
            else: cnt[0]+=1
            e0(t)
        a.e=e_tl; e=e_tl; lg.a=a;
    def compute():
        def mfread(ks):
            e('ds_read_b128 %s, v%d offset:%d'%(vr(MF+4*ks,4),vL16,L_MEM+ks*1024)); lg.issue(('mf',ks))
        def kxread(f):
            e('ds_read_b128 %s, v%d offset:%d'%(vr(KX+4*f,4),vKX,f*1024)); lg.issue(('kx',f))
        def vxl(i):
            if 'novm' in opt: vm.issue('vx'); fill(1); return
            e('buffer_load_dwordx4 %s, v%d, s[%d:%d], s%d offen offset:%d sc1'%(vr(VX+4*i,4),vM2R,S_WS,S_WS+3,sVX,1024*i)); vm.issue('vx')
        def kdma(i):
            if 'novm' in opt: fill(1); return
            e('buffer_load_dwordx4 v%d, s[%d:%d], s%d offen offset:%d sc1 lds'%(vM2R,S_WS,S_WS+3,sKX,1024*i)); vm.issue('kx')
        def prog():
            if not FUSED: fill(1); return
            e('s_mov_b64 exec, s[%d:%d]'%(sEX0,sEX0+1))
            e('buffer_store_dword v%d, v15, s[%d:%d], s%d offen sc1'%(MQ+6,S_WS,S_WS+3,sPROG)); vm.issue('prog')
            e('s_mov_b64 exec, -1')
        def flagld():
            if not FUSED: fill(1); return
            e('buffer_load_dword v%d, v%d, s[%d:%d], s%d offen sc1'%(vONE,MQ+7,S_WS,S_WS+3,sT1)); vm.issue('flag')
        def kx0():
            e('s_waitcnt vmcnt(2)'); kxread(0)
        def rs1():
            e('v_mov_b32 v%d, -1'%(MQ+5))
        def rs2():
            e('s_mov_b64 exec, s[%d:%d]'%(sEXM,sEXM+1))
            e('buffer_store_dword v%d, v%d, s[%d:%d], s%d offen'%(MQ+5,vM2W,S_WS,S_WS+3,sRC)); vm.issue('rst')
            e('s_mov_b64 exec, -1')
        def pv():
            e('v_mov_b32 v%d, s%d'%(MQ+6,sS))
        def fa():
            e('v_and_b32 v%d, 0x30, v%d'%(MQ+7,vL16))
        F1=lambda:fill(1)
        import copy
        lgq0=list(lg.q); vmq0=list(vm.q); hist0=list(a.hist)
        for wv in range(1,4):
            e('s_cmp_eq_u32 s%d, %d'%(sW,wv)); e('s_cbranch_scc1 L_qk%d'%wv)
        for wv in range(4):
            if wv: a.label('L_qk%d'%wv)
            lg.q=list(lgq0); vm.q=list(vmq0); a.hist=list(hist0)
            own=[2*wv,2*wv+1]; oth=[k for k in range(8) if k not in own]
            W=lambda i:(lambda:lg.wait(('mf',oth[i])))
            R_=lambda k:(lambda:mfread(k))
            mfread(oth[0]); mfread(oth[1])
            gaps=[R_(oth[2]),R_(oth[3]),R_(oth[4]),R_(oth[5]),
                  R_(own[0]),R_(own[1]),lambda:vxl(0),W(1),
                  lambda:vxl(1),kx0,lambda:kdma(0),lambda:kxread(1),
                  lambda:kdma(1),lambda:kxread(2),lambda:kxread(3),W(5),
                  lambda:kxread(4),lambda:kxread(5),lambda:kxread(6),lambda:kxread(7),
                  pv,fa,prog,rs1,flagld,F1,rs2]+[F1]*5
            gi=0
            for ks in own+oth:
                A=vr(SA+4*(ks&1),4) if ks in own else vr(MF+4*ks,4)
                for x in range(2):
                    for t in range(2):
                        e('v_smfmac_f32_16x16x64_bf16 %s, %s, %s, v%d'%(vr(ACC+(x*2+t)*4,4),A,wreg(x,t,ks),vIDX))
                        if gi<31 or wv==3: gaps[gi]()
                        gi+=1
            lg.wait(('mf',own[1]))
            if wv<3: e('s_branch L_qk_done')
        a.label('L_qk_done')
        stamp(2)
        vq=[(ks,t) for ks in range(8) for t in range(2)]
        def vmf(k=1,f=1):
            for _ in range(k):
                ks,t=vq.pop(0)
                e('v_smfmac_f32_16x16x64_bf16 %s, %s, %s, v%d'%(vr(VACC+t*4,4),vr(MF+4*ks,4),wreg(2,t,ks),vIDX))
                fill(f)
        vmf(1,0)
        e('v_pk_add_f32 %s, %s, %s'%(vr(MQ+4,2),vr(ACC,2),vr(ACC+2,2)))
        e('v_pk_add_f32 %s, %s, %s'%(vr(MQ+6,2),vr(ACC+4,2),vr(ACC+6,2)))
        e('v_pk_mul_f32 %s, %s, s[%d:%d]'%(vr(MQ+4,2),vr(MQ+4,2),sC,sC+1))
        e('v_pk_mul_f32 %s, %s, s[%d:%d]'%(vr(MQ+6,2),vr(MQ+6,2),sC,sC+1))
        e('v_pk_add_f32 %s, %s, %s'%(vr(ACC,2),vr(ACC+8,2),vr(ACC+10,2)))
        e('v_pk_add_f32 %s, %s, %s'%(vr(ACC+2,2),vr(ACC+12,2),vr(ACC+14,2)))
        e('v_cvt_pk_bf16_f32 v%d, v%d, v%d'%(MQ+2,MQ+4,MQ+5))
        e('v_cvt_pk_bf16_f32 v%d, v%d, v%d'%(MQ,ACC,ACC+1))
        e('v_cvt_pk_bf16_f32 v%d, v%d, v%d'%(MQ+3,MQ+6,MQ+7))
        e('ds_write2_b32 v%d, v%d, v%d offset0:0 offset1:1'%(vQKW,MQ,MQ+2)); lg.issue(('qkw',0))
        e('v_cvt_pk_bf16_f32 v%d, v%d, v%d'%(MQ+1,ACC+2,ACC+3))
        e('ds_write2_b32 v%d, v%d, v%d offset0:128 offset1:129'%(vQKW,MQ+1,MQ+3)); lg.issue(('qkw',1))
        vmf(5)
        lg.wait(('qkw',1))
        stamp(3)
        e('s_barrier')
        stamp(4)
        FR=[F,F+4,F+8,PX]
        def fread(c_):
            e('ds_read_b64_tr_b16 %s, v%d offset:%d'%(vr(FR[c_],2),vQKR,1024*c_)); lg.issue(('f',c_,0))
            e('ds_read_b64_tr_b16 %s, v%d offset:%d'%(vr(FR[c_]+2,2),vQKR,1024*c_+512)); lg.issue(('f',c_,1))
        Sm,Sx0,Sx1=ACC,ACC+4,ACC+8
        WB=[KX,KX+8,KX+16,KX+24,MF,MF+8,MF+24,MQ]
        NWB=8
        order=[(tt,k2) for tt2 in range(4) for k2 in range(2) for tt in (2*tt2,2*tt2+1)]
        wq=[(i,hf) for i in range(16) for hf in range(2)]
        wdone=[]
        def wo(k=1):
            for _ in range(k):
                if not wq: return False
                i,hf=wq.pop(0); wdone.append((i,hf)); tt,k2=order[i]; b=WB[i%NWB]
                e('ds_read_b128 %s, v%d offset:%d'%(vr(b+4*hf,4),(vWO0,vWO1)[k2],tt*2048+hf*1024)); lg.issue(('wo',i,hf))
            return True
        def smf(acc,A,c_):
            e('v_mfma_f32_16x16x32_bf16 %s, %s, %s, %s'%(vr(acc,4),A,vr(FR[c_],4),'0' if c_==0 else vr(acc,4)))
        def ex(r): e('v_exp_f32 v%d, v%d'%(r,r))
        def cv(d,r): e('v_cvt_pk_bf16_f32 v%d, v%d, v%d'%(d,r,r+1))
        PXT=MQ+4
        for c_ in range(4): fread(c_)
        vmf(1,0)
        if 'nopub' not in opt: e('buffer_store_dwordx2 %s, v%d, s[%d:%d], s%d offen%s'%(vr(MQ,2),vL16,S_WS,S_WS+3,sKM,SC)); vm.issue('km')
        vmf(1,0)
        for c_ in range(4):
            lg.wait(('f',c_,1)); smf(Sx0,vr(KX+4*c_,4),c_)
            fill(1)
        for c_ in range(4):
            smf(Sx1,vr(KX+16+4*c_,4),c_)
            if c_<2: wo(2)
            else: ex(Sx0+c_-2)
        for c_ in range(4):
            smf(Sm,vr(FR[c_],4),c_)
            if c_<2: ex(Sx0+2+c_)
            else: ex(Sx1+c_-2)
            wo(1)
        stamp(5)
        vmf(1,0); cv(PXT,Sx0); wo(1)
        vmf(1,0); ex(Sx1+2)
        vmf(1,0); ex(Sx1+3)
        vmf(1,0); cv(PXT+1,Sx0+2); wo(1)
        vmf(1,0); ex(Sm)
        vmf(1,0); ex(Sm+1)
        vmf(1,0); cv(PXT+2,Sx1); wo(1)
        vmf(1,0); cv(PXT+3,Sx1+2); wo(1)
        assert not vq, vq
        stamp(6)
        vm.wait('vx')
        stamp(7)
        O=MF+16
        L0=PX
        cv(PM,Sm)
        e('v_mfma_f32_16x16x32_bf16 %s, %s, %s, 0'%(vr(O,4),vr(VX,4),vr(PXT,4)))
        e('v_pk_add_f32 %s, %s, %s'%(vr(L0,2),vr(Sx0,2),vr(Sx0+2,2)))
        e('v_pk_add_f32 %s, %s, %s'%(vr(L0+2,2),vr(Sx1,2),vr(Sx1+2,2)))
        e('v_mfma_f32_16x16x32_bf16 %s, %s, %s, 0'%(vr(O+4,4),vr(VX+4,4),vr(PXT,4)))
        e('v_pk_add_f32 %s, %s, %s'%(vr(VACC,2),vr(VACC,2),vr(VACC+2,2)))
        e('v_pk_add_f32 %s, %s, %s'%(vr(VACC+4,2),vr(VACC+4,2),vr(VACC+6,2)))
        cv(VM0,VACC); cv(vVM1,VACC+4)
        e('v_pk_add_f32 %s, %s, %s'%(vr(L0,2),vr(L0,2),vr(Sm,2)))
        e('v_pk_add_f32 %s, %s, %s'%(vr(L0,2),vr(L0,2),vr(L0+2,2)))
        e('v_mfma_f32_16x16x16_bf16 %s, %s, %s, %s'%(vr(O,4),vr(VM0,2),vr(PM,2),vr(O,4)))
        e('v_add_f32 v%d, v%d, v%d'%(L0+2,L0,L0+1)); e('v_add_f32 v%d, v%d, v%d'%(L0+3,L0,L0+1))
        e('v_mfma_f32_16x16x16_bf16 %s, %s, %s, %s'%(vr(O+4,4),vr(vVM1,2),vr(PM,2),vr(O+4,4)))
        wo(1)
        e('v_permlane32_swap_b32 v%d, v%d'%(L0+2,L0+3))
        e('v_add_f32 v%d, v%d, v%d'%(L0,L0+2,L0+3)); e('v_add_f32 v%d, v%d, v%d'%(L0+1,L0+2,L0+3))
        wo(1); cv(MQ+2,VACC)
        e('v_permlane16_swap_b32 v%d, v%d'%(L0,L0+1))
        e('v_add_f32 v%d, v%d, v%d'%(L0+2,L0,L0+1))
        e('v_rcp_f32 v%d, v%d'%(L0,L0+2))
        e('v_lshrrev_b32 v%d, 23, v%d'%(L0+3,L0+2))
        e('v_subrev_u32 v%d, 27, v%d'%(L0+3,L0+3))
        e('v_cmp_lt_u32 vcc, %d, v%d'%(0 if 'forceslow' in opt else 200,L0+3))
        a.label('L_sm_back')
        for r in range(0,8,2):
            e('v_pk_mul_f32 %s, %s, %s op_sel_hi:[1,0]'%(vr(O+r,2),vr(O+r,2),vr(L0,2)))
        cv(MQ+3,VACC+4)
        e('s_and_b64 vcc, vcc, s[%d:%d]'%(sEXQ,sEXQ+1))
        for r in range(4): cv(MQ+4+r,O+2*r)
        e('s_cbranch_scc1 L_sm_slow')
        wsnap=list(wdone)
        e('s_mov_b64 exec, s[%d:%d]'%(sEXQ,sEXQ+1))
        e('ds_write_b128 v%d, %s'%(vOW,vr(MQ+4,4))); lg.issue('ow')
        e('s_mov_b64 exec, -1')
        if 'nopub' not in opt: e('buffer_store_dwordx2 %s, v%d, s[%d:%d], s%d offen offset:8%s'%(vr(MQ+2,2),vL16,S_WS,S_WS+3,sKM,SC)); vm.issue('vmst')
        OACC=[ACC,ACC+4,ACC+8,ACC+12,VACC,VACC+4,O,O+4]
        e('s_cmp_eq_u32 s%d, %d'%(sS,nsteps-1))
        e('s_cbranch_scc1 L_rec_done')
        for b in OACC[:4]:
            e('v_mov_b64 %s, 0'%vr(b,2)); e('v_mov_b64 %s, 0'%vr(b+2,2))
        lg.wait('ow')
        stamp(8)
        e('s_barrier')
        stamp(9)
        OA=VX
        e('ds_read_b128 %s, v%d offset:%d'%(vr(OA,4),vL16,L_O)); lg.issue('oa0')
        e('ds_read_b128 %s, v%d offset:%d'%(vr(OA+4,4),vL16,L_O+1024)); lg.issue('oa1')
        wo(2)
        for b in OACC[4:]:
            e('v_mov_b64 %s, 0'%vr(b,2)); e('v_mov_b64 %s, 0'%vr(b+2,2))
        post=[]
        def mkpost(tt):
            b=OACC[tt]; T=OACC[tt&4]+(tt&3)
            r=['v_pk_add_f32 %s, %s, %s'%(vr(b,2),vr(b,2),vr(b+2,2)), 'v_cvt_pk_bf16_f32 v%d, v%d, v%d'%(T,b,b+1)]
            if tt&3==0: r.append('v_and_or_b32 v%d, v%d, -2, s%d'%(T,T,sTAG))
            if tt&3==3 and 'nost' not in opt: r.append('buffer_store_dwordx4 %s, v%d, s[%d:%d], s%d offen'%(vr(OACC[tt&4],4),vP1W,S_WS,S_WS+3,sP1W+(tt>>2)))
            return r
        for i,(tt,k2) in enumerate(order):
            if i==0: lg.wait('oa0')
            if i==2: lg.wait('oa1')
            if i%2==0: lg.wait(('wo',i+1,1))
            e('v_smfmac_f32_16x16x64_bf16 %s, %s, %s, v%d'%(vr(OACC[tt],4),vr(OA+4*k2,4),vr(WB[i%NWB],8),vIDX))
            if wq: wo(2 if i<4 else 1)
            else:
                if i==12:
                    for t_ in range(4): post+=mkpost(t_)
                if post:
                    e(post.pop(0)); e(post.pop(0))
        assert not wq
        for t_ in range(4,8): post+=mkpost(t_)
        for x in post: e(x)
        SLOW.update(wsnap=wsnap,order=order,WB=WB)
    def skeleton():
        e('v_mov_b32 v%d, -1'%(MQ+5))
        e('s_mov_b64 exec, s[%d:%d]'%(sEXM,sEXM+1))
        e('buffer_store_dword v%d, v%d, s[%d:%d], s%d offen'%(MQ+5,vM2W,S_WS,S_WS+3,sRC))
        e('s_mov_b64 exec, -1')
        fill(P.get('sk',200))
        e('s_cmp_eq_u32 s%d, %d'%(sS,nsteps-1))
        e('s_cbranch_scc1 L_rec_done')
        e('s_barrier')
        stamp(9)
        for qq in range(2):
            T=ACC+4*qq
            e('v_and_or_b32 v%d, v%d, -2, s%d'%(T,15,sTAG))
            e('buffer_store_dwordx4 %s, v%d, s[%d:%d], s%d offen'%(vr(T,4),vP1W,S_WS,S_WS+3,sP1W+qq))
            if qq==0: fill(P.get('sg',8))
    if 'skel' in opt: skeleton()
    else: compute()
    SEL=KX
    e('ds_read_b128 %s, v%d offset:%d'%(vr(SEL,4),vL16,L_SEL))
    e('v_xor_b32 v%d, 8192, v%d'%(vKX,vKX))
    e('s_xor_b32 s%d, s%d, 8192'%(sKM0,sKM0)); e('s_add_u32 s%d, s%d, 0x40000'%(sVX,sVX)); e('s_add_u32 s%d, s%d, 0x20000'%(sKM,sKM))
    e('s_add_u32 s%d, s%d, 1'%(sS,sS)); e('s_cmp_lt_u32 s%d, 62'%sS); e('s_cselect_b32 s%d, 0x40000, 0'%sT0); e('s_add_u32 s%d, s%d, s%d'%(sKX,sKX,sT0))
    for r in range(ACC,ACC+24,2): e('v_mov_b64 %s, 0'%vr(r,2))
    e('s_mov_b32 m0, s%d'%sKM0)
    stamp(10)
    if 'solo' in opt:
        e('s_waitcnt vmcnt(0) lgkmcnt(0)')
        if 'tl' in P:
            e('s_sub_u32 s%d, s%d, s%d'%(sTM+22,sTM+20,sPREV)); e('s_add_u32 s%d, s%d, s%d'%(sACC0+2,sACC0+2,sTM+22))
        fill(30)
        e('s_branch L_have_mem')
    e('s_cmp_ge_u32 s%d, 2'%sW)
    e('s_cbranch_scc1 L_side')
    fill(P['d1'])
    P1=MF; X=KX+8
    PA,PB=MF,MF+16
    def iss1(R):
        for i in range(4):
            e('buffer_load_dwordx4 %s, v%d, s[%d:%d], s%d offen offset:%d sc1'%(vr(R+4*i,4),vP1R,S_WS,S_WS+3,sP1R+(i>>1),2048*(i&1)))
    def chk1(R,lbl):
        fill(P['f1'])
        for i in range(4):
            e('s_waitcnt vmcnt(%d)%s'%(7-i,' lgkmcnt(0)' if i==0 else ''))
            e('v_mfma_f32_16x16x32_bf16 %s, %s, %s, %s'%(vr(X,4),vr(SEL,4),vr(R+4*i,4),'0' if i==0 else vr(X,4)))
            if i==1: e('v_bitop3_b32 v%d, v%d, v%d, s%d bitop3:0x7e'%(MQ,R,R+4,sTAG))
        e('v_bitop3_b32 v%d, v%d, v%d, s%d bitop3:0x7e'%(MQ+1,R+8,R+12,sTAG))
        e('v_or_b32 v%d, v%d, v%d'%(MQ,MQ,MQ+1))
        e('v_and_b32 v%d, 1, v%d'%(MQ,MQ))
        e('v_cmp_ne_u32 vcc, 0, v%d'%MQ)
        fill(4)
        e('s_cbranch_vccz %s'%lbl)
    iss1(PA)
    fill(P['g1'])
    a.label('L_poll1')
    iss1(PB)
    chk1(PA,'L_poll1_ok')
    if ST: e('s_add_u32 s%d, s%d, 63'%(sACC0+5,sACC0+5))
    iss1(PA)
    chk1(PB,'L_poll1_ok')
    if ST: e('s_add_u32 s%d, s%d, 63'%(sACC0+5,sACC0+5))
    budget('L_poll1',3)
    a.label('L_poll1_ok')
    stamp(12)
    for r in range(4):
        e('v_add_f32_dpp v%d, v%d, v%d row_ror:8 row_mask:0xf bank_mask:0xf'%(X+4+r,X+r,X+r))
    e('v_cndmask_b32 v%d, v%d, v%d, s[%d:%d]'%(X,X+4,X+5,sPAR,sPAR+1)); e('v_cndmask_b32 v%d, v%d, v%d, s[%d:%d]'%(X+2,X+6,X+7,sPAR,sPAR+1))
    e('v_cvt_pk_bf16_f32 v%d, v%d, v%d'%(X+4,X,X+2))
    e('s_mov_b64 exec, s[%d:%d]'%(sEXM,sEXM+1))
    e('v_min_u32 v%d, -2, v%d'%(X+4,X+4))
    e('buffer_store_dword v%d, v%d, s[%d:%d], s%d offen'%(X+4,vM2W,S_WS,S_WS+3,sRB))
    e('s_mov_b64 exec, -1')
    stamp(13)
    fill(P['d2'])
    e('s_branch L_join')
    a.label('L_side')
    e('s_waitcnt vmcnt(0) lgkmcnt(0)')
    if 'prof' in opt:
        e('s_memrealtime s[%d:%d]'%(sTM,sTM+1)); e('s_waitcnt lgkmcnt(0)')
        e('v_mov_b32 v22, s%d'%sTM)
        e('s_lshl_b32 s%d, s%d, 8'%(sTM+2,sH)); e('s_lshl_b32 s%d, s%d, 2'%(sTM+3,sS)); e('s_add_u32 s%d, s%d, s%d'%(sTM+2,sTM+2,sTM+3)); e('s_add_u32 s%d, s%d, 0x%x'%(sTM+2,sTM+2,WS_MISC+0x18000))
        e('s_mov_b64 exec, 1'); e('buffer_store_dword v22, v15, s[%d:%d], s%d offen'%(S_WS,S_WS+3,sTM+2)); e('s_mov_b64 exec, -1')
    if FUSED:
        e('v_cmp_ge_u32 vcc, s%d, v%d'%(sNEED,vONE))
        fill(4)
        e('s_cbranch_vccz L_kv_ok')
        e('v_and_b32 v%d, 0x30, v%d'%(MQ+7,vL16))
        a.label('L_kvspin')
        e('buffer_load_dword v%d, v%d, s[%d:%d], s%d offen sc1'%(vONE,MQ+7,S_WS,S_WS+3,sT1)); e('s_waitcnt vmcnt(0)')
        e('v_cmp_ge_u32 vcc, s%d, v%d'%(sNEED,vONE)); e('s_cbranch_vccz L_kv_ok')
        budget('L_kvspin',6)
        a.label('L_kv_ok')
    e('s_mov_b32 s%d, %d'%(sT0,P['ds']))
    a.label('L_sidefill')
    fill(8)
    e('s_sub_u32 s%d, s%d, 1'%(sT0,sT0)); e('s_cmp_lg_u32 s%d, 0'%sT0); e('s_cbranch_scc1 L_sidefill')
    a.label('L_join')
    if FUSED: flagprep()
    fill(1)
    e('s_mov_b32 s%d, s%d'%(sT0,sRA)); e('s_mov_b32 s%d, s%d'%(sRA,sRB)); fill(1); e('s_mov_b32 s%d, s%d'%(sRB,sRC)); e('s_mov_b32 s%d, s%d'%(sRC,sT0))
    fill(1)
    e('s_xor_b32 s%d, s%d, 1'%(sTAG,sTAG))
    if 'tl' in P and 'solo' not in opt:
        e('s_waitcnt lgkmcnt(0)')
        e('s_sub_u32 s%d, s%d, s%d'%(sTM+22,sTM+20,sPREV)); e('s_add_u32 s%d, s%d, s%d'%(sACC0+2,sACC0+2,sTM+22))
    e('s_branch L_step')
    if 'skel' not in opt: slowpath()
    a.label('L_rec_done')
    e('s_waitcnt vmcnt(0) lgkmcnt(0)')
    rt(3)
    if ST:
        e('s_lshl_b32 s%d, s%d, 2'%(sT0,sH)); e('s_add_u32 s%d, s%d, s%d'%(sT0,sT0,sW)); e('s_lshl_b32 s%d, s%d, 7'%(sT0,sT0)); e('s_add_u32 s%d, s%d, 0x%x'%(sT0,sT0,WS_MISC))
        e('s_mov_b64 exec, 1')
        for i in range(NST):
            e('v_mov_b32 v16, s%d'%(sACC0+i))
            e('buffer_store_dword v16, v15, s[%d:%d], s%d offen offset:%d'%(S_WS,S_WS+3,sT0,4*i))
        e('v_mov_b32 v16, s%d'%sBUD)
        e('buffer_store_dword v16, v15, s[%d:%d], s%d offen offset:%d'%(S_WS,S_WS+3,sT0,4*NST))
        e('s_mov_b64 exec, -1')
    if FUSED:
        e('s_barrier')
        e('v_mov_b32 v%d, %d'%(MQ,nsteps))
        e('s_cmp_eq_u32 s%d, 0'%sW)
        e('s_cselect_b64 exec, 1, 0')
        e('buffer_store_dword v%d, v15, s[%d:%d], s%d offen sc1'%(MQ,S_WS,S_WS+3,sPROG))
        e('s_mov_b64 exec, -1')
    e('s_waitcnt vmcnt(0)')
    e('s_endpgm')
    a.label('L_abort')
    e('s_waitcnt vmcnt(0) lgkmcnt(0)')
    e('s_lshl_b32 s%d, s%d, 8'%(sT1,sS)); e('s_or_b32 s%d, s%d, s%d'%(sT0,sT0,sT1))
    e('v_mov_b32 v16, s%d'%sT0); e('v_mov_b32 v17, %d'%DBG_ABORT)
    e('s_mov_b64 exec, 1')
    e('buffer_store_dword v16, v17, s[%d:%d], 0 offen sc1'%(S_DBG,S_DBG+3))
    e('s_waitcnt vmcnt(0)')
    e('s_endpgm')

from gen_rec import HEADER, kd, srd

def rec_only_kernel(nsteps=64,opt=()):
    a=Asm()
    name='rec_kernel'
    a.raw(HEADER+'; @launch kernel=%s grid=(256,1,1) block=(256,1,1) lds=%d'%(name,LDS_BYTES))
    a.raw('.amdgcn_target "amdgcn-amd-amdhsa--gfx950"\n.text\n.globl %s\n.p2align 8\n.type %s,@function\n%s:'%(name,name,name))
    rec_body(a,nsteps,opt)
    a.raw(kd(name,sgpr=102))
    return a

def rec_body(a,nsteps,opt):
    e=a.e
    e('s_load_dwordx2 s[4:5], s[0:1], 8')
    e('s_load_dwordx4 s[%d:%d], s[0:1], 16'%(sPWQ,sPWQ+3))
    e('s_load_dwordx4 s[%d:%d], s[0:1], 32'%(sPWV,sPWV+3))
    e('s_load_dwordx4 s[68:71], s[0:1], 112')
    e('s_getreg_b32 s3, hwreg(HW_REG_XCC_ID, 0, 4)')
    e('v_lshrrev_b32 v1, 6, v0')
    e('v_readfirstlane_b32 s%d, v1'%sW)
    e('s_waitcnt lgkmcnt(0)')
    srd(e,S_WS,70,WS_BYTES); srd(e,S_DBG,68,256); srd(e,S_M0,4,8192); srd(e,S_W,sPWQ,4*MB)
    e('s_cmp_lg_u32 s3, 0')
    e('s_cbranch_scc1 L_exit')
    e('v_cmp_eq_u32 vcc, 0, v0')
    e('s_and_saveexec_b64 s[%d:%d], vcc'%(sT2,sT3))
    e('s_cbranch_execz L_noticket')
    e('v_mov_b32 v1, 1'); e('v_mov_b32 v2, %d'%DBG_TICKET)
    e('buffer_atomic_add v1, v2, s[%d:%d], 0 offen sc0'%(S_DBG,S_DBG+3))
    e('s_waitcnt vmcnt(0)')
    e('v_mov_b32 v2, %d'%L_MISC)
    e('ds_write_b32 v2, v1')
    e('s_waitcnt lgkmcnt(0)')
    a.label('L_noticket')
    e('s_mov_b64 exec, -1')
    e('s_barrier')
    e('v_mov_b32 v2, %d'%L_MISC)
    e('ds_read_b32 v1, v2')
    e('s_waitcnt lgkmcnt(0)')
    e('v_readfirstlane_b32 s%d, v1'%sH)
    e('s_nop 3')
    e('s_cmp_ge_u32 s%d, 32'%sH)
    e('s_cbranch_scc1 L_exit')
    gen_rec(a,nsteps,opt)
    a.label('L_exit')
    e('s_endpgm')

if __name__=='__main__':
    import sys
    ns=int(sys.argv[2]) if len(sys.argv)>2 else 64
    a=rec_only_kernel(ns,tuple(sys.argv[3:]))
    open(sys.argv[1],'w').write(a.text())
    print('nops inserted',a.nops,'lines',len(a.out))
```

```python
from asmdsl import *
from layout import *
import gen_rec3 as R
import gen_bulk as B
import sys
NAME='gated_mix__memory_aug_recurrent_mem_tr__moe_arch_mod__prompt_kernel'
def ticket(a,tag,off,dst):
    e=a.e
    e('v_cmp_eq_u32 vcc, 0, v0')
    e('s_and_saveexec_b64 s[46:47], vcc')
    e('s_cbranch_execz L_nt_%s'%tag)
    e('v_mov_b32 v1, 1'); e('v_mov_b32 v2, %s'%off)
    e('buffer_atomic_add v1, v2, s[%d:%d], 0 offen sc0'%(B.S_DBG,B.S_DBG+3))
    e('s_waitcnt vmcnt(0)')
    e('v_mov_b32 v2, %d'%L_MISC); e('ds_write_b32 v2, v1'); e('s_waitcnt lgkmcnt(0)')
    a.label('L_nt_%s'%tag)
    e('s_mov_b64 exec, -1')
    e('s_barrier')
    e('v_mov_b32 v2, %d'%L_MISC); e('ds_read_b32 v1, v2'); e('s_waitcnt lgkmcnt(0)')
    e('v_readfirstlane_b32 s%d, v1'%dst)
    e('s_nop 3')
    e('s_barrier')
def ldp(a,reg,off): a.e('s_load_dwordx2 s[%d:%d], s[0:1], %d'%(reg,reg+1,off))

def build(opt):
    a=Asm(); e=a.e
    SL=dict(sla=2,slo=2)
    for o in opt:
        if o.startswith('sl'): k,v=o.split('='); SL[k]=int(v)
    opt=tuple(o for o in opt if not o.startswith('sl'))
    def brt(i):
        if 'prof' not in opt: return
        e('s_memrealtime s[100:101]'); e('s_waitcnt lgkmcnt(0)')
        e('v_mov_b32 v252, s100'); e('v_mov_b32 v253, 0')
        e('s_lshl_b32 s100, s2, 5'); e('s_add_u32 s100, s100, 0x%x'%(WS_MISC+0x10000+4*i))
        e('s_mov_b64 exec, 1'); e('buffer_store_dword v252, v253, s[%d:%d], s100 offen'%(B.S_WS,B.S_WS+3)); e('s_mov_b64 exec, -1')
    a.raw(R.HEADER+'; @launch grid=(256,1,1) block=(256,1,1) lds=%d'%LDS_BYTES)
    a.raw('.amdgcn_target "amdgcn-amd-amdhsa--gfx950"\n.text\n.globl %s\n.p2align 8\n.type %s,@function\n%s:'%(NAME,NAME,NAME))
    e('s_load_dwordx4 s[4:7], s[0:1], 0')
    e('s_load_dwordx4 s[%d:%d], s[0:1], 16'%(B.sPWQ,B.sPWQ+3))
    e('s_load_dwordx4 s[%d:%d], s[0:1], 32'%(B.sPWV,B.sPWV+3))
    e('s_load_dwordx2 s[%d:%d], s[0:1], 104'%(B.sPOUT,B.sPOUT+1))
    e('s_load_dwordx4 s[72:75], s[0:1], 112')
    e('s_getreg_b32 s3, hwreg(HW_REG_XCC_ID, 0, 4)')
    e('v_lshrrev_b32 v1, 6, v0')
    e('v_readfirstlane_b32 s%d, v1'%B.sW)
    e('s_waitcnt lgkmcnt(0)')
    B.srd(e,B.S_WS,74,WS_BYTES); B.srd(e,B.S_DBG,72,256); B.srd(e,B.S_W,B.sPWQ,4*MB)
    B.srd(e,R.S_M0,6,8192)
    B.srd(e,B.S_OUT,B.sPOUT,2*MB)
    brt(0)
    e('s_cmp_lg_u32 s3, 0')
    e('s_cbranch_scc1 L_bulk')
    ticket(a,'rec',DBG_TICKET,R.sH)
    e('s_cmp_ge_u32 s%d, 32'%R.sH)
    e('s_cbranch_scc1 L_bulk')
    R.gen_rec(a,64,('fused',)+opt)
    a.label('L_bulk')
    a.hist=[]
    B.srd(e,B.S_X,4,2*MB)
    sB_=99
    ticket(a,'bulk',DBG_BT,sB_)
    e('s_cmp_ge_u32 s%d, 224'%sB_); e('s_cbranch_scc1 L_end')
    e('s_mov_b32 s%d, 300000'%B.sBUD)
    e('s_cmp_lg_u32 s%d, 0'%sB_); e('s_cbranch_scc1 L_noinit')
    e('v_lshlrev_b32 v1, 4, v0')
    for r in range(4,8): e('v_mov_b32 v%d, 0'%r)
    for i in range(FL_BYTES//4096):
        e('s_mov_b32 s%d, 0x%x'%(B.sT0,WS_FL+i*4096)); e('buffer_store_dwordx4 v[4:7], v1, s[%d:%d], s%d offen sc1'%(B.S_WS,B.S_WS+3,B.sT0))
    e('s_waitcnt vmcnt(0)'); e('s_barrier')
    e('s_cmp_lg_u32 s%d, 0'%B.sW); e('s_cbranch_scc1 L_noinit')
    B.dbg_add(a,DBG_FRDY)
    a.label('L_noinit')
    e('s_cmp_ge_u32 s%d, 192'%sB_); e('s_cbranch_scc1 L_moe')
    e('s_mov_b32 s%d, 0'%B.sI1); e('s_mov_b32 s%d, s%d'%(B.sI0,sB_))
    for k in range(3):
        e('s_cmp_ge_u32 s%d, 48'%B.sI0); e('s_cselect_b32 s%d, 48, 0'%B.sT0); e('s_cselect_b32 s%d, 1, 0'%B.sT1)
        e('s_sub_u32 s%d, s%d, s%d'%(B.sI0,B.sI0,B.sT0)); e('s_add_u32 s%d, s%d, s%d'%(B.sI1,B.sI1,B.sT1))
    brt(1)
    B.gen_gemm(a,'g',flags=True)
    brt(2)
    e('s_cmp_lt_u32 s%d, 160'%sB_); e('s_cbranch_scc1 L_oproj')
    e('s_sub_u32 s%d, s%d, 128'%(sB_,sB_))
    e('s_branch L_attn')
    a.label('L_moe')
    e('s_sub_u32 s%d, s%d, 192'%(sB_,sB_))
    ldp(a,B.sE,64); ldp(a,B.sG,96); e('s_waitcnt lgkmcnt(0)')
    e('s_lshl_b32 s%d, s%d, 2'%(B.sI0,sB_)); e('s_add_u32 s%d, s%d, s%d'%(B.sI0,B.sI0,B.sW))
    B.router(a,'r')
    B.dbg_add(a,DBG_RT)
    e('s_cmp_ge_u32 s%d, 28'%sB_); e('s_cbranch_scc1 L_down')
    ldp(a,B.sE,72); ldp(a,B.sG,80); e('s_waitcnt lgkmcnt(0)')
    e('s_mov_b32 s%d, s%d'%(B.sI0,sB_))
    B.moe_up(a,'u')
    B.spin_dbg(a,'L_w_t8',DBG_T8,1,11)
    B.moe_up2(a,'u')
    B.dbg_add(a,DBG_UP)
    e('s_branch L_attn')
    a.label('L_down')
    e('s_cmp_lg_u32 s%d, 28'%sB_); e('s_cbranch_scc1 L_not8')
    e('s_cmp_lg_u32 s%d, 0'%B.sW); e('s_cbranch_scc1 L_not8')
    B.spin_dbg(a,'L_w_rt',DBG_RT,128,12)
    e('v_mov_b32 v11, 0')
    B.top8(a,'t')
    B.dbg_add(a,DBG_T8)
    a.label('L_not8')
    ldp(a,B.sE,88); e('s_waitcnt lgkmcnt(0)')
    e('s_sub_u32 s%d, s%d, 28'%(B.sI0,sB_)); e('s_lshl_b32 s%d, s%d, 1'%(B.sI0,B.sI0))
    e('s_mov_b32 s%d, 0'%B.sI1)
    a.label('L_down_loop')
    B.moe_down(a,'d')
    B.spin_dbg(a,'L_w_up',DBG_UP,112,13)
    B.moe_down2(a,'d')
    e('s_add_u32 s%d, s%d, 1'%(B.sI0,B.sI0)); e('s_add_u32 s%d, s%d, 1'%(B.sI1,B.sI1)); e('s_cmp_lt_u32 s%d, 2'%B.sI1)
    a.fence(); e('s_cbranch_scc1 L_down_loop')
    B.dbg_add(a,DBG_DN)
    brt(3)
    a.label('L_attn')
    a.fence()
    e('s_waitcnt vmcnt(0) lgkmcnt(0)')
    e('s_barrier')
    B.attn_setup(a,0)
    B.spin_dbg(a,'L_a_frdy',DBG_FRDY,1,14)
    e('s_lshl_b32 s%d, s%d, 2'%(B.sT0,sB_)); e('s_add_u32 s%d, s%d, s%d'%(B.sT0,B.sT0,B.sW))
    e('s_and_b32 s%d, s%d, 31'%(B.sI1,B.sT0)); e('s_lshr_b32 s%d, s%d, 5'%(B.sI0,B.sT0))
    e('v_min_u32 v10, 5, v1'); e('v_lshlrev_b32 v10, 4, v10'); e('v_mov_b32 v11, 0'); e('v_mov_b32 v12, 1')
    a.label('L_attn_loop')
    e('s_lshl_b32 s%d, s%d, 7'%(B.sD,B.sI1)); e('s_lshr_b32 s%d, s%d, 4'%(B.sT0,B.sI0)); e('s_lshl_b32 s%d, s%d, 2'%(B.sT0,B.sT0))
    e('s_add_u32 s%d, s%d, s%d'%(B.sD,B.sD,B.sT0)); e('s_add_u32 s%d, s%d, 0x%x'%(B.sD,B.sD,FL_G))
    e('s_and_b32 s%d, s%d, 15'%(B.sE,B.sI0))
    B.spin(a,'L_a_wg','buffer_load_dword v13, v10, s[%d:%d], s%d offen sc1'%(B.S_WS,B.S_WS+3,B.sD),'v_cmp_ge_u32 vcc, s%d, v13'%B.sE,15)
    B.attn_loads_x(a)
    e('s_lshl_b32 s%d, s%d, 8'%(B.sD,B.sI1)); e('s_add_u32 s%d, s%d, 0x%x'%(B.sD,B.sD,FL_REC))
    B.spin(a,'L_a_wr','buffer_load_dword v13, v11, s[%d:%d], s%d offen sc1'%(B.S_WS,B.S_WS+3,B.sD),'v_cmp_ge_u32 vcc, s%d, v13'%B.sI0,16,sleep=SL['sla'])
    B.attn_item(a)
    e('s_lshl_b32 s%d, s%d, 7'%(B.sD,B.sI0)); e('s_lshl_b32 s%d, s%d, 2'%(B.sT0,B.sI1)); e('s_add_u32 s%d, s%d, s%d'%(B.sD,B.sD,B.sT0)); e('s_add_u32 s%d, s%d, 0x%x'%(B.sD,B.sD,FL_O))
    e('s_waitcnt vmcnt(0)')
    e('s_mov_b64 exec, 1'); e('buffer_store_dword v12, v11, s[%d:%d], s%d offen sc1'%(B.S_WS,B.S_WS+3,B.sD)); e('s_mov_b64 exec, -1')
    e('s_add_u32 s%d, s%d, 8'%(B.sI0,B.sI0)); e('s_cmp_lt_u32 s%d, 64'%B.sI0)
    a.fence(); e('s_cbranch_scc1 L_attn_loop')
    e('s_branch L_end')
    a.label('L_oproj')
    a.fence()
    e('s_waitcnt vmcnt(0) lgkmcnt(0)')
    e('s_and_b32 s%d, s%d, 15'%(B.sI1,sB_))
    B.oproj_setup(a)
    brt(4)
    B.spin_dbg(a,'L_o_dn',DBG_DN,16,17)
    e('s_lshr_b32 s%d, s%d, 4'%(B.sI0,sB_))
    e('v_and_b32 v14, 31, v1'); e('v_lshlrev_b32 v14, 2, v14')
    a.label('L_o_loop')
    e('s_lshl_b32 s%d, s%d, 7'%(B.sD,B.sI0)); e('s_add_u32 s%d, s%d, 0x%x'%(B.sD,B.sD,FL_O))
    B.spin(a,'L_o_w','buffer_load_dword v15, v14, s[%d:%d], s%d offen sc1'%(B.S_WS,B.S_WS+3,B.sD),'v_cmp_eq_u32 vcc, 0, v15',18,sleep=SL['slo'])
    B.oproj_item(a,'o')
    e('s_add_u32 s%d, s%d, 10'%(B.sI0,B.sI0)); e('s_cmp_lt_u32 s%d, 64'%B.sI0)
    a.fence(); e('s_cbranch_scc1 L_o_loop')
    a.label('L_end')
    e('s_waitcnt vmcnt(0)')
    brt(5)
    e('s_waitcnt vmcnt(0)')
    e('s_endpgm')
    a.label('L_babort')
    e('v_mov_b32 v16, s%d'%B.sT0); e('v_mov_b32 v17, %d'%DBG_ABORT)
    e('s_mov_b64 exec, 1')
    e('buffer_store_dword v16, v17, s[%d:%d], 0 offen sc1'%(B.S_DBG,B.S_DBG+3))
    e('s_waitcnt vmcnt(0)')
    e('s_endpgm')
    a.raw(R.kd(NAME,sgpr=102))
    return a
if __name__=='__main__':
    a=build(tuple(sys.argv[2:]))
    open(sys.argv[1],'w').write(a.text())
    print('nops',a.nops,'lines',len(a.out))
```

```python
from asmdsl import *
from layout import *
import math, struct
def f32bits(x): return struct.unpack('<I',struct.pack('<f',x))[0]

S_WS=8; S_DBG=12; S_W=16; S_X=20
sW=25
sT0=31; sT1=45; sT2=46; sT3=47
sPWQ=56; sPWK=58; sPWV=60; sPWO=62
sPX=66
sPOUT=68
S_OUT=72
sI0=76; sI1=77
sA=78; sB=79; sC_=80; sD=81; sE=82; sF=83; sG=84; sH_=85

def srd(e,d,ptr,nbytes):
    e('s_mov_b32 s%d, s%d'%(d,ptr)); e('s_and_b32 s%d, s%d, 0xffff'%(d+1,ptr+1))
    e('s_mov_b32 s%d, 0x%x'%(d+2,nbytes)); e('s_mov_b32 s%d, 0x20000'%(d+3))

def lanes(e,l=1,n=2,g=3):
    e('v_and_b32 v%d, 63, v0'%l); e('v_and_b32 v%d, 15, v0'%n); e('v_bfe_u32 v%d, v0, 4, 2'%g)

sBUD=97; sFG=98
def spin(a,lbl,load,cmp,code,sleep=4):
    e=a.e
    a.label(lbl)
    e(load); e('s_waitcnt vmcnt(0)'); e(cmp)
    e('s_cbranch_vccz %s_ok'%lbl)
    e('s_sleep %d'%sleep)
    e('s_sub_u32 s%d, s%d, 1'%(sBUD,sBUD)); e('s_cmp_eq_u32 s%d, 0'%sBUD); e('s_cbranch_scc0 %s'%lbl)
    e('s_mov_b32 s%d, %d'%(sT0,code)); e('s_branch L_babort')
    a.label(lbl+'_ok')
def spin_dbg(a,lbl,off,target,code,va=250):
    a.e('v_mov_b32 v%d, %d'%(va,off))
    spin(a,lbl,'buffer_load_dword v%d, v%d, s[%d:%d], 0 offen sc1'%(va+1,va,S_DBG,S_DBG+3),'v_cmp_gt_u32 vcc, %d, v%d'%(target,va+1),code)
def dbg_add(a,off,va=250):
    e=a.e
    e('v_mov_b32 v%d, %d'%(va,off)); e('v_mov_b32 v%d, 1'%(va+1))
    e('s_mov_b64 exec, 1'); e('buffer_atomic_add v%d, v%d, s[%d:%d], 0 offen'%(va+1,va,S_DBG,S_DBG+3)); e('s_mov_b64 exec, -1')

def gen_gemm(a, tag, SC=' sc1', flags=False):
    e=a.e
    lg=Cnt(a,'lgkmcnt',15); vm=Cnt(a,'vmcnt',63)
    l,n,g,t0,t1=1,2,3,4,5
    lanes(e)
    sX=sA; sHP=sB
    e('s_lshr_b32 s%d, s%d, 4'%(sX,sI0)); e('s_and_b32 s%d, s%d, 15'%(sHP,sI0))
    e('s_cmp_eq_u32 s%d, 0'%sX); e('s_cselect_b32 s%d, s%d, s%d'%(sT0,sPWK,sPWV)); e('s_cselect_b32 s%d, s%d, s%d'%(sT1,sPWK+1,sPWV+1))
    e('s_cmp_eq_u32 s%d, 2'%sX); e('s_cselect_b32 s%d, s%d, s%d'%(S_W,sPWQ,sT0)); e('s_cselect_b32 s%d, s%d, s%d'%(sT1,sPWQ+1,sT1))
    e('s_and_b32 s%d, s%d, 0xffff'%(S_W+1,sT1)); e('s_mov_b32 s%d, 0x%x'%(S_W+2,4*MB)); e('s_mov_b32 s%d, 0x20000'%(S_W+3))
    dv=8
    e('v_lshrrev_b32 v%d, 5, v%d'%(t0,l))
    e('v_and_b32 v%d, 31, v%d'%(t1,l))
    e('v_lshlrev_b32 v%d, 4, v%d'%(t1,t1))
    e('v_lshlrev_b32 v%d, 5, v%d'%(dv,t0))
    e('v_xor_b32 v%d, v%d, v%d'%(t1,t1,dv))
    e('v_lshl_add_u32 v%d, v%d, 13, v%d'%(dv,t0,t1))
    for k in range(1,4): e('v_xor_b32 v%d, %d, v%d'%(dv+k,((k&1)<<6)|((k>>1)<<7),dv))
    tb=12
    e('v_lshrrev_b32 v%d, 2, v%d'%(t0,n))
    e('v_and_b32 v%d, 1, v%d'%(t1,g)); e('v_lshl_or_b32 v%d, v%d, 2, v%d'%(t1,t1,t0))
    e('v_lshl_add_u32 v%d, v%d, 3, v%d'%(t0,g,t0))
    e('v_lshlrev_b32 v%d, 9, v%d'%(t0,t0))
    e('v_and_b32 v%d, 3, v%d'%(6,n)); e('v_lshl_add_u32 v%d, v%d, 3, v%d'%(t0,6,t0))
    e('s_lshl_b32 s%d, s%d, 2'%(sT0,sW))
    for et in range(4):
        e('v_xor_b32 v%d, s%d, v%d'%(6,sT0,t1))
        if et: e('v_xor_b32 v%d, %d, v%d'%(6,et,6))
        e('v_lshl_add_u32 v%d, v%d, 5, v%d'%(tb+et,6,t0))
        e('v_add_u32 v%d, 0x10000, v%d'%(tb+4+et,tb+et))
    def dma(ck):
        area=ck&1
        e('s_lshl_b32 s%d, s%d, 18'%(sT0,sW))
        e('s_lshl_b32 s%d, s%d, 9'%(sT1,sHP)); e('s_add_u32 s%d, s%d, s%d'%(sT0,sT0,sT1))
        e('s_add_u32 s%d, s%d, 0x%x'%(sT0,sT0,ck*128*8192))
        e('s_lshl_b32 s%d, s%d, 14'%(sT1,sW)); e('s_add_u32 s%d, s%d, 0x%x'%(sT1,sT1,area*65536))
        for i in range(16):
            e('s_mov_b32 m0, s%d'%sT1)
            e('buffer_load_dwordx4 v%d, s[%d:%d], s%d offen lds'%(dv+((i&1)|(((i>>2)&1)<<1)),S_W,S_W+3,sT0)); vm.issue(('dma',ck))
            e('s_add_u32 s%d, s%d, 0x4000'%(sT0,sT0)); e('s_add_u32 s%d, s%d, 0x400'%(sT1,sT1))
    e('s_barrier')
    dma(0); dma(1)
    for ck in range(4):
        area=ck&1
        vm.wait(('dma',ck)); e('s_barrier')
        cnt=0
        for et in range(4):
            for ksl in range(4):
                for hf in range(2):
                    e('ds_read_b64_tr_b16 %s, v%d offset:%d'%(ar((et*16+ck*4+ksl)*4+2*hf,2),tb+4*area+et,(32*ksl+4*hf)*512))
                    cnt+=1
                    if cnt%12==0: e('s_waitcnt lgkmcnt(4)')
        e('s_waitcnt lgkmcnt(0)'); e('s_barrier')
        if ck<2: dma(ck+2)
    vXA=4; vL16=5
    e('v_lshlrev_b32 v%d, 10, v%d'%(vXA,n)); e('v_lshl_add_u32 v%d, v%d, 4, v%d'%(vXA,g,vXA))
    e('v_lshlrev_b32 v%d, 4, v%d'%(vL16,l))
    vXR=6
    e('v_mov_b32 v%d, v%d'%(vXR,vL16))
    sXG=sC_; sXL=sD; sSEG=sE; sOUT=sF; sCNT=sG
    e('s_lshl_b32 s%d, s%d, 15'%(sXG,sI1))
    e('s_lshr_b32 s%d, s%d, 1'%(sT0,sW)); e('s_lshl_b32 s%d, s%d, 14'%(sT0,sT0)); e('s_add_u32 s%d, s%d, s%d'%(sXG,sXG,sT0))
    e('s_and_b32 s%d, s%d, 1'%(sT0,sW)); e('s_lshl_b32 s%d, s%d, 9'%(sT0,sT0)); e('s_add_u32 s%d, s%d, s%d'%(sXG,sXG,sT0))
    e('s_lshl_b32 s%d, s%d, 13'%(sXL,sW))
    e('s_cmp_eq_u32 s%d, 0'%sX); e('s_cselect_b32 s%d, 0x%x, 0x%x'%(sT0,WS_K,WS_V) if False else 's_cselect_b32 s%d, s%d, s%d'%(sT0,sT0,sT0))
    e('s_mov_b32 s%d, 0x%x'%(sT0,WS_K)); e('s_mov_b32 s%d, 0x%x'%(sT1,WS_V))
    e('s_cmp_eq_u32 s%d, 0'%sX); e('s_cselect_b32 s%d, s%d, s%d'%(sOUT,sT0,sT1))
    e('s_cmp_eq_u32 s%d, 2'%sX); e('s_cselect_b32 s%d, %d, s%d'%(sOUT,WS_Q,sOUT))
    e('s_lshl_b32 s%d, s%d, 18'%(sT0,sI1)); e('s_add_u32 s%d, s%d, s%d'%(sOUT,sOUT,sT0))
    e('s_lshl_b32 s%d, s%d, 14'%(sT0,sHP)); e('s_add_u32 s%d, s%d, s%d'%(sOUT,sOUT,sT0))
    e('s_lshr_b32 s%d, s%d, 1'%(sT0,sW)); e('s_lshl_b32 s%d, s%d, 13'%(sT0,sT0)); e('s_add_u32 s%d, s%d, s%d'%(sOUT,sOUT,sT0))
    e('s_and_b32 s%d, s%d, 1'%(sT0,sW))
    e('s_cmp_eq_u32 s%d, 1'%sX); e('s_cselect_b32 s%d, 12, 11'%sT1); e('s_lshl_b32 s%d, s%d, s%d'%(sT0,sT0,sT1)); e('s_add_u32 s%d, s%d, s%d'%(sOUT,sOUT,sT0))
    def xdma():
        e('s_mov_b32 s%d, s%d'%(sT0,sXG)); e('s_mov_b32 s%d, s%d'%(sT1,sXL))
        for i in range(8):
            e('s_mov_b32 m0, s%d'%sT1)
            e('buffer_load_dwordx4 v%d, s[%d:%d], s%d offen lds'%(vXA,S_X,S_X+3,sT0))
            if i<7: e('s_add_u32 s%d, s%d, 64'%(sT0,sT0)); e('s_add_u32 s%d, s%d, 0x400'%(sT1,sT1))
        e('s_add_u32 s%d, s%d, 0x20000'%(sXG,sXG)); e('s_xor_b32 s%d, s%d, 0x8000'%(sXL,sXL))
    xdma()
    e('s_mov_b32 s%d, 0'%sCNT)
    if flags:
        e('s_lshl_b32 s%d, s%d, 8'%(sFG,sHP)); e('s_lshr_b32 s%d, s%d, 1'%(sT0,sW)); e('s_lshl_b32 s%d, s%d, 7'%(sT0,sT0)); e('s_add_u32 s%d, s%d, s%d'%(sFG,sFG,sT0))
        e('s_lshl_b32 s%d, s%d, 5'%(sT0,sX)); e('s_add_u32 s%d, s%d, s%d'%(sFG,sFG,sT0))
        e('s_and_b32 s%d, s%d, 1'%(sT0,sW)); e('s_lshl_b32 s%d, s%d, 4'%(sT0,sT0)); e('s_add_u32 s%d, s%d, s%d'%(sFG,sFG,sT0))
        e('s_lshl_b32 s%d, s%d, 2'%(sT0,sI1)); e('s_add_u32 s%d, s%d, s%d'%(sFG,sFG,sT0)); e('s_add_u32 s%d, s%d, 0x%x'%(sFG,sFG,FL_G))
        e('v_mov_b32 v7, 0')
        spin_dbg(a,'L_%s_frdy'%tag,DBG_FRDY,1,10)
    e('s_waitcnt vmcnt(0)')
    e('s_cmp_eq_u32 s%d, 1'%sX)
    e('s_cbranch_scc1 L_%s_V'%tag)
    XF=16; AC=32; OB=64
    for variant in ('KQ','V'):
        if variant=='V': a.label('L_%s_V'%tag)
        a.label('L_%s_loop%s'%(tag,variant))
        e('s_barrier')
        e('s_cmp_lt_u32 s%d, 15'%sCNT)
        e('s_cbranch_scc0 L_%s_nodma%s'%(tag,variant))
        xdma()
        a.label('L_%s_nodma%s'%(tag,variant))
        lg.reset()
        fr=[(tt,ks) for tt in range(2) for ks in range(16)]
        def rd(i):
            e('ds_read_b128 %s, v%d offset:%d'%(vr(XF+4*(i&3),4),vXR,i*1024)); lg.issue(i)
        for i in range(3): rd(i)
        for i,(tt,ks) in enumerate(fr):
            if i+3<32: rd(i+3)
            lg.wait(i)
            for et in range(4):
                acc=vr(AC+(tt*4+et)*4,4); wf=ar((et*16+ks)*4,4); xf=vr(XF+4*(i&3),4)
                A,B=(wf,xf) if variant=='KQ' else (xf,wf)
                e('v_mfma_f32_16x16x32_bf16 %s, %s, %s, %s'%(acc,A,B,'0' if ks==0 else acc))
        k=0
        if variant=='KQ':
            for tt in range(2):
                for c2 in range(2):
                    o=OB+4*k
                    for j in range(2):
                        b=AC+(tt*4+2*c2+j)*4
                        e('v_cvt_pk_bf16_f32 v%d, v%d, v%d'%(o+2*j,b,b+1)); e('v_cvt_pk_bf16_f32 v%d, v%d, v%d'%(o+2*j+1,b+2,b+3))
                    if tt==1 and c2==0: e('s_add_u32 s%d, s%d, 4096'%(sT0,sOUT))
                    e('buffer_store_dwordx4 %s, v%d, s[%d:%d], s%d offen offset:%d%s'%(vr(o,4),vL16,S_WS,S_WS+3,sOUT if tt==0 else sT0,c2*1024,SC))
                    k+=1
        else:
            for et in range(4):
                o=OB+4*k
                for tt in range(2):
                    b=AC+(tt*4+et)*4
                    e('v_cvt_pk_bf16_f32 v%d, v%d, v%d'%(o+2*tt,b,b+1)); e('v_cvt_pk_bf16_f32 v%d, v%d, v%d'%(o+2*tt+1,b+2,b+3))
                e('buffer_store_dwordx4 %s, v%d, s[%d:%d], s%d offen offset:%d%s'%(vr(o,4),vL16,S_WS,S_WS+3,sOUT,et*1024,SC))
                k+=1
        e('s_add_u32 s%d, s%d, 0x100000'%(sOUT,sOUT))
        e('v_xor_b32 v%d, 0x8000, v%d'%(vXR,vXR))
        e('s_add_u32 s%d, s%d, 1'%(sCNT,sCNT))
        e('s_waitcnt vmcnt(4)')
        if flags:
            e('s_sub_u32 s%d, s%d, 1'%(sT0,sCNT))
            e('s_cmp_gt_u32 s%d, 2'%sCNT); e('s_cbranch_scc1 L_%s_lag%s'%(tag,variant))
            e('s_waitcnt vmcnt(0)'); e('s_mov_b32 s%d, s%d'%(sT0,sCNT))
            a.label('L_%s_lag%s'%(tag,variant))
            e('v_mov_b32 v8, s%d'%sT0)
            e('s_mov_b64 exec, 1'); e('buffer_store_dword v8, v7, s[%d:%d], s%d offen sc1'%(S_WS,S_WS+3,sFG)); e('s_mov_b64 exec, -1')
        e('s_cmp_lt_u32 s%d, 16'%sCNT)
        e('s_cbranch_scc1 L_%s_loop%s'%(tag,variant))
        if variant=='KQ': e('s_branch L_%s_done'%tag)
    a.label('L_%s_done'%tag)
    e('s_waitcnt vmcnt(0)')
    if flags:
        e('v_mov_b32 v8, 16')
        e('s_mov_b64 exec, 1'); e('buffer_store_dword v8, v7, s[%d:%d], s%d offen sc1'%(S_WS,S_WS+3,sFG)); e('s_mov_b64 exec, -1')

sMK=86
sSC=94
sL2E=96
def attn_setup(a, ldsbase):
    e=a.e
    l,n,g,t0,t1=1,2,3,8,9
    lanes(e)
    e('v_lshlrev_b32 v4, 4, v%d'%l)
    e('s_lshl_b32 s%d, s%d, 12'%(sT0,sW)); e('s_add_u32 s%d, s%d, %d'%(sT0,sT0,ldsbase))
    e('v_lshrrev_b32 v%d, 2, v%d'%(t0,n)); e('v_xor_b32 v%d, v%d, v%d'%(t0,t0,g)); e('v_lshlrev_b32 v%d, 3, v%d'%(t0,t0))
    e('v_lshl_add_u32 v%d, v%d, 5, v%d'%(t0,n,t0)); e('v_add_u32 v5, s%d, v%d'%(sT0,t0))
    e('v_lshrrev_b32 v%d, 2, v%d'%(t0,n)); e('v_lshl_add_u32 v%d, v%d, 2, v%d'%(t0,g,t0)); e('v_lshlrev_b32 v%d, 5, v%d'%(t0,t0))
    e('v_and_b32 v%d, 3, v%d'%(t1,n)); e('v_xor_b32 v%d, v%d, v%d'%(t1,t1,g)); e('v_lshl_add_u32 v%d, v%d, 3, v%d'%(t0,t1,t0))
    e('v_add_u32 v6, s%d, v%d'%(sT0,t0))
    for r in range(4):
        e('v_lshlrev_b32 v%d, 2, v%d'%(t0,g)); e('v_add_u32 v%d, %d, v%d'%(t0,r,t0))
        e('v_cmp_gt_u32 s[%d:%d], v%d, v%d'%(sMK+2*r,sMK+2*r+1,t0,n))
    e('s_mov_b32 s%d, 0x%08x'%(sSC,f32bits(128**-0.5))); e('s_mov_b32 s%d, 0x%08x'%(sSC+1,f32bits(128**-0.5)))
    e('s_mov_b32 s%d, 0x%08x'%(sL2E,f32bits(math.log2(math.e))))
    e('v_mov_b32 v7, 0x%08x'%f32bits(-1e9))
    for et in range(8): e('v_mov_b32 v%d, 0'%(177+2*et))
    e('v_mov_b32 v173, 0'); e('v_mov_b32 v175, 0'); e('v_mov_b32 v166, 0'); e('v_mov_b32 v167, 0')

def attn_loads_x(a, SC=' sc1'):
    e=a.e
    Q,K,V=16,48,80
    e('s_lshl_b32 s%d, s%d, 18'%(sA,sI0)); e('s_lshl_b32 s%d, s%d, 13'%(sT0,sI1)); e('s_add_u32 s%d, s%d, s%d'%(sA,sA,sT0))
    for base,reg in ((WS_Q,Q),(WS_K,K),(WS_V,V)):
        e('s_add_u32 s%d, s%d, 0x%x'%(sT0,sA,base)); e('s_add_u32 s%d, s%d, 4096'%(sT1,sT0))
        for f in range(8):
            e('buffer_load_dwordx4 %s, v4, s[%d:%d], s%d offen offset:%d%s'%(vr(reg+4*f,4),S_WS,S_WS+3,sT0 if f<4 else sT1,(f&3)*1024,SC))

def attn_item(a, SC=' sc1'):
    e=a.e
    lg=Cnt(a,'lgkmcnt',15)
    Q,K,V,KV,F,S,PX,PM,VMZ,O,OB,T=16,48,80,112,128,144,164,172,176,192,200,208
    e('s_lshl_b32 s%d, s%d, 17'%(sT0,sI0)); e('s_lshl_b32 s%d, s%d, 12'%(sT1,sI1)); e('s_add_u32 s%d, s%d, s%d'%(sT0,sT0,sT1)); e('s_add_u32 s%d, s%d, 0x%x'%(sT0,sT0,WS_KM))
    for w in range(4):
        e('buffer_load_dwordx4 %s, v4, s[%d:%d], s%d offen offset:%d%s'%(vr(KV+4*w,4),S_WS,S_WS+3,sT0,w*1024,SC))
    e('s_lshl_b32 s%d, s%d, 18'%(sB,sI0)); e('s_lshl_b32 s%d, s%d, 12'%(sT1,sI1)); e('s_add_u32 s%d, s%d, s%d'%(sB,sB,sT1)); e('s_add_u32 s%d, s%d, 0x%x'%(sB,sB,WS_O))
    e('s_add_u32 s%d, s%d, 0x20000'%(sC_,sB))
    e('s_waitcnt vmcnt(0)')
    for w in range(4):
        for t in range(2):
            e('ds_write_b32 v5, v%d offset:%d'%(KV+4*w+t,(32*w+16*t)*32))
            e('v_mov_b32 v%d, v%d'%(VMZ+2*(2*w+t),KV+4*w+2+t))
    Sm=[S,S+8]; Sx={(0,0):S+4,(0,1):S+12,(1,1):S+16}
    for (kt,qt),acc in Sx.items():
        for c in range(4):
            e('v_mfma_f32_16x16x32_bf16 %s, %s, %s, %s'%(vr(acc,4),vr(K+(kt*4+c)*4,4),vr(Q+(qt*4+c)*4,4),'0' if c==0 else vr(acc,4)))
        if (kt,qt)==(0,0):
            e('s_waitcnt lgkmcnt(0)')
            for c in range(4):
                e('ds_read_b64_tr_b16 %s, v6 offset:%d'%(vr(F+4*c,2),1024*c))
                e('ds_read_b64_tr_b16 %s, v6 offset:%d'%(vr(F+4*c+2,2),1024*c+512))
    e('s_waitcnt lgkmcnt(0)')
    for qt in range(2):
        for c in range(4):
            e('v_mfma_f32_16x16x32_bf16 %s, %s, %s, %s'%(vr(Sm[qt],4),vr(F+4*c,4),vr(Q+(qt*4+c)*4,4),'0' if c==0 else vr(Sm[qt],4)))
    for qt in range(2):
        pairs=[Sx[(kt,qt)]+j for kt in range(qt+1) for j in (0,2)]+[Sm[qt]]
        for p in pairs:
            e('v_cvt_pk_bf16_f32 v%d, v%d, v%d'%(T,p,p+1))
            e('v_lshlrev_b32 v%d, 16, v%d'%(p,T)); e('v_and_b32 v%d, 0xffff0000, v%d'%(p+1,T))
            e('v_pk_mul_f32 %s, %s, s[%d:%d]'%(vr(p,2),vr(p,2),sSC,sSC+1))
            e('v_cvt_pk_bf16_f32 v%d, v%d, v%d'%(T,p,p+1))
            e('v_lshlrev_b32 v%d, 16, v%d'%(p,T)); e('v_and_b32 v%d, 0xffff0000, v%d'%(p+1,T))
        d=Sx[(qt,qt)]
        for r in range(4): e('v_cndmask_b32 v%d, v%d, v7, s[%d:%d]'%(d+r,d+r,sMK+2*r,sMK+2*r+1))
        vals=[p+j for p in pairs for j in range(2)]
        m,m2=T+1,T+2
        e('v_max_f32 v%d, v%d, v%d'%(m,vals[0],vals[1]))
        for i in range(2,len(vals),2): e('v_max3_f32 v%d, v%d, v%d, v%d'%(m,m,vals[i],vals[i+1]))
        e('v_mov_b32 v%d, v%d'%(m2,m)); e('v_permlane32_swap_b32 v%d, v%d'%(m,m2)); e('v_max_f32 v%d, v%d, v%d'%(m,m,m2))
        e('v_mov_b32 v%d, v%d'%(m2,m)); e('v_permlane16_swap_b32 v%d, v%d'%(m,m2)); e('v_max_f32 v%d, v%d, v%d'%(m,m,m2))
        for v in vals:
            e('v_sub_f32 v%d, v%d, v%d'%(v,v,m)); e('v_mul_f32 v%d, s%d, v%d'%(v,sL2E,v))
        for v in vals: e('v_exp_f32 v%d, v%d'%(v,v))
        sm=T+4
        e('v_add_f32 v%d, v%d, v%d'%(sm,vals[0],vals[1]))
        for v in vals[2:]: e('v_add_f32 v%d, v%d, v%d'%(sm,sm,v))
        e('v_mov_b32 v%d, v%d'%(m2,sm)); e('v_permlane32_swap_b32 v%d, v%d'%(sm,m2)); e('v_add_f32 v%d, v%d, v%d'%(sm,sm,m2))
        e('v_mov_b32 v%d, v%d'%(m2,sm)); e('v_permlane16_swap_b32 v%d, v%d'%(sm,m2)); e('v_add_f32 v%d, v%d, v%d'%(sm,sm,m2))
        e('v_rcp_f32 v%d, v%d'%(sm,sm))
        for p in pairs: e('v_pk_mul_f32 %s, %s, %s op_sel_hi:[1,0]'%(vr(p,2),vr(p,2),vr(sm,2)))
        for i,p in enumerate(pairs[:-1]): e('v_cvt_pk_bf16_f32 v%d, v%d, v%d'%(PX+4*qt+i,p,p+1))
        e('v_cvt_pk_bf16_f32 v%d, v%d, v%d'%(PM+2*qt,Sm[qt],Sm[qt]+1))
    k=0
    for qt in range(2):
        for c in range(4):
            ob=O+8*(k&1) if False else O
            for j in range(2):
                et=2*c+j; o=(O,T+8)[k&1]+4*j
                e('v_mfma_f32_16x16x32_bf16 %s, %s, %s, 0'%(vr(o,4),vr(V+4*et,4),vr(PX+4*qt,4)))
            for j in range(2):
                et=2*c+j; o=(O,T+8)[k&1]+4*j
                e('v_mfma_f32_16x16x16_bf16 %s, %s, %s, %s'%(vr(o,4),vr(VMZ+2*et,2),vr(PM+2*qt,2),vr(o,4)))
            if k>0:
                pq,pc=prev; o=(O,T+8)[(k-1)&1]; ob=OB+4*((k-1)&1)
                for j in range(4): e('v_cvt_pk_bf16_f32 v%d, v%d, v%d'%(ob+j,o+2*j,o+2*j+1))
                e('buffer_store_dwordx4 %s, v4, s[%d:%d], s%d offen offset:%d%s'%(vr(ob,4),S_WS,S_WS+3,(sB,sC_)[pq],pc*1024,SC))
            prev=(qt,c); k+=1
    pq,pc=prev; o=(O,T+8)[(k-1)&1]; ob=OB+4*((k-1)&1)
    for j in range(4): e('v_cvt_pk_bf16_f32 v%d, v%d, v%d'%(ob+j,o+2*j,o+2*j+1))
    e('buffer_store_dwordx4 %s, v4, s[%d:%d], s%d offen offset:%d%s'%(vr(ob,4),S_WS,S_WS+3,(sB,sC_)[pq],pc*1024,SC))

def rnd2(e,p,t):
    e('v_cvt_pk_bf16_f32 v%d, v%d, v%d'%(t,p,p+1))
    e('v_lshlrev_b32 v%d, 16, v%d'%(p,t)); e('v_and_b32 v%d, 0xffff0000, v%d'%(p+1,t))

L_RED=65536
def oproj_setup(a):
    e=a.e
    vm=Cnt(a,'vmcnt',63)
    l,n,g,t0,t1=1,2,3,10,11
    lanes(e)
    e('v_lshlrev_b32 v4, 4, v%d'%l)
    srd(e,S_W,sPWO,4*MB)
    e('v_lshrrev_b32 v%d, 2, v%d'%(t0,l)); e('v_lshlrev_b32 v%d, 10, v%d'%(t0,t0)); e('v_and_b32 v%d, 3, v%d'%(t1,l)); e('v_lshl_add_u32 v5, v%d, 4, v%d'%(t1,t0))
    e('v_lshrrev_b32 v%d, 2, v%d'%(t0,n)); e('v_lshl_add_u32 v%d, v%d, 2, v%d'%(t0,g,t0)); e('v_lshlrev_b32 v%d, 6, v%d'%(t0,t0))
    e('v_and_b32 v%d, 3, v%d'%(t1,n)); e('v_lshl_add_u32 v%d, v%d, 4, v%d'%(t0,t1,t0))
    e('s_lshl_b32 s%d, s%d, 14'%(sA,sW)); e('v_add_u32 v6, s%d, v%d'%(sA,t0))
    e('s_lshl_b32 s%d, s%d, 20'%(sB,sW)); e('s_lshl_b32 s%d, s%d, 6'%(sT0,sI1)); e('s_add_u32 s%d, s%d, s%d'%(sB,sB,sT0))
    e('s_barrier')
    def dma(hh):
        e('s_add_u32 s%d, s%d, %d'%(sT1,sA,(hh&1)*8192))
        for i in range(8):
            e('s_mov_b32 m0, s%d'%sT1)
            e('buffer_load_dwordx4 v5, s[%d:%d], s%d offen lds'%(S_W,S_W+3,sB)); vm.issue(hh)
            e('s_add_u32 s%d, s%d, 0x4000'%(sB,sB)); e('s_add_u32 s%d, s%d, 0x400'%(sT1,sT1))
    dma(0); dma(1)
    for hh in range(8):
        vm.wait(hh)
        cnt=0
        for c in range(4):
            for dt in range(2):
                for hf in range(2):
                    e('ds_read_b64_tr_b16 %s, v6 offset:%d'%(ar(((hh*4+c)*2+dt)*4+2*hf,2),(hh&1)*8192+(32*c+16*hf)*64+8*dt))
                    cnt+=1
                    if cnt==12: e('s_waitcnt lgkmcnt(4)')
        e('s_waitcnt lgkmcnt(0)')
        if hh<6: dma(hh+2)
    e('s_and_b32 s%d, s%d, 1'%(sT0,sW)); e('s_lshl_b32 s%d, s%d, 11'%(sT0,sT0)); e('s_lshr_b32 s%d, s%d, 1'%(sT1,sW)); e('s_lshl_b32 s%d, s%d, 10'%(sT1,sT1))
    e('s_add_u32 s%d, s%d, s%d'%(sT0,sT0,sT1)); e('s_add_u32 s%d, s%d, %d'%(sT0,sT0,L_RED)); e('v_add_u32 v7, s%d, v4'%sT0)
    e('s_lshl_b32 s%d, s%d, 12'%(sT0,sW)); e('s_add_u32 s%d, s%d, %d'%(sT0,sT0,L_RED)); e('v_add_u32 v8, s%d, v4'%sT0)
    e('s_and_b32 s%d, s%d, 1'%(sT0,sW)); e('s_lshl_b32 s%d, s%d, 4'%(sT0,sT0)); e('v_add_u32 v%d, s%d, v%d'%(t0,sT0,n))
    e('v_lshlrev_b32 v12, 2, v%d'%t0)
    e('s_lshl_b32 s%d, s%d, 5'%(sT0,sI1)); e('s_lshr_b32 s%d, s%d, 1'%(sT1,sW)); e('s_lshl_b32 s%d, s%d, 2'%(sT1,sT1)); e('s_add_u32 s%d, s%d, s%d'%(sT0,sT0,sT1))
    e('v_lshlrev_b32 v%d, 3, v%d'%(t1,g)); e('v_add_u32 v%d, s%d, v%d'%(t1,sT0,t1))
    e('v_lshlrev_b32 v13, 2, v%d'%t1)
    e('v_lshlrev_b32 v%d, 10, v%d'%(t0,t0)); e('v_lshl_add_u32 v9, v%d, 1, v%d'%(t1,t0))

def oproj_item(a, tag, SC=' sc1'):
    e=a.e
    OF=32; AC=16; T=192
    NB=32
    e('s_lshl_b32 s%d, s%d, 18'%(sA,sI0)); e('s_lshl_b32 s%d, s%d, 15'%(sT0,sW)); e('s_add_u32 s%d, s%d, s%d'%(sA,sA,sT0)); e('s_add_u32 s%d, s%d, 0x%x'%(sA,sA,WS_O))
    e('s_lshl_b32 s%d, s%d, 7'%(sB,sI0))
    e('s_add_u32 s%d, s%d, 0x%x'%(sT0,sB,WS_G)); e('buffer_load_dword v%d, v12, s[%d:%d], s%d offen%s'%(T,S_WS,S_WS+3,sT0,SC))
    e('s_add_u32 s%d, s%d, 0x%x'%(sT0,sB,WS_SEL)); e('buffer_load_dword v%d, v12, s[%d:%d], s%d offen%s'%(T+1,S_WS,S_WS+3,sT0,SC))
    e('s_lshl_b32 s%d, s%d, 15'%(sC_,sI0))
    e('buffer_load_dwordx2 %s, v9, s[%d:%d], s%d offen'%(vr(T+2,2),S_X,S_X+3,sC_))
    fr=[(qt,hh,c) for qt in range(2) for hh in range(8) for c in range(4)]
    def ld(i):
        qt,hh,c=fr[i]
        if c==0: e('s_add_u32 s%d, s%d, 0x%x'%(sD,sA,qt*131072+hh*4096))
        e('buffer_load_dwordx4 %s, v4, s[%d:%d], s%d offen offset:%d%s'%(vr(OF+4*(i%NB),4),S_WS,S_WS+3,sD,c*1024,SC))
    for i in range(NB): ld(i)
    for i,(qt,hh,c) in enumerate(fr):
        e('s_waitcnt vmcnt(%d)'%min(NB-1,63-i))
        for dt in range(2):
            acc=vr(AC+(qt*2+dt)*4,4)
            e('v_mfma_f32_16x16x32_bf16 %s, %s, %s, %s'%(acc,ar(((hh*4+c)*2+dt)*4,4),vr(OF+4*(i%NB),4),'0' if (hh==0 and c==0) else acc))
        if i+NB<64: ld(i+NB)
    e('v_cmp_ne_u32 vcc, 0, v%d'%(T+1))
    e('v_lshl_add_u32 v%d, v%d, 11, v13'%(T+4,T+1))
    for r in range(4): e('v_mov_b32 v%d, 0'%(T+8+r))
    e('s_and_saveexec_b64 s[%d:%d], vcc'%(sT2,sT3))
    e('s_cbranch_execz L_%s_noy'%tag)
    e('s_mov_b32 s%d, 0x%x'%(sT0,WS_Y-2048))
    e('buffer_load_dwordx4 %s, v%d, s[%d:%d], s%d offen%s'%(vr(T+8,4),T+4,S_WS,S_WS+3,sT0,SC))
    a.label('L_%s_noy'%tag)
    e('s_mov_b64 exec, -1')
    for k in range(4): e('ds_write_b128 v8, %s offset:%d'%(vr(AC+4*k,4),k*1024))
    e('s_waitcnt lgkmcnt(0)'); e('s_barrier')
    for w in range(4): e('ds_read_b128 %s, v7 offset:%d'%(vr(OF+4*w,4),w*4096))
    e('v_xor_b32 v7, 0x4000, v7'); e('v_xor_b32 v8, 0x4000, v8')
    X=T+12
    e('s_waitcnt vmcnt(0)')
    e('v_lshlrev_b32 v%d, 16, v%d'%(X,T+2)); e('v_and_b32 v%d, 0xffff0000, v%d'%(X+1,T+2))
    e('v_lshlrev_b32 v%d, 16, v%d'%(X+2,T+3)); e('v_and_b32 v%d, 0xffff0000, v%d'%(X+3,T+3))
    e('v_pk_add_f32 %s, %s, %s'%(vr(X,2),vr(X,2),vr(T+8,2))); e('v_pk_add_f32 %s, %s, %s'%(vr(X+2,2),vr(X+2,2),vr(T+10,2)))
    rnd2(e,X,T+5); rnd2(e,X+2,T+5)
    e('v_sub_f32 v%d, 1.0, v%d'%(T+6,T)); e('v_cvt_pk_bf16_f32 v%d, v%d, v%d'%(T+6,T+6,T+6)); e('v_lshlrev_b32 v%d, 16, v%d'%(T+6,T+6))
    e('v_pk_mul_f32 %s, %s, %s op_sel_hi:[1,0]'%(vr(X,2),vr(X,2),vr(T+6,2))); e('v_pk_mul_f32 %s, %s, %s op_sel_hi:[1,0]'%(vr(X+2,2),vr(X+2,2),vr(T+6,2)))
    rnd2(e,X,T+5); rnd2(e,X+2,T+5)
    e('s_waitcnt lgkmcnt(0)')
    A_=OF
    for j in (0,2):
        e('v_pk_add_f32 %s, %s, %s'%(vr(A_+j,2),vr(A_+j,2),vr(A_+4+j,2)))
        e('v_pk_add_f32 %s, %s, %s'%(vr(A_+8+j,2),vr(A_+8+j,2),vr(A_+12+j,2)))
    for j in (0,2): e('v_pk_add_f32 %s, %s, %s'%(vr(A_+j,2),vr(A_+j,2),vr(A_+8+j,2)))
    rnd2(e,A_,T+5); rnd2(e,A_+2,T+5)
    e('v_pk_mul_f32 %s, %s, %s op_sel_hi:[1,0]'%(vr(A_,2),vr(A_,2),vr(T,2))); e('v_pk_mul_f32 %s, %s, %s op_sel_hi:[1,0]'%(vr(A_+2,2),vr(A_+2,2),vr(T,2)))
    rnd2(e,A_,T+5); rnd2(e,A_+2,T+5)
    e('v_pk_add_f32 %s, %s, %s'%(vr(A_,2),vr(A_,2),vr(X,2))); e('v_pk_add_f32 %s, %s, %s'%(vr(A_+2,2),vr(A_+2,2),vr(X+2,2)))
    e('v_cvt_pk_bf16_f32 v%d, v%d, v%d'%(T+16,A_,A_+1)); e('v_cvt_pk_bf16_f32 v%d, v%d, v%d'%(T+17,A_+2,A_+3))
    e('buffer_store_dwordx2 %s, v9, s[%d:%d], s%d offen'%(vr(T+16,2),S_OUT,S_OUT+3,sC_))

def wave_allsum(e,v,t):
    for k in (8,4,2,1):
        e('v_add_f32_dpp v%d, v%d, v%d row_ror:%d row_mask:0xf bank_mask:0xf'%(v,v,v,k))
    e('v_mov_b32 v%d, v%d'%(t,v)); e('v_permlane16_swap_b32 v%d, v%d'%(v,t)); e('v_add_f32 v%d, v%d, v%d'%(v,v,t))
    e('v_mov_b32 v%d, v%d'%(t,v)); e('v_permlane32_swap_b32 v%d, v%d'%(v,t)); e('v_add_f32 v%d, v%d, v%d'%(v,v,t))
def sigmoid(e,v,sl2e):
    e('v_mul_f32 v%d, s%d, v%d'%(v,sl2e,v)); e('v_exp_f32 v%d, v%d'%(v,v)); e('v_add_f32 v%d, 1.0, v%d'%(v,v)); e('v_rcp_f32 v%d, v%d'%(v,v))
def rnd1(e,v):
    e('v_cvt_pk_bf16_f32 v%d, v%d, v%d'%(v,v,v)); e('v_lshlrev_b32 v%d, 16, v%d'%(v,v))
def unpack8(e,dst,src):
    for i in range(4):
        e('v_lshlrev_b32 v%d, 16, v%d'%(dst+2*i,src+i)); e('v_and_b32 v%d, 0xffff0000, v%d'%(dst+2*i+1,src+i))

def router(a, tag, SC=' sc1'):
    e=a.e
    lanes(e)
    e('v_lshlrev_b32 v4, 4, v1')
    WR,GW,XR,XU,P,RES=16,24,32,96,104,112
    srd(e,S_W,sE,1024)
    e('buffer_load_dwordx4 v[8:11], v4, s[%d:%d], 0 offen'%(S_W,S_W+3))
    e('s_waitcnt vmcnt(0)')
    srd(e,S_W,sG,1024)
    e('buffer_load_dwordx4 v[12:15], v4, s[%d:%d], 0 offen'%(S_W,S_W+3))
    e('s_lshl_b32 s%d, s%d, 14'%(sA,sI0))
    for i in range(16):
        if i%4==0: e('s_add_u32 s%d, s%d, %d'%(sT0,sA,i*1024))
        e('buffer_load_dwordx4 %s, v4, s[%d:%d], s%d offen offset:%d'%(vr(XR+4*i,4),S_X,S_X+3,sT0,(i%4)*1024))
    e('s_mov_b32 s%d, 0x%08x'%(sB,f32bits(-math.log2(math.e))))
    unpack8(e,WR,8)
    e('s_waitcnt vmcnt(16)')
    unpack8(e,GW,12)
    e('v_mov_b32 v%d, 0'%RES); e('v_mov_b32 v%d, 0'%(RES+1))
    for i in range(16):
        e('s_waitcnt vmcnt(%d)'%(15-i))
        unpack8(e,XU,XR+4*i)
        e('v_pk_mul_f32 %s, %s, %s'%(vr(P,2),vr(XU,2),vr(WR,2)))
        for j in (2,4,6): e('v_pk_fma_f32 %s, %s, %s, %s'%(vr(P,2),vr(XU+j,2),vr(WR+j,2),vr(P,2)))
        e('v_add_f32 v%d, v%d, v%d'%(P,P,P+1))
        for j in (0,2,4,6):
            e('v_pk_mul_f32 %s, %s, %s'%(vr(XU+j,2),vr(XU+j,2),vr(GW+j,2))); rnd2(e,XU+j,P+3)
        e('v_pk_add_f32 %s, %s, %s'%(vr(XU,2),vr(XU,2),vr(XU+2,2))); e('v_pk_add_f32 %s, %s, %s'%(vr(XU+4,2),vr(XU+4,2),vr(XU+6,2)))
        e('v_pk_add_f32 %s, %s, %s'%(vr(XU,2),vr(XU,2),vr(XU+4,2))); e('v_add_f32 v%d, v%d, v%d'%(P+1,XU,XU+1))
        wave_allsum(e,P,P+3); wave_allsum(e,P+1,P+3)
        e('v_cmp_eq_u32 vcc, %d, v1'%i)
        e('v_cndmask_b32 v%d, v%d, v%d, vcc'%(RES,RES,P)); e('v_cndmask_b32 v%d, v%d, v%d, vcc'%(RES+1,RES+1,P+1))
    rnd1(e,RES+1); sigmoid(e,RES+1,sB); rnd1(e,RES+1)
    e('v_cvt_pk_bf16_f32 v%d, v%d, v%d'%(RES,RES,RES)); e('v_and_b32 v%d, 0xffff0000, v%d'%(RES,RES))
    e('v_ashrrev_i32 v%d, 31, v%d'%(P,RES)); e('v_or_b32 v%d, 0x80000000, v%d'%(P,P)); e('v_xor_b32 v%d, v%d, v%d'%(RES,RES,P))
    e('v_and_b32 v%d, 0xffff0000, v%d'%(RES,RES))
    e('s_lshl_b32 s%d, s%d, 4'%(sT0,sI0)); e('s_sub_u32 s%d, 2047, s%d'%(sT0,sT0)); e('v_sub_u32 v%d, s%d, v1'%(P,sT0)); e('v_or_b32 v%d, v%d, v%d'%(RES,RES,P))
    e('v_lshlrev_b32 v5, 2, v1'); e('v_mov_b32 v%d, 0'%P)
    e('s_lshl_b32 s%d, s%d, 6'%(sA,sI0))
    e('s_mov_b64 exec, 0xffff')
    e('s_add_u32 s%d, s%d, 0x%x'%(sT0,sA,WS_G)); e('buffer_store_dword v%d, v5, s[%d:%d], s%d offen%s'%(RES+1,S_WS,S_WS+3,sT0,SC))
    e('s_add_u32 s%d, s%d, 0x%x'%(sT0,sA,WS_KEY)); e('buffer_store_dword v%d, v5, s[%d:%d], s%d offen%s'%(RES,S_WS,S_WS+3,sT0,SC))
    e('s_add_u32 s%d, s%d, 0x%x'%(sT0,sA,WS_SEL)); e('buffer_store_dword v%d, v5, s[%d:%d], s%d offen%s'%(P,S_WS,S_WS+3,sT0,SC))
    e('s_mov_b64 exec, -1')
    e('s_waitcnt vmcnt(0)')

def top8(a, tag, SC=' sc1'):
    e=a.e
    lanes(e)
    e('v_lshlrev_b32 v4, 4, v1')
    K=16; M=8; T=9; RES=10
    for i in range(8):
        if i%4==0: e('s_mov_b32 s%d, 0x%x'%(sT0,WS_KEY+i*1024))
        e('buffer_load_dwordx4 %s, v4, s[%d:%d], s%d offen offset:%d%s'%(vr(K+4*i,4),S_WS,S_WS+3,sT0,(i%4)*1024,SC))
    e('v_mov_b32 v%d, 0'%RES)
    e('s_mov_b32 s%d, 0'%sA)
    e('s_waitcnt vmcnt(0)')
    a.label('L_%s_loop'%tag)
    e('v_max_u32 v%d, v%d, v%d'%(M,K,K+1))
    for i in range(2,32,2): e('v_max3_u32 v%d, v%d, v%d, v%d'%(M,M,K+i,K+i+1))
    for k in (8,4,2,1): e('v_max_u32_dpp v%d, v%d, v%d row_ror:%d row_mask:0xf bank_mask:0xf'%(M,M,M,k))
    e('v_mov_b32 v%d, v%d'%(T,M)); e('v_permlane16_swap_b32 v%d, v%d'%(M,T)); e('v_max_u32 v%d, v%d, v%d'%(M,M,T))
    e('v_mov_b32 v%d, v%d'%(T,M)); e('v_permlane32_swap_b32 v%d, v%d'%(M,T)); e('v_max_u32 v%d, v%d, v%d'%(M,M,T))
    for i in range(32):
        e('v_cmp_eq_u32 vcc, v%d, v%d'%(M,K+i)); e('v_cndmask_b32 v%d, v%d, 0, vcc'%(K+i,K+i) if False else 'v_cndmask_b32 v%d, v%d, v%d, vcc'%(K+i,K+i,11))
    e('v_cmp_eq_u32 vcc, s%d, v1'%sA); e('v_cndmask_b32 v%d, v%d, v%d, vcc'%(RES,RES,M))
    e('s_add_u32 s%d, s%d, 1'%(sA,sA)); e('s_cmp_lt_u32 s%d, 8'%sA)
    a.fence(4)
    e('s_cbranch_scc1 L_%s_loop'%tag)
    e('v_and_b32 v12, 0x7ff, v%d'%RES); e('v_sub_u32 v12, 2047, v12')
    e('v_and_b32 v13, 0xffff0000, v%d'%RES)
    e('v_ashrrev_i32 v14, 31, v13'); e('v_not_b32 v14, v14'); e('v_or_b32 v14, 0x80000000, v14'); e('v_xor_b32 v13, v13, v14'); e('v_and_b32 v13, 0xffff0000, v13')
    e('s_mov_b32 s%d, 0x%08x'%(sB,f32bits(-math.log2(math.e))))
    sigmoid(e,13,sB); rnd1(e,13)
    e('v_lshlrev_b32 v5, 2, v1'); e('v_lshlrev_b32 v6, 2, v12'); e('v_add_u32 v7, 1, v1')
    e('s_mov_b64 exec, 0xff')
    e('s_mov_b32 s%d, 0x%x'%(sT0,WS_IDX)); e('buffer_store_dword v12, v5, s[%d:%d], s%d offen%s'%(S_WS,S_WS+3,sT0,SC))
    e('buffer_store_dword v13, v5, s[%d:%d], s%d offen offset:64%s'%(S_WS,S_WS+3,sT0,SC))
    e('s_mov_b32 s%d, 0x%x'%(sT0,WS_SEL)); e('buffer_store_dword v7, v6, s[%d:%d], s%d offen%s'%(S_WS,S_WS+3,sT0,SC))
    e('s_mov_b64 exec, -1')
    e('s_waitcnt vmcnt(0)')

def moe_common(e):
    lanes(e)
    e('v_lshrrev_b32 v8, 2, v2'); e('v_lshl_add_u32 v8, v3, 3, v8'); e('v_lshlrev_b32 v8, 5, v8')
    e('v_and_b32 v9, 3, v2'); e('v_lshl_add_u32 v8, v9, 3, v8')
    e('s_mul_i32 s%d, s%d, 32768'%(sA,sW)); e('v_add_u32 v6, s%d, v8'%sA)

def moe_up(a, tag, SC=' sc1'):
    e=a.e
    moe_common(e)
    XA=16; WF=80; AC=96
    e('v_lshrrev_b32 v8, 1, v1'); e('s_mov_b32 s%d, 3584'%sT0); e('v_mul_lo_u32 v8, v8, s%d'%sT0); e('v_and_b32 v9, 1, v1'); e('v_lshl_add_u32 v5, v9, 4, v8')
    e('s_lshl_b32 s%d, s%d, 7'%(sB,sI0)); e('s_lshl_b32 s%d, s%d, 5'%(sT0,sW)); e('s_add_u32 s%d, s%d, s%d'%(sB,sB,sT0))
    e('s_barrier')
    for m,ptr in enumerate((sE,sG)):
        srd(e,S_W,ptr,512*3584)
        e('s_mov_b32 s%d, s%d'%(sT0,sB)); e('s_add_u32 s%d, s%d, %d'%(sT1,sA,m*16384))
        for i in range(16):
            e('s_mov_b32 m0, s%d'%sT1)
            e('buffer_load_dwordx4 v5, s[%d:%d], s%d offen lds'%(S_W,S_W+3,sT0))
            e('s_add_u32 s%d, s%d, %d'%(sT0,sT0,32*3584)); e('s_add_u32 s%d, s%d, 0x400'%(sT1,sT1))
    return
def moe_up2(a, tag, SC=' sc1'):
    e=a.e
    XA=16; WF=80; AC=96
    e('v_and_b32 v8, 7, v2'); e('v_lshlrev_b32 v8, 2, v8')
    e('s_mov_b32 s%d, 0x%x'%(sT0,WS_IDX)); e('buffer_load_dword v9, v8, s[%d:%d], s%d offen%s'%(S_WS,S_WS+3,sT0,SC))
    e('s_waitcnt vmcnt(0)')
    e('v_lshlrev_b32 v9, 10, v9'); e('v_lshl_add_u32 v9, v3, 4, v9')
    for ks in range(16): e('buffer_load_dwordx4 %s, v9, s[%d:%d], 0 offen offset:%d'%(vr(XA+4*ks,4),S_X,S_X+3,ks*64))
    e('s_waitcnt vmcnt(0)')
    for ks in range(16):
        for m in range(2):
            for hf in range(2): e('ds_read_b64_tr_b16 %s, v6 offset:%d'%(vr(WF+8*(ks&1)+4*m+2*hf,2),m*16384+(32*ks+4*hf)*32))
        e('s_waitcnt lgkmcnt(0)')
        for m in range(2):
            e('v_mfma_f32_16x16x32_bf16 %s, %s, %s, %s'%(vr(AC+4*m,4),vr(XA+4*ks,4),vr(WF+8*(ks&1)+4*m,4),'0' if ks==0 else vr(AC+4*m,4)))
    e('s_mov_b32 s%d, 0x%08x'%(sC_,f32bits(-math.log2(math.e))))
    G_,U_,S_=AC,AC+4,AC+8
    rnd2(e,G_,8); rnd2(e,G_+2,8); rnd2(e,U_,8); rnd2(e,U_+2,8)
    for r in range(4):
        e('v_mov_b32 v%d, v%d'%(S_+r,G_+r)); sigmoid(e,S_+r,sC_); e('v_mul_f32 v%d, v%d, v%d'%(G_+r,G_+r,S_+r))
    rnd2(e,G_,8); rnd2(e,G_+2,8)
    e('v_pk_mul_f32 %s, %s, %s'%(vr(G_,2),vr(G_,2),vr(U_,2))); e('v_pk_mul_f32 %s, %s, %s'%(vr(G_+2,2),vr(G_+2,2),vr(U_+2,2)))
    for r in range(4): e('v_cvt_pk_bf16_f32 v%d, v%d, v%d'%(S_+r,G_+r,G_+r))
    e('s_mov_b32 s%d, %d'%(sT0,4*3584)); e('v_mul_lo_u32 v8, v3, s%d'%sT0); e('v_lshl_add_u32 v8, v2, 1, v8')
    e('s_add_u32 s%d, s%d, 0x%x'%(sT0,sB,WS_H))
    e('s_mov_b64 exec, 0xffffffff')
    for r in range(4):
        e('buffer_store_short v%d, v8, s[%d:%d], s%d offen%s'%(S_+r,S_WS,S_WS+3,sT0,SC))
        e('s_add_u32 s%d, s%d, 3584'%(sT0,sT0))
    e('s_mov_b64 exec, -1')
    e('s_waitcnt vmcnt(0)')

def moe_down_dma(a,half):
    e=a.e
    e('s_add_u32 s%d, s%d, %d'%(sT0,sB,half*896*1024)); e('s_mov_b32 s%d, s%d'%(sT1,sA))
    for i in range(28):
        e('s_mov_b32 m0, s%d'%sT1)
        e('buffer_load_dwordx4 v5, s[%d:%d], s%d offen lds'%(S_W,S_W+3,sT0))
        e('s_add_u32 s%d, s%d, 0x8000'%(sT0,sT0)); e('s_add_u32 s%d, s%d, 0x400'%(sT1,sT1))
def moe_down(a, tag, SC=' sc1'):
    e=a.e
    moe_common(e)
    e('v_lshrrev_b32 v8, 1, v1'); e('v_lshlrev_b32 v8, 10, v8'); e('v_and_b32 v9, 1, v1'); e('v_lshl_add_u32 v5, v9, 4, v8')
    e('s_lshl_b32 s%d, s%d, 7'%(sB,sI0)); e('s_lshl_b32 s%d, s%d, 5'%(sT0,sW)); e('s_add_u32 s%d, s%d, s%d'%(sB,sB,sT0))
    srd(e,S_W,sE,1792*1024)
    e('s_barrier')
    moe_down_dma(a,0)
def moe_down2(a, tag, SC=' sc1'):
    e=a.e
    HA=16; WF=128; AC=136
    e('v_and_b32 v8, 7, v2'); e('s_mov_b32 s%d, 3584'%sT0); e('v_mul_lo_u32 v8, v8, s%d'%sT0); e('v_lshl_add_u32 v9, v3, 4, v8')
    e('v_lshlrev_b32 v10, 4, v3')
    e('s_mov_b32 s%d, 0x%x'%(sT0,WS_IDX+64)); e('buffer_load_dwordx4 v[12:15], v10, s[%d:%d], s%d offen%s'%(S_WS,S_WS+3,sT0,SC))
    for half in range(2):
        e('s_mov_b32 s%d, 0x%x'%(sC_,WS_H+half*1792))
        for ks in range(28): e('buffer_load_dwordx4 %s, v9, s[%d:%d], s%d offen offset:%d%s'%(vr(HA+4*ks,4),S_WS,S_WS+3,sC_,ks*64,SC))
        e('s_waitcnt vmcnt(0)')
        for ks in range(28):
            for hf in range(2): e('ds_read_b64_tr_b16 %s, v6 offset:%d'%(vr(WF+4*(ks&1)+2*hf,2),(32*ks+4*hf)*32))
            e('s_waitcnt lgkmcnt(0)')
            e('v_mfma_f32_16x16x32_bf16 %s, %s, %s, %s'%(vr(AC,4),vr(HA+4*ks,4),vr(WF+4*(ks&1),4),'0' if (ks==0 and half==0) else vr(AC,4)))
        if half==0: moe_down_dma(a,1)
    rnd2(e,AC,8); rnd2(e,AC+2,8)
    e('v_pk_mul_f32 %s, %s, v[12:13]'%(vr(AC,2),vr(AC,2))); e('v_pk_mul_f32 %s, %s, v[14:15]'%(vr(AC+2,2),vr(AC+2,2)))
    rnd2(e,AC,8); rnd2(e,AC+2,8)
    e('v_lshlrev_b32 v8, 13, v3'); e('v_lshl_add_u32 v8, v2, 2, v8')
    e('s_lshl_b32 s%d, s%d, 1'%(sT0,sB)); e('s_add_u32 s%d, s%d, 0x%x'%(sT0,sT0,WS_Y))
    e('s_mov_b64 exec, 0xffffffff')
    for r in range(4):
        e('buffer_store_dword v%d, v8, s[%d:%d], s%d offen%s'%(AC+r,S_WS,S_WS+3,sT0,SC))
        e('s_add_u32 s%d, s%d, 2048'%(sT0,sT0))
    e('s_mov_b64 exec, -1')
    e('s_waitcnt vmcnt(0)')


def wo_convert(a, tag):
    e=a.e
    vm=Cnt(a,'vmcnt',63)
    l,n,g,t0,t1=1,2,3,4,5
    r_,cc,row0,Fz,wo_b,vL16=6,7,8,9,10,14
    lanes(e)
    e('v_lshlrev_b32 v%d, 4, v%d'%(vL16,l))
    e('v_lshrrev_b32 v%d, 2, v%d'%(r_,n)); e('v_and_b32 v%d, 3, v%d'%(cc,n))
    e('v_and_b32 v%d, 1, v%d'%(t0,g)); e('v_lshlrev_b32 v%d, 4, v%d'%(row0,t0)); e('v_lshlrev_b32 v%d, 3, v%d'%(Fz,t0))
    e('v_lshrrev_b32 v%d, 1, v%d'%(t0,g)); e('v_lshl_add_u32 v%d, v%d, 2, v%d'%(row0,t0,row0))
    e('v_and_b32 v%d, 1, v%d'%(t0,r_)); e('v_add_u32 v%d, v%d, v%d'%(row0,row0,t0)); e('v_or_b32 v%d, v%d, v%d'%(Fz,Fz,t0))
    e('v_lshrrev_b32 v%d, 1, v%d'%(t0,r_)); e('v_lshl_add_u32 v%d, v%d, 5, v%d'%(row0,t0,row0))
    e('v_lshlrev_b32 v%d, 1, v%d'%(t0,cc)); e('s_lshl_b32 s%d, s%d, 3'%(sT0,sW)); e('v_add_u32 v%d, s%d, v%d'%(t0,sT0,t0))
    e('v_xor_b32 v%d, v%d, v%d'%(t0,t0,Fz)); e('v_lshlrev_b32 v%d, 4, v%d'%(t0,t0))
    e('v_lshl_add_u32 v%d, v%d, 10, v%d'%(wo_b,row0,t0)); e('v_xor_b32 v%d, 16, v%d'%(wo_b+1,wo_b))
    e('v_add_u32 v%d, 0x10000, v%d'%(wo_b+2,wo_b)); e('v_add_u32 v%d, 0x10000, v%d'%(wo_b+3,wo_b+1))
    srd(e,S_W,sPWO,4*MB)
    e('s_and_b32 s%d, s%d, 1'%(sT2,sW)); e('s_lshl_b32 s%d, s%d, 7'%(sT2,sT2))
    e('v_xor_b32 v16, s%d, v%d'%(sT2,vL16)); e('v_xor_b32 v17, 16, v16')
    for half in range(2):
        e('s_lshl_b32 s%d, s%d, 17'%(sT0,sI0)); e('s_lshl_b32 s%d, s%d, 14'%(sT1,sW)); e('s_add_u32 s%d, s%d, s%d'%(sT0,sT0,sT1))
        e('s_add_u32 s%d, s%d, 0x%x'%(sT0,sT0,half*65536)); e('s_add_u32 s%d, s%d, 0x%x'%(sT1,sT1,half*65536))
        for i in range(16):
            e('s_mov_b32 m0, s%d'%sT1)
            e('buffer_load_dwordx4 v%d, s[%d:%d], s%d offen lds'%(16+(i&1),S_W,S_W+3,sT0)); vm.issue(half)
            e('s_add_u32 s%d, s%d, 0x400'%(sT0,sT0)); e('s_add_u32 s%d, s%d, 0x400'%(sT1,sT1))
    e('s_lshl_b32 s%d, s%d, 17'%(sA,sI0)); e('s_lshl_b32 s%d, s%d, 14'%(sT1,sW)); e('s_add_u32 s%d, s%d, s%d'%(sA,sA,sT1)); e('s_add_u32 s%d, s%d, 0x%x'%(sA,sA,WS_WOF))
    for half in range(2):
        vm.wait(half)
        e('s_barrier')
        cnt=0
        R0=64+64*half
        for tt in range(8):
            qq=tt>>2
            for p in range(0,8,2):
                off=(8*(p>>2)+2*((p>>1)&1))*1024 + 32*qq*16 + 8*(tt&1)
                e('ds_read_b64_tr_b16 %s, v%d offset:%d'%(vr(R0+tt*8+p,2),wo_b+2*half+((tt>>1)&1),off))
                cnt+=1
                if cnt%12==0: e('s_waitcnt lgkmcnt(4)')
        e('s_waitcnt lgkmcnt(0)')
        for tt in range(8):
            if tt%2==0: e('s_add_u32 s%d, s%d, 0x%x'%(sT0,sA,half*65536+tt*2048))
            for hf in range(2):
                e('buffer_store_dwordx4 %s, v%d, s[%d:%d], s%d offen offset:%d sc1'%(vr(R0+tt*8+4*hf,4),vL16,S_WS,S_WS+3,sT0,(tt&1)*2048+hf*1024)); vm.issue('st')
    spin_dbg(a,'L_%s_frdy'%tag,DBG_FRDY,1,20)
    e('s_barrier')
    e('s_lshl_b32 s%d, s%d, 7'%(sT0,sI0)); e('s_add_u32 s%d, s%d, 0x%x'%(sT0,sT0,FL_W))
    e('v_mov_b32 v4, 1'); e('v_mov_b32 v5, 0')
    e('s_cmp_eq_u32 s%d, 0'%sW); e('s_cselect_b64 exec, 1, 0')
    e('buffer_store_dword v4, v5, s[%d:%d], s%d offen sc1'%(S_WS,S_WS+3,sT0))
    e('s_mov_b64 exec, -1')
```

```python
from asmdsl import *
from layout import *
import math, struct
def f32bits(x): return struct.unpack('<I',struct.pack('<f',x))[0]

S_WS=8; S_DBG=12; S_W=16; S_M0=20
sH=24; sW=25; sS=26; sTAG=27; sRA=28; sRB=29; sRC=30; sT0=31
sP1W=32; sP1R=34
sKX=40; sVX=41; sKM=42; sKM0=44; sT1=45; sT2=46; sT3=47
sC=48; sNC=50; sEXQ=52; sEXM=54
sPWQ=56; sPWK=58; sPWV=60; sPWO=62
sPROG=64; sBUD=65; sFLG=66; sNEED=67
sPN=92
sEX0=4
sPAR=6
FIL=0
vL16=1; vM2R=2; vQKW=3; vQKR=4; vKX=5; vOW=6; vWO0=7; vWO1=8; vP1W=9; vP1R=10; vM2W=11; vIDX=13; vONE=12
vVM1=14
MQ=16; MF=24; F=24; ACC=56; VACC=72; KX=80; VX=112; PX=120; PM=124; VM0=126
WV=128

def wreg(x,t,ks):
    if x<2: return ar(((x*2+t)*8+ks)*8,8)
    return vr(WV+(t*8+ks)*8,8)
def wreg2(x,t,ks,p):
    if x<2: return ar(((x*2+t)*8+ks)*8+p,2)
    return vr(WV+(t*8+ks)*8+p,2)

def gen_rec(a, nsteps=64, opt=()):
    e=a.e
    SC='' if 'plainpub' in opt else ' sc1'
    P=dict(p2=46,p1=46,r1=40,r2=40,w2=2,mf=6,d1=20,d2=20,ds=10,f1=8,f2=8,g1=30,g2=30)
    STL=None
    for o in opt:
        if o.startswith('st='): STL=[int(x) for x in o[3:].split(',')]+[15]
        elif '=' in o: k_,v_=o.split('='); P[k_]=int(v_)
    lg=Cnt(a,'lgkmcnt',15); vm=Cnt(a,'vmcnt',63)
    l,n,g,t0,t1,t2=16,17,18,19,20,21
    e('v_and_b32 v%d, 63, v0'%l); e('v_and_b32 v%d, 15, v0'%n); e('v_bfe_u32 v%d, v0, 4, 2'%g)
    e('v_lshlrev_b32 v%d, 4, v%d'%(vL16,l))
    e('s_lshl_b32 s%d, s%d, 11'%(sT0,sW)); e('v_add_u32 v%d, s%d, v%d'%(vM2R,sT0,vL16))
    e('v_lshrrev_b32 v%d, 2, v%d'%(t0,n)); e('v_xor_b32 v%d, v%d, v%d'%(t0,t0,g)); e('v_lshlrev_b32 v%d, 3, v%d'%(t0,t0))
    e('v_lshl_add_u32 v%d, v%d, 5, v%d'%(t0,n,t0))
    e('s_lshl_b32 s%d, s%d, 10'%(sT0,sW)); e('s_add_u32 s%d, s%d, %d'%(sT0,sT0,L_QK)); e('v_add_u32 v%d, s%d, v%d'%(vQKW,sT0,t0))
    e('v_lshrrev_b32 v%d, 2, v%d'%(t0,n)); e('v_lshl_add_u32 v%d, v%d, 2, v%d'%(t0,g,t0)); e('v_lshlrev_b32 v%d, 5, v%d'%(t0,t0))
    e('v_and_b32 v%d, 3, v%d'%(t1,n)); e('v_xor_b32 v%d, v%d, v%d'%(t1,t1,g)); e('v_lshl_add_u32 v%d, v%d, 3, v%d'%(t0,t1,t0))
    e('v_add_u32 v%d, %d, v%d'%(vQKR,L_QK,t0))
    e('v_add_u32 v%d, %d, v%d'%(vKX,L_KX,vL16))
    e('v_and_b32 v%d, 13, v%d'%(t0,n)); e('v_lshl_add_u32 v%d, v%d, 4, v%d'%(t0,g,t0)); e('v_lshlrev_b32 v%d, 4, v%d'%(t0,t0))
    e('s_lshr_b32 s%d, s%d, 1'%(sT0,sW)); e('s_lshl_b32 s%d, s%d, 10'%(sT0,sT0)); e('s_and_b32 s%d, s%d, 1'%(sT1,sW)); e('s_lshl_b32 s%d, s%d, 5'%(sT1,sT1))
    e('s_add_u32 s%d, s%d, s%d'%(sT0,sT0,sT1)); e('s_add_u32 s%d, s%d, %d'%(sT0,sT0,L_O)); e('v_add_u32 v%d, s%d, v%d'%(vOW,sT0,t0))
    e('s_lshl_b32 s%d, s%d, 14'%(sT0,sW)); e('s_add_u32 s%d, s%d, %d'%(sT0,sT0,L_WO))
    e('v_add_u32 v%d, s%d, v%d'%(vWO0,sT0,vL16)); e('v_add_u32 v%d, 0x10000, v%d'%(vWO1,vWO0))
    e('v_lshrrev_b32 v%d, 2, v%d'%(t0,n)); e('v_lshlrev_b32 v%d, 13, v%d'%(t0,t0)); e('v_lshl_add_u32 v%d, v%d, 6, v%d'%(t0,g,t0))
    e('v_and_b32 v%d, 3, v%d'%(t1,n)); e('v_lshl_add_u32 v%d, v%d, 4, v%d'%(t0,t1,t0))
    e('s_lshl_b32 s%d, s%d, 15'%(sT0,sW)); e('s_lshl_b32 s%d, s%d, 8'%(sT1,sH)); e('s_add_u32 s%d, s%d, s%d'%(sT0,sT0,sT1))
    e('v_add_u32 v%d, s%d, v%d'%(vP1W,sT0,t0))
    e('v_lshrrev_b32 v%d, 3, v%d'%(t0,l)); e('v_lshlrev_b32 v%d, 8, v%d'%(t0,t0)); e('v_and_b32 v%d, 7, v%d'%(t1,l)); e('v_lshl_add_u32 v%d, v%d, 4, v%d'%(t0,t1,t0))
    e('s_and_b32 s%d, s%d, 1'%(sT0,sW)); e('s_lshl_b32 s%d, s%d, 7'%(sT0,sT0)); e('v_add_u32 v%d, s%d, v%d'%(vP1R,sT0,t0))
    e('v_and_b32 v%d, 3, v%d'%(t0,l)); e('v_lshlrev_b32 v%d, 2, v%d'%(t0,t0)); e('v_lshl_add_u32 v%d, v%d, 5, v%d'%(t0,g,t0))
    e('v_bfe_u32 v%d, v%d, 2, 1'%(t1,l)); e('v_lshl_add_u32 v%d, v%d, 6, v%d'%(t0,t1,t0))
    e('v_bfe_u32 v%d, v%d, 3, 1'%(t1,l)); e('v_lshl_add_u32 v%d, v%d, 4, v%d'%(t0,t1,t0))
    e('s_lshl_b32 s%d, s%d, 8'%(sT0,sH)); e('s_and_b32 s%d, s%d, 1'%(sT1,sW)); e('s_lshl_b32 s%d, s%d, 7'%(sT1,sT1)); e('s_add_u32 s%d, s%d, s%d'%(sT0,sT0,sT1))
    e('v_add_u32 v%d, s%d, v%d'%(vM2W,sT0,t0))
    e('s_mov_b32 s%d, 0xff00ff00'%sPAR); e('s_mov_b32 s%d, 0xff00ff00'%(sPAR+1))
    e('v_and_b32 v%d, 2, v%d'%(t0,n)); e('v_cmp_eq_u32 vcc, 0, v%d'%t0)
    e('v_mov_b32 v%d, 0xeeeeeeee'%t0); e('v_mov_b32 v%d, 0x44444444'%t1); e('v_cndmask_b32 v%d, v%d, v%d, vcc'%(vIDX,t0,t1))
    e('v_mov_b32 v15, 0')
    c=(128**-0.5)*math.log2(math.e)
    e('s_mov_b32 s%d, 0x%08x'%(sC,f32bits(c))); e('s_mov_b32 s%d, 0x%08x'%(sC+1,f32bits(c))); e('s_mov_b32 s%d, 0x%08x'%(sNC,f32bits(-c)))
    e('s_mov_b32 s%d, 0xcccccccc'%sEXQ); e('s_mov_b32 s%d, 0xcccccccc'%(sEXQ+1))
    e('s_cmp_eq_u32 s%d, 2'%sW); e('s_cselect_b64 s[%d:%d], 1, 0'%(sEX0,sEX0+1))
    e('s_cmp_lt_u32 s%d, 2'%sW); e('s_cselect_b32 s%d, -1, 0'%sEXM); e('s_mov_b32 s%d, 0'%(sEXM+1))
    for q in range(2): e('s_mov_b32 s%d, 0x%x'%(sP1W+q,WS_P1+q*131072))
    e('s_lshl_b32 s%d, s%d, 13'%(sT0,sH))
    for i in range(2): e('s_add_u32 s%d, s%d, 0x%x'%(sP1R+i,sT0,WS_P1+i*4096))
    e('s_mov_b32 s%d, 0x%x'%(sRA,WS_M2)); e('s_mov_b32 s%d, 0x%x'%(sRB,WS_M2+8192)); e('s_mov_b32 s%d, 0x%x'%(sRC,WS_M2+16384))
    e('s_lshl_b32 s%d, s%d, 13'%(sT0,sH)); e('s_add_u32 s%d, s%d, 0x%x'%(sKX,sT0,WS_K)); e('s_add_u32 s%d, s%d, 0x%x'%(sVX,sT0,WS_V))
    e('s_lshl_b32 s%d, s%d, 12'%(sT0,sH)); e('s_lshl_b32 s%d, s%d, 10'%(sT1,sW)); e('s_add_u32 s%d, s%d, s%d'%(sT0,sT0,sT1)); e('s_add_u32 s%d, s%d, 0x%x'%(sKM,sT0,WS_KM))
    e('s_lshl_b32 s%d, s%d, 11'%(sT0,sW)); e('s_add_u32 s%d, s%d, %d'%(sKM0,sT0,L_KX))
    FUSED='fused' in opt
    e('s_lshl_b32 s%d, s%d, 8'%(sT0,sH)); e('s_add_u32 s%d, s%d, 0x%x'%(sPROG,sT0,FL_REC))
    e('s_lshl_b32 s%d, s%d, 7'%(sT0,sH)); e('s_add_u32 s%d, s%d, 0x%x'%(sFLG,sT0,FL_G))
    e('s_mov_b32 s%d, 0'%sS); e('s_mov_b32 s%d, 1'%sTAG); e('s_mov_b32 s%d, 400000'%sBUD)
    ST='stamps' in opt
    sTM=68; sPREV=70; sACC0=72; NST=16
    if ST:
        for i in range(NST): e('s_mov_b32 s%d, 0'%(sACC0+i))
        e('s_mov_b32 s%d, 0'%sPREV)
    def stamp(i):
        if not ST: return
        if STL is not None and i not in STL: return
        e('s_memtime s[%d:%d]'%(sTM,sTM+1)); e('s_waitcnt lgkmcnt(0)'); lg.q=[]
        e('s_sub_u32 s%d, s%d, s%d'%(sPREV+1,sTM,sPREV)); e('s_add_u32 s%d, s%d, s%d'%(sACC0+i,sACC0+i,sPREV+1)); e('s_mov_b32 s%d, s%d'%(sPREV,sTM))
    def rt(i):
        if 'prof' not in opt: return
        e('s_memrealtime s[%d:%d]'%(sTM,sTM+1)); e('s_waitcnt lgkmcnt(0)'); lg.q=[]
        e('v_mov_b32 v22, s%d'%sTM); e('v_mov_b32 v23, 0')
        e('s_lshl_b32 s%d, s%d, 5'%(sTM+2,sH)); e('s_add_u32 s%d, s%d, 0x%x'%(sTM+2,sTM+2,WS_MISC+0x8000+4*i))
        e('s_mov_b64 exec, 1'); e('buffer_store_dword v22, v23, s[%d:%d], s%d offen'%(S_WS,S_WS+3,sTM+2)); e('s_mov_b64 exec, -1')
        e('s_waitcnt vmcnt(0)'); vm.q=[]
    rt(0)
    def kvmin(vw,vt):
        e('v_bfe_u32 v%d, v%d, 4, 2'%(vt,vL16)); e('v_lshl_add_u32 v%d, v%d, 2, v%d'%(vw,vw,vt))
        for k in (8,4,2,1): e('v_min_u32_dpp v%d, v%d, v%d row_ror:%d row_mask:0xf bank_mask:0xf'%(vw,vw,vw,k))
        e('v_readfirstlane_b32 s%d, v%d'%(sNEED,vw)); e('s_nop 3'); e('s_sub_i32 s%d, s%d, 4'%(sNEED,sNEED))
    def budget(lbl,code):
        e('s_sub_u32 s%d, s%d, 1'%(sBUD,sBUD)); e('s_cmp_eq_u32 s%d, 0'%sBUD); e('s_cbranch_scc0 %s'%lbl)
        e('s_mov_b32 s%d, %d'%(sT0,code)); e('s_branch L_abort')

    L_SEL=L_MISC+1024
    e('v_and_b32 v%d, 1, v%d'%(t0,n)); e('v_cmp_eq_u32 vcc, 0, v%d'%t0)
    e('v_mov_b32 v%d, 0x3f800000'%t0); e('v_mov_b32 v%d, 0x3f80'%t1); e('v_cndmask_b32 v%d, v%d, v%d, vcc'%(t0,t0,t1))
    e('v_lshrrev_b32 v%d, 1, v%d'%(t1,n))
    for i in range(4):
        e('v_cmp_eq_u32 vcc, %d, v%d'%(i,t1)); e('v_cndmask_b32 v%d, v15, v%d, vcc'%(24+i,t0))
    e('ds_write_b128 v%d, v[24:27] offset:%d'%(vL16,L_SEL))
    e('s_waitcnt lgkmcnt(0)')
    for r in range(4): e('v_mov_b32 v%d, 0'%(24+r))
    e('v_mov_b32 v28, -1')
    e('s_lshl_b32 s%d, s%d, 11'%(sT0,sW)); e('s_add_u32 s%d, s%d, s%d'%(sT0,sT0,sP1R))
    for i in range(2): e('buffer_store_dwordx4 v[24:27], v%d, s[%d:%d], s%d offen offset:%d'%(vL16,S_WS,S_WS+3,sT0,i*1024))
    e('s_mov_b64 exec, s[%d:%d]'%(sEXM,sEXM+1))
    for sl in (sRA,sRB,sRC):
        e('buffer_store_dword v28, v%d, s[%d:%d], s%d offen'%(vM2W,S_WS,S_WS+3,sl))
    e('s_mov_b64 exec, -1')
    e('s_waitcnt vmcnt(0)')
    e('s_barrier')
    e('v_cmp_eq_u32 vcc, 0, v0')
    e('s_and_saveexec_b64 s[%d:%d], vcc'%(sT2,sT3))
    e('v_mov_b32 v24, 1'); e('v_mov_b32 v25, %d'%DBG_INIT)
    e('buffer_atomic_add v24, v25, s[%d:%d], 0 offen'%(S_DBG,S_DBG+3))
    e('s_mov_b64 exec, -1')
    dv=28
    e('v_lshrrev_b32 v%d, 1, v%d'%(t0,g)); e('v_lshlrev_b32 v%d, 1, v%d'%(t0,t0)); e('v_xor_b32 v%d, v%d, v%d'%(t0,t0,n))
    e('v_lshlrev_b32 v%d, 4, v%d'%(t0,t0)); e('v_lshl_add_u32 v%d, v%d, 13, v%d'%(t0,g,t0))
    e('s_lshl_b32 s%d, s%d, 8'%(sT0,sH)); e('v_add_u32 v%d, s%d, v%d'%(dv,sT0,t0))
    for k in range(1,4): e('v_xor_b32 v%d, %d, v%d'%(dv+k,k<<6,dv))
    r_,cc,row0,Fz=32,33,34,35
    tb=36
    e('v_lshrrev_b32 v%d, 2, v%d'%(r_,n)); e('v_and_b32 v%d, 3, v%d'%(cc,n))
    e('v_lshrrev_b32 v%d, 1, v%d'%(t0,g)); e('v_lshlrev_b32 v%d, 4, v%d'%(row0,t0))
    e('v_and_b32 v%d, 1, v%d'%(t0,g)); e('v_lshl_add_u32 v%d, v%d, 1, v%d'%(row0,t0,row0)); e('v_lshl_or_b32 v%d, v%d, 1, v%d'%(Fz,r_,t0))
    e('v_lshl_add_u32 v%d, v%d, 2, v%d'%(row0,r_,row0))
    e('v_lshrrev_b32 v%d, 1, v%d'%(t0,cc)); e('s_lshl_b32 s%d, s%d, 2'%(sT0,sW)); e('v_add_u32 v%d, s%d, v%d'%(t0,sT0,t0))
    e('v_lshlrev_b32 v%d, 1, v%d'%(t1,Fz)); e('v_xor_b32 v%d, v%d, v%d'%(t0,t0,t1)); e('v_lshlrev_b32 v%d, 4, v%d'%(t0,t0))
    e('v_lshl_add_u32 v%d, v%d, 8, v%d'%(t0,row0,t0))
    e('v_and_b32 v%d, 1, v%d'%(t1,cc)); e('v_lshl_add_u32 v%d, v%d, 3, v%d'%(t0,t1,t0))
    e('v_add_u32 v%d, %d, v%d'%(tb,L_WO,t0)); e('v_xor_b32 v%d, 32, v%d'%(tb+1,tb))
    e('v_add_u32 v%d, 0x10000, v%d'%(tb+2,tb)); e('v_add_u32 v%d, 0x10000, v%d'%(tb+3,tb+1))
    wo_b=40
    e('v_and_b32 v%d, 1, v%d'%(t0,g)); e('v_lshlrev_b32 v%d, 4, v%d'%(row0,t0)); e('v_lshlrev_b32 v%d, 3, v%d'%(Fz,t0))
    e('v_lshrrev_b32 v%d, 1, v%d'%(t0,g)); e('v_lshl_add_u32 v%d, v%d, 2, v%d'%(row0,t0,row0))
    e('v_and_b32 v%d, 1, v%d'%(t0,r_)); e('v_add_u32 v%d, v%d, v%d'%(row0,row0,t0)); e('v_or_b32 v%d, v%d, v%d'%(Fz,Fz,t0))
    e('v_lshrrev_b32 v%d, 1, v%d'%(t0,r_)); e('v_lshl_add_u32 v%d, v%d, 5, v%d'%(row0,t0,row0))
    e('v_lshlrev_b32 v%d, 1, v%d'%(t0,cc)); e('s_lshl_b32 s%d, s%d, 3'%(sT0,sW)); e('v_add_u32 v%d, s%d, v%d'%(t0,sT0,t0))
    e('v_xor_b32 v%d, v%d, v%d'%(t0,t0,Fz)); e('v_lshlrev_b32 v%d, 4, v%d'%(t0,t0))
    e('v_lshl_add_u32 v%d, v%d, 10, v%d'%(t0,row0,t0))
    e('v_add_u32 v%d, %d, v%d'%(wo_b,L_WO,t0)); e('v_xor_b32 v%d, 16, v%d'%(wo_b+1,wo_b))
    e('v_add_u32 v%d, 0x10000, v%d'%(wo_b+2,wo_b)); e('v_add_u32 v%d, 0x10000, v%d'%(wo_b+3,wo_b+1))
    def set_w(ptr,nbytes):
        e('s_mov_b32 s%d, s%d'%(S_W,ptr)); e('s_and_b32 s%d, s%d, 0xffff'%(S_W+1,ptr+1))
        e('s_mov_b32 s%d, 0x%x'%(S_W+2,nbytes)); e('s_mov_b32 s%d, 0x20000'%(S_W+3))
    def dma(nidx):
        area=nidx&1
        if nidx<6:
            x=nidx>>1; half=nidx&1
            set_w((sPWQ,sPWK,sPWV)[x],4*MB)
            e('s_lshl_b32 s%d, s%d, 19'%(sT0,sW)); e('s_add_u32 s%d, s%d, 0x%x'%(sT0,sT0,half*256*8192))
            e('s_lshl_b32 s%d, s%d, 14'%(sT1,sW)); e('s_add_u32 s%d, s%d, 0x%x'%(sT1,sT1,L_WO+area*65536))
            for i in range(16):
                e('s_mov_b32 m0, s%d'%sT1)
                e('buffer_load_dwordx4 v%d, s[%d:%d], s%d offen lds'%(dv+(i&3),S_W,S_W+3,sT0)); vm.issue(('dma',nidx))
                e('s_add_u32 s%d, s%d, 0x8000'%(sT0,sT0)); e('s_add_u32 s%d, s%d, 0x400'%(sT1,sT1))
        else:
            half=nidx&1
            set_w(sPWO,4*MB)
            e('s_lshl_b32 s%d, s%d, 17'%(sT0,sH)); e('s_lshl_b32 s%d, s%d, 14'%(sT1,sW)); e('s_add_u32 s%d, s%d, s%d'%(sT0,sT0,sT1))
            e('s_add_u32 s%d, s%d, 0x%x'%(sT0,sT0,half*65536)); e('s_add_u32 s%d, s%d, 0x%x'%(sT1,sT1,L_WO+area*65536))
            e('s_and_b32 s%d, s%d, 1'%(sT2,sW)); e('s_lshl_b32 s%d, s%d, 7'%(sT2,sT2))
            e('v_xor_b32 v44, s%d, v%d'%(sT2,vL16)); e('v_xor_b32 v45, 16, v44')
            for i in range(16):
                e('s_mov_b32 m0, s%d'%sT1)
                e('buffer_load_dwordx4 v%d, s[%d:%d], s%d offen lds'%(44+(i&1),S_W,S_W+3,sT0)); vm.issue(('dma',nidx))
                e('s_add_u32 s%d, s%d, 0x400'%(sT0,sT0)); e('s_add_u32 s%d, s%d, 0x400'%(sT1,sT1))
    vm.issue('atom')
    dma(0); dma(1)
    WOPRE='wopre' in opt
    NPH=6 if WOPRE else 8
    for nidx in range(NPH):
        area=nidx&1
        vm.wait(('dma',nidx))
        if nidx==NPH-1:
            e('v_mov_b32 v46, %d'%DBG_INIT); e('v_bfe_u32 v47, v%d, 4, 4'%vL16); e('v_lshlrev_b32 v47, 2, v47')
            e('buffer_load_dword v48, v46, s[%d:%d], 0 offen sc1'%(S_DBG,S_DBG+3))
            if FUSED:
                e('buffer_load_dword v49, v46, s[%d:%d], 0 offen offset:%d sc1'%(S_DBG,S_DBG+3,DBG_FRDY-DBG_INIT))
                e('s_waitcnt vmcnt(0)')
                e('buffer_load_dword v50, v47, s[%d:%d], s%d offen sc1'%(S_WS,S_WS+3,sFLG))
                if WOPRE:
                    e('s_add_u32 s%d, s%d, %d'%(sPN,sFLG,FL_W-FL_G))
                    e('buffer_load_dword v51, v15, s[%d:%d], s%d offen sc1'%(S_WS,S_WS+3,sPN))
        e('s_barrier')
        cnt=0
        if nidx<6:
            x=nidx>>1; half=nidx&1
            for t in range(2):
                for ksl in range(4):
                    ks=half*4+ksl
                    for p in range(0,8,2):
                        off=(64*ksl+32*(p>>2)+((p>>1)&1))*256
                        e('ds_read_b64_tr_b16 %s, v%d offset:%d'%(wreg2(x,t,ks,p),tb+2*area+t,off))
                        cnt+=1
                        if cnt%12==0: e('s_waitcnt lgkmcnt(4)')
            e('s_waitcnt lgkmcnt(0)'); e('s_barrier')
            if nidx+2<NPH: dma(nidx+2)
        else:
            for tt in range(8):
                qq=tt>>2
                for p in range(0,8,2):
                    off=(8*(p>>2)+2*((p>>1)&1))*1024 + 32*qq*16 + 8*(tt&1)
                    e('ds_read_b64_tr_b16 %s, v%d offset:%d'%(vr(64+tt*8+p,2),wo_b+2*area+((tt>>1)&1),off))
                    cnt+=1
                    if cnt%12==0: e('s_waitcnt lgkmcnt(4)')
            e('s_waitcnt lgkmcnt(0)'); e('s_barrier')
            for tt in range(8):
                for hf in range(2):
                    e('ds_write_b128 v%d, %s offset:%d'%((vWO0,vWO1)[area],vr(64+tt*8+4*hf,4),tt*2048+hf*1024))
                if tt%4==3: e('s_waitcnt lgkmcnt(0)')
    e('v_mov_b32 v%d, 0'%(PM+1)); e('v_mov_b32 v%d, 0'%(VM0+1))
    rt(1)
    if FUSED:
        e('s_waitcnt vmcnt(0)')
        e('v_cmp_eq_u32 vcc, 0, v49')
        e('s_cbranch_vccnz L_frdy_pre')
        kvmin(50,26)
        e('s_cmp_ge_i32 s%d, 1'%sNEED); e('s_cbranch_scc1 L_kv0_ok')
        a.label('L_frdy_pre')
        e('v_mov_b32 v25, %d'%DBG_FRDY)
        a.label('L_frdy')
        e('buffer_load_dword v26, v25, s[%d:%d], 0 offen sc1'%(S_DBG,S_DBG+3)); e('s_waitcnt vmcnt(0)')
        e('v_cmp_eq_u32 vcc, 0, v26'); e('s_cbranch_vccz L_frdy_ok'); e('s_sleep 2')
        budget('L_frdy',4)
        a.label('L_frdy_ok')
        a.label('L_kv0')
        e('buffer_load_dword v50, v47, s[%d:%d], s%d offen sc1'%(S_WS,S_WS+3,sFLG)); e('s_waitcnt vmcnt(0)')
        kvmin(50,26)
        e('s_cmp_ge_i32 s%d, 1'%sNEED); e('s_cbranch_scc1 L_kv0_ok'); e('s_sleep 2')
        budget('L_kv0',5)
        a.label('L_kv0_ok')
        if WOPRE:
            e('v_cmp_eq_u32 vcc, 0, v49'); e('v_cmp_eq_u32 s[%d:%d], 0, v51'%(sT2,sT3)); e('s_nop 3'); e('s_or_b64 vcc, vcc, s[%d:%d]'%(sT2,sT3))
            e('s_cbranch_vccz L_wof_ok')
            a.label('L_wof')
            e('buffer_load_dword v51, v15, s[%d:%d], s%d offen sc1'%(S_WS,S_WS+3,sPN)); e('s_waitcnt vmcnt(0)')
            e('v_cmp_eq_u32 vcc, 0, v51'); e('s_cbranch_vccz L_wof_ok'); e('s_sleep 2')
            budget('L_wof',7)
            a.label('L_wof_ok')
    e('s_mov_b32 m0, s%d'%sKM0)
    e('buffer_load_dwordx4 v%d, s[%d:%d], s%d offen sc1 lds'%(vM2R,S_WS,S_WS+3,sKX))
    e('buffer_load_dwordx4 v%d, s[%d:%d], s%d offen offset:1024 sc1 lds'%(vM2R,S_WS,S_WS+3,sKX))
    e('s_xor_b32 s%d, s%d, 8192'%(sKM0,sKM0)); e('s_add_u32 s%d, s%d, 0x40000'%(sKX,sKX))
    e('v_lshrrev_b32 v%d, 2, v%d'%(t0,n)); e('v_lshlrev_b32 v%d, 11, v%d'%(t0,t0))
    e('v_and_b32 v%d, 1, v%d'%(t1,n)); e('v_lshl_add_u32 v%d, v%d, 10, v%d'%(t0,t1,t0)); e('v_lshl_add_u32 v%d, v%d, 5, v%d'%(t0,g,t0))
    e('v_bfe_u32 v%d, v%d, 1, 1'%(t1,n)); e('v_lshl_add_u32 v%d, v%d, 4, v%d'%(24,t1,t0))
    e('s_lshl_b32 s%d, s%d, 8'%(sT0,sW))
    e('buffer_load_dwordx4 v[32:35], v24, s[%d:%d], s%d offen'%(S_M0,S_M0+3,sT0))
    e('buffer_load_dwordx4 v[36:39], v24, s[%d:%d], s%d offen offset:128'%(S_M0,S_M0+3,sT0))
    for r in range(ACC,ACC+24,2): e('v_mov_b64 %s, 0'%vr(r,2))
    e('v_mov_b32 v25, %d'%DBG_INIT)
    e('s_waitcnt vmcnt(0)')
    e('v_cmp_gt_u32 vcc, 32, v48')
    e('s_cbranch_vccz L_init_ok')
    a.label('L_initwait')
    e('buffer_load_dword v26, v25, s[%d:%d], 0 offen sc1'%(S_DBG,S_DBG+3))
    e('s_waitcnt vmcnt(0)')
    e('v_cmp_gt_u32 vcc, 32, v26')
    e('s_cbranch_vccz L_init_ok')
    budget('L_initwait',1)
    a.label('L_init_ok')
    e('s_mov_b32 s%d, 0x05040100'%sT0); e('s_mov_b32 s%d, 0x07060302'%sT1)
    for k in range(2):
        s_=32+4*k; d_=MQ+4*k
        e('v_perm_b32 v%d, v%d, v%d, s%d'%(d_,s_+2,s_,sT0)); e('v_perm_b32 v%d, v%d, v%d, s%d'%(d_+1,s_+2,s_,sT1))
        e('v_perm_b32 v%d, v%d, v%d, s%d'%(d_+2,s_+3,s_+1,sT0)); e('v_perm_b32 v%d, v%d, v%d, s%d'%(d_+3,s_+3,s_+1,sT1))
    e('ds_write_b128 v%d, %s offset:%d'%(vM2R,vr(MQ,4),L_MEM)); e('ds_write_b128 v%d, %s offset:%d'%(vM2R,vr(MQ+4,4),L_MEM+1024))
    for r in range(0,8,2): e('v_mov_b64 %s, %s'%(vr(KX+24+r,2),vr(MQ+r,2)))
    e('s_waitcnt lgkmcnt(0)')
    rt(2)
    if WOPRE:
        e('s_lshl_b32 s%d, s%d, 17'%(sT0,sH)); e('s_lshl_b32 s%d, s%d, 14'%(sT1,sW)); e('s_add_u32 s%d, s%d, s%d'%(sT0,sT0,sT1)); e('s_add_u32 s%d, s%d, 0x%x'%(sT0,sT0,WS_WOF))
        e('s_add_u32 s%d, s%d, %d'%(sT1,sT1,L_WO))
        for j in range(4):
            for k2 in range(2):
                e('s_add_u32 s%d, s%d, %d'%(sT2,sT0,k2*65536+j*4096)); e('s_add_u32 s%d, s%d, %d'%(sT3,sT1,k2*65536+j*4096))
                e('s_mov_b32 m0, s%d'%sT3)
                for i in range(4):
                    e('buffer_load_dwordx4 v%d, s[%d:%d], s%d offen offset:%d sc1 lds'%(vL16,S_WS,S_WS+3,sT2,1024*i))
    e('s_mov_b32 m0, s%d'%sKM0)
    stamp(15)
    e('s_branch L_have_mem')
    vm.reset(); lg.reset()

    def slowpath():
        a.label('L_sm_slow')
        e('s_waitcnt lgkmcnt(0)')
        for f in range(8): e('ds_read_b128 %s, v%d offset:%d'%(vr(KX+4*f,4),vKX,f*1024))
        FR2=[F,F+4,F+8,F+12]
        e('s_waitcnt lgkmcnt(0)')
        for c_ in range(4):
            e('ds_read_b64_tr_b16 %s, v%d offset:%d'%(vr(FR2[c_],2),vQKR,1024*c_))
            e('ds_read_b64_tr_b16 %s, v%d offset:%d'%(vr(FR2[c_]+2,2),vQKR,1024*c_+512))
        e('s_waitcnt lgkmcnt(0)')
        Sm,Sx0,Sx1=ACC,ACC+4,ACC+8
        for acc,Af in ((Sx0,lambda c:vr(KX+4*c,4)),(Sx1,lambda c:vr(KX+16+4*c,4)),(Sm,lambda c:vr(FR2[c],4))):
            for c_ in range(4):
                e('v_mfma_f32_16x16x32_bf16 %s, %s, %s, %s'%(vr(acc,4),Af(c_),vr(FR2[c_],4),'0' if c_==0 else vr(acc,4)))
        vals=[Sx0+i for i in range(4)]+[Sx1+i for i in range(4)]+[Sm,Sm+1]
        m,m2=PX,PX+1
        e('v_max_f32 v%d, v%d, v%d'%(m,vals[0],vals[1]))
        for i in range(2,10,2): e('v_max3_f32 v%d, v%d, v%d, v%d'%(m,m,vals[i],vals[i+1]))
        e('v_mov_b32 v%d, v%d'%(m2,m)); e('v_permlane32_swap_b32 v%d, v%d'%(m,m2)); e('v_max_f32 v%d, v%d, v%d'%(m,m,m2))
        e('v_mov_b32 v%d, v%d'%(m2,m)); e('v_permlane16_swap_b32 v%d, v%d'%(m,m2)); e('v_max_f32 v%d, v%d, v%d'%(m,m,m2))
        for v in vals: e('v_sub_f32 v%d, v%d, v%d'%(v,v,m))
        for v in vals: e('v_exp_f32 v%d, v%d'%(v,v))
        for i in range(4): e('v_cvt_pk_bf16_f32 v%d, v%d, v%d'%(MQ+4+i,vals[2*i],vals[2*i+1]))
        e('v_cvt_pk_bf16_f32 v%d, v%d, v%d'%(PM,Sm,Sm+1))
        O=MF+16
        e('v_mfma_f32_16x16x32_bf16 %s, %s, %s, 0'%(vr(O,4),vr(VX,4),vr(MQ+4,4)))
        e('v_mfma_f32_16x16x32_bf16 %s, %s, %s, 0'%(vr(O+4,4),vr(VX+4,4),vr(MQ+4,4)))
        e('v_mfma_f32_16x16x16_bf16 %s, %s, %s, %s'%(vr(O,4),vr(VM0,2),vr(PM,2),vr(O,4)))
        e('v_mfma_f32_16x16x16_bf16 %s, %s, %s, %s'%(vr(O+4,4),vr(vVM1,2),vr(PM,2),vr(O+4,4)))
        e('v_add_f32 v%d, v%d, v%d'%(m,vals[0],vals[1]))
        for v in vals[2:]: e('v_add_f32 v%d, v%d, v%d'%(m,m,v))
        e('v_mov_b32 v%d, v%d'%(m2,m)); e('v_permlane32_swap_b32 v%d, v%d'%(m,m2)); e('v_add_f32 v%d, v%d, v%d'%(m,m,m2))
        e('v_mov_b32 v%d, v%d'%(m2,m)); e('v_permlane16_swap_b32 v%d, v%d'%(m,m2)); e('v_add_f32 v%d, v%d, v%d'%(m,m,m2))
        e('v_rcp_f32 v%d, v%d'%(m,m))
        for (i,hf) in SLOW['wsnap']:
            tt,k2=SLOW['order'][i]; b=SLOW['WB'][i%8]
            e('ds_read_b128 %s, v%d offset:%d'%(vr(b+4*hf,4),(vWO0,vWO1)[k2],tt*2048+hf*1024))
        e('s_mov_b64 vcc, 0')
        e('s_waitcnt lgkmcnt(0)')
        a.fence()
        e('s_branch L_sm_back')
    SLOW={}
    def flagprep():
        e('s_add_u32 s%d, s%d, 2'%(sT0,sS)); e('s_min_u32 s%d, s%d, 63'%(sT0,sT0))
        e('s_and_b32 s%d, s%d, 15'%(sNEED,sT0)); e('s_lshr_b32 s%d, s%d, 4'%(sT0,sT0)); e('s_lshl_b32 s%d, s%d, 2'%(sT0,sT0)); e('s_add_u32 s%d, s%d, s%d'%(sT1,sT0,sFLG))
    def fill(k):
        if 'nofill' in opt and k<=2: return
        for _ in range(k): e('v_mov_b32 v%d, v%d'%(FIL,vL16))
    a.label('L_step')
    SA,SB,SA2=KX+24,KX+16,KX+8
    def iss2(R):
        for i in range(2):
            e('buffer_load_dwordx4 %s, v%d, s[%d:%d], s%d offen offset:%d sc1'%(vr(R+4*i,4),vM2R,S_WS,S_WS+3,sRA,1024*i))
    def chk2(R,lbl):
        fill(P['f2'])
        e('s_waitcnt vmcnt(2)')
        e('ds_write_b128 v%d, %s offset:%d'%(vM2R,vr(R,4),L_MEM))
        e('v_max3_u32 v%d, v%d, v%d, v%d'%(MQ,R,R+1,R+2))
        e('v_max3_u32 v%d, v%d, v%d, v%d'%(MQ+1,R+4,R+5,R+6))
        e('ds_write_b128 v%d, %s offset:%d'%(vM2R,vr(R+4,4),L_MEM+1024))
        e('v_max3_u32 v%d, v%d, v%d, v%d'%(MQ,MQ,R+3,R+7))
        e('v_max_u32 v%d, v%d, v%d'%(MQ,MQ,MQ+1))
        e('v_cmp_eq_u32 vcc, -1, v%d'%MQ)
        fill(3)
        e('s_waitcnt lgkmcnt(0)')
        e('s_cbranch_vccz %s'%lbl)
    iss2(SA)
    fill(P['g2'])
    a.label('L_poll2')
    iss2(SB)
    chk2(SA,'L_poll2_ok')
    if ST: e('s_add_u32 s%d, s%d, 63'%(sACC0+6,sACC0+6))
    iss2(SA)
    chk2(SB,'L_poll2_okB')
    if ST: e('s_add_u32 s%d, s%d, 63'%(sACC0+6,sACC0+6))
    budget('L_poll2',2)
    a.label('L_poll2_okB')
    for r in range(0,8,2): e('v_mov_b64 %s, %s'%(vr(SA+r,2),vr(SB+r,2)))
    a.label('L_poll2_ok')
    stamp(0)
    a.label('L_have_mem')
    e('s_barrier')
    stamp(1)
    if 'tl' in P:
        e0=a.e; cnt=[0]
        def e_tl(t):
            if cnt[0]==P['tl']:
                cnt[0]+=1
                a.e=e0
                e0('s_memtime s[%d:%d]'%(sTM+20,sTM+21))
                a.tl_text=t
                a.e=e_tl
            else: cnt[0]+=1
            e0(t)
        a.e=e_tl; e=e_tl; lg.a=a;
    def compute():
        def mfread(ks):
            e('ds_read_b128 %s, v%d offset:%d'%(vr(MF+4*ks,4),vL16,L_MEM+ks*1024)); lg.issue(('mf',ks))
        def kxread(f):
            e('ds_read_b128 %s, v%d offset:%d'%(vr(KX+4*f,4),vKX,f*1024)); lg.issue(('kx',f))
        def vxl(i):
            if 'novm' in opt: vm.issue('vx'); fill(1); return
            e('buffer_load_dwordx4 %s, v%d, s[%d:%d], s%d offen offset:%d sc1'%(vr(VX+4*i,4),vM2R,S_WS,S_WS+3,sVX,1024*i)); vm.issue('vx')
        def kdma(i):
            if 'novm' in opt: fill(1); return
            e('buffer_load_dwordx4 v%d, s[%d:%d], s%d offen offset:%d sc1 lds'%(vM2R,S_WS,S_WS+3,sKX,1024*i)); vm.issue('kx')
        def prog():
            e('buffer_store_dword v%d, v15, s[%d:%d], s%d offen sc1'%(MQ+6,S_WS,S_WS+3,sPROG))
        def flagld():
            if not FUSED: fill(1); return
            e('buffer_load_dword v%d, v%d, s[%d:%d], s%d offen sc1'%(vONE,MQ+7,S_WS,S_WS+3,sT1)); vm.issue('flag')
        kxn=[0]
        def kx0():
            if WOPRE:
                kxn[0]+=1
                e('s_cbranch_scc1 L_nodrain%d'%kxn[0])
                e('s_waitcnt vmcnt(2)')
                a.label('L_nodrain%d'%kxn[0])
            else: e('s_waitcnt vmcnt(2)')
            kxread(0)
        def vx1c():
            vxl(1)
            if WOPRE: e('s_cmp_eq_u32 s%d, 0'%sS)
        def rs1():
            e('v_mov_b32 v%d, -1'%(MQ+5))
        def rs2():
            e('s_mov_b64 exec, s[%d:%d]'%(sEXM,sEXM+1))
            e('buffer_store_dword v%d, v%d, s[%d:%d], s%d offen'%(MQ+5,vM2W,S_WS,S_WS+3,sRC)); vm.issue('rst')
            e('s_mov_b64 exec, -1')
        def pv():
            e('v_mov_b32 v%d, s%d'%(MQ+6,sS))
        def fa():
            e('v_and_b32 v%d, 0x30, v%d'%(MQ+7,vL16))
        F1=lambda:fill(1)
        import copy
        lgq0=list(lg.q); vmq0=list(vm.q); hist0=list(a.hist)
        for wv in range(1,4):
            e('s_cmp_eq_u32 s%d, %d'%(sW,wv)); e('s_cbranch_scc1 L_qk%d'%wv)
        for wv in range(4):
            if wv: a.label('L_qk%d'%wv)
            lg.q=list(lgq0); vm.q=list(vmq0); a.hist=list(hist0)
            own=[2*wv,2*wv+1]; oth=[k for k in range(8) if k not in own]
            W=lambda i:(lambda:lg.wait(('mf',oth[i])))
            R_=lambda k:(lambda:mfread(k))
            mfread(oth[0]); mfread(oth[1])
            gaps=[R_(oth[2]),R_(oth[3]),R_(oth[4]),R_(oth[5]),
                  R_(own[0]),R_(own[1]),lambda:vxl(0),W(1),
                  vx1c,kx0,lambda:kdma(0),lambda:kxread(1),
                  lambda:kdma(1),lambda:kxread(2),lambda:kxread(3),W(5),
                  lambda:kxread(4),lambda:kxread(5),lambda:kxread(6),lambda:kxread(7),
                  pv,(prog if (FUSED and wv==2) else F1),F1,F1,F1,F1,F1]+[F1]*5
            gi=0
            for ks in own+oth:
                A=vr(SA+4*(ks&1),4) if ks in own else vr(MF+4*ks,4)
                for x in range(2):
                    for t in range(2):
                        e('v_smfmac_f32_16x16x64_bf16 %s, %s, %s, v%d'%(vr(ACC+(x*2+t)*4,4),A,wreg(x,t,ks),vIDX))
                        if gi<31 or wv==3: gaps[gi]()
                        gi+=1
            lg.wait(('mf',own[1]))
            if wv<3: e('s_branch L_qk_done')
        a.label('L_qk_done')
        stamp(2)
        vq=[(ks,t) for ks in range(8) for t in range(2)]
        def vmf(k=1,f=1):
            for _ in range(k):
                ks,t=vq.pop(0)
                e('v_smfmac_f32_16x16x64_bf16 %s, %s, %s, v%d'%(vr(VACC+t*4,4),vr(MF+4*ks,4),wreg(2,t,ks),vIDX))
                fill(f)
        vmf(1,0)
        e('v_pk_add_f32 %s, %s, %s'%(vr(MQ+4,2),vr(ACC,2),vr(ACC+2,2)))
        e('v_pk_add_f32 %s, %s, %s'%(vr(MQ+6,2),vr(ACC+4,2),vr(ACC+6,2)))
        e('v_pk_mul_f32 %s, %s, s[%d:%d]'%(vr(MQ+4,2),vr(MQ+4,2),sC,sC+1))
        e('v_pk_mul_f32 %s, %s, s[%d:%d]'%(vr(MQ+6,2),vr(MQ+6,2),sC,sC+1))
        e('v_pk_add_f32 %s, %s, %s'%(vr(ACC,2),vr(ACC+8,2),vr(ACC+10,2)))
        e('v_pk_add_f32 %s, %s, %s'%(vr(ACC+2,2),vr(ACC+12,2),vr(ACC+14,2)))
        e('v_cvt_pk_bf16_f32 v%d, v%d, v%d'%(MQ+2,MQ+4,MQ+5))
        e('v_cvt_pk_bf16_f32 v%d, v%d, v%d'%(MQ,ACC,ACC+1))
        e('v_cvt_pk_bf16_f32 v%d, v%d, v%d'%(MQ+3,MQ+6,MQ+7))
        e('ds_write2_b32 v%d, v%d, v%d offset0:0 offset1:1'%(vQKW,MQ,MQ+2)); lg.issue(('qkw',0))
        e('v_cvt_pk_bf16_f32 v%d, v%d, v%d'%(MQ+1,ACC+2,ACC+3))
        e('ds_write2_b32 v%d, v%d, v%d offset0:128 offset1:129'%(vQKW,MQ+1,MQ+3)); lg.issue(('qkw',1))
        vmf(5)
        lg.wait(('qkw',1))
        stamp(3)
        e('s_barrier')
        stamp(4)
        FR=[F,F+4,F+8,PX]
        def fread(c_):
            e('ds_read_b64_tr_b16 %s, v%d offset:%d'%(vr(FR[c_],2),vQKR,1024*c_)); lg.issue(('f',c_,0))
            e('ds_read_b64_tr_b16 %s, v%d offset:%d'%(vr(FR[c_]+2,2),vQKR,1024*c_+512)); lg.issue(('f',c_,1))
        Sm,Sx0,Sx1=ACC,ACC+4,ACC+8
        WB=[KX,KX+8,KX+16,KX+24,MF,MF+8,MF+24,MQ]
        NWB=8
        order=[(tt,k2) for tt2 in range(4) for k2 in range(2) for tt in (2*tt2,2*tt2+1)]
        wq=[(i,hf) for i in range(16) for hf in range(2)]
        wdone=[]
        def wo(k=1):
            for _ in range(k):
                if not wq: return False
                i,hf=wq.pop(0); wdone.append((i,hf)); tt,k2=order[i]; b=WB[i%NWB]
                e('ds_read_b128 %s, v%d offset:%d'%(vr(b+4*hf,4),(vWO0,vWO1)[k2],tt*2048+hf*1024)); lg.issue(('wo',i,hf))
            return True
        def smf(acc,A,c_):
            e('v_mfma_f32_16x16x32_bf16 %s, %s, %s, %s'%(vr(acc,4),A,vr(FR[c_],4),'0' if c_==0 else vr(acc,4)))
        def ex(r): e('v_exp_f32 v%d, v%d'%(r,r))
        def cv(d,r): e('v_cvt_pk_bf16_f32 v%d, v%d, v%d'%(d,r,r+1))
        PXT=MQ+4
        for c_ in range(4): fread(c_)
        vmf(1,0)
        if 'nopub' not in opt: e('buffer_store_dwordx2 %s, v%d, s[%d:%d], s%d offen%s'%(vr(MQ,2),vL16,S_WS,S_WS+3,sKM,SC)); vm.issue('km')
        vmf(1,0)
        for c_ in range(4):
            lg.wait(('f',c_,1)); smf(Sx0,vr(KX+4*c_,4),c_)
            if c_==3 and WOPRE: e('s_cmp_eq_u32 s%d, 0'%sS)
            else: fill(1)
        for c_ in range(4):
            smf(Sx1,vr(KX+16+4*c_,4),c_)
            if c_==0 and WOPRE:
                e('s_cbranch_scc0 L_wo_here')
                e('s_waitcnt vmcnt(0)')
                a.label('L_wo_here')
            if c_<2: wo(2)
            else: ex(Sx0+c_-2)
        for c_ in range(4):
            smf(Sm,vr(FR[c_],4),c_)
            if c_<2: ex(Sx0+2+c_)
            else: ex(Sx1+c_-2)
            wo(1)
        stamp(5)
        vmf(1,0); cv(PXT,Sx0); wo(1)
        vmf(1,0); ex(Sx1+2)
        vmf(1,0); ex(Sx1+3)
        vmf(1,0); cv(PXT+1,Sx0+2); wo(1)
        vmf(1,0); ex(Sm)
        vmf(1,0); ex(Sm+1)
        vmf(1,0); cv(PXT+2,Sx1); wo(1)
        vmf(1,0); cv(PXT+3,Sx1+2); wo(1)
        assert not vq, vq
        stamp(6)
        vm.wait('vx')
        stamp(7)
        O=MF+16
        L0=PX
        cv(PM,Sm)
        e('v_mfma_f32_16x16x32_bf16 %s, %s, %s, 0'%(vr(O,4),vr(VX,4),vr(PXT,4)))
        e('v_pk_add_f32 %s, %s, %s'%(vr(L0,2),vr(Sx0,2),vr(Sx0+2,2)))
        e('v_pk_add_f32 %s, %s, %s'%(vr(L0+2,2),vr(Sx1,2),vr(Sx1+2,2)))
        e('v_mfma_f32_16x16x32_bf16 %s, %s, %s, 0'%(vr(O+4,4),vr(VX+4,4),vr(PXT,4)))
        e('v_pk_add_f32 %s, %s, %s'%(vr(VACC,2),vr(VACC,2),vr(VACC+2,2)))
        e('v_pk_add_f32 %s, %s, %s'%(vr(VACC+4,2),vr(VACC+4,2),vr(VACC+6,2)))
        cv(VM0,VACC); cv(vVM1,VACC+4)
        e('v_pk_add_f32 %s, %s, %s'%(vr(L0,2),vr(L0,2),vr(Sm,2)))
        e('v_pk_add_f32 %s, %s, %s'%(vr(L0,2),vr(L0,2),vr(L0+2,2)))
        e('v_mfma_f32_16x16x16_bf16 %s, %s, %s, %s'%(vr(O,4),vr(VM0,2),vr(PM,2),vr(O,4)))
        e('v_add_f32 v%d, v%d, v%d'%(L0+2,L0,L0+1)); e('v_add_f32 v%d, v%d, v%d'%(L0+3,L0,L0+1))
        e('v_mfma_f32_16x16x16_bf16 %s, %s, %s, %s'%(vr(O+4,4),vr(vVM1,2),vr(PM,2),vr(O+4,4)))
        wo(1)
        e('v_permlane32_swap_b32 v%d, v%d'%(L0+2,L0+3))
        e('v_add_f32 v%d, v%d, v%d'%(L0,L0+2,L0+3)); e('v_add_f32 v%d, v%d, v%d'%(L0+1,L0+2,L0+3))
        wo(1); cv(MQ+2,VACC)
        e('v_permlane16_swap_b32 v%d, v%d'%(L0,L0+1))
        e('v_add_f32 v%d, v%d, v%d'%(L0+2,L0,L0+1))
        e('v_rcp_f32 v%d, v%d'%(L0,L0+2))
        e('v_lshrrev_b32 v%d, 23, v%d'%(L0+3,L0+2))
        e('v_subrev_u32 v%d, 27, v%d'%(L0+3,L0+3))
        e('v_cmp_lt_u32 vcc, %d, v%d'%(0 if 'forceslow' in opt else 200,L0+3))
        a.label('L_sm_back')
        for r in range(0,8,2):
            e('v_pk_mul_f32 %s, %s, %s op_sel_hi:[1,0]'%(vr(O+r,2),vr(O+r,2),vr(L0,2)))
        cv(MQ+3,VACC+4)
        e('s_and_b64 vcc, vcc, s[%d:%d]'%(sEXQ,sEXQ+1))
        for r in range(4): cv(MQ+4+r,O+2*r)
        e('s_cbranch_scc1 L_sm_slow')
        wsnap=list(wdone)
        e('s_mov_b64 exec, s[%d:%d]'%(sEXQ,sEXQ+1))
        e('ds_write_b128 v%d, %s'%(vOW,vr(MQ+4,4))); lg.issue('ow')
        e('s_mov_b64 exec, -1')
        if 'nopub' not in opt: e('buffer_store_dwordx2 %s, v%d, s[%d:%d], s%d offen offset:8%s'%(vr(MQ+2,2),vL16,S_WS,S_WS+3,sKM,SC)); vm.issue('vmst')
        OACC=[ACC,ACC+4,ACC+8,ACC+12,VACC,VACC+4,O,O+4]
        e('s_cmp_eq_u32 s%d, %d'%(sS,nsteps-1))
        e('s_cbranch_scc1 L_rec_done')
        for b in OACC[:4]:
            e('v_mov_b64 %s, 0'%vr(b,2)); e('v_mov_b64 %s, 0'%vr(b+2,2))
        lg.wait('ow')
        stamp(8)
        e('s_barrier')
        stamp(9)
        OA=VX
        e('ds_read_b128 %s, v%d offset:%d'%(vr(OA,4),vL16,L_O)); lg.issue('oa0')
        e('ds_read_b128 %s, v%d offset:%d'%(vr(OA+4,4),vL16,L_O+1024)); lg.issue('oa1')
        wo(2)
        for b in OACC[4:]:
            e('v_mov_b64 %s, 0'%vr(b,2)); e('v_mov_b64 %s, 0'%vr(b+2,2))
        post=[]
        def mkpost(tt):
            b=OACC[tt]; T=OACC[tt&4]+(tt&3)
            r=['v_pk_add_f32 %s, %s, %s'%(vr(b,2),vr(b,2),vr(b+2,2)), 'v_cvt_pk_bf16_f32 v%d, v%d, v%d'%(T,b,b+1)]
            if tt&3==0: r.append('v_and_or_b32 v%d, v%d, -2, s%d'%(T,T,sTAG))
            if tt&3==3 and 'nost' not in opt: r.append('buffer_store_dwordx4 %s, v%d, s[%d:%d], s%d offen'%(vr(OACC[tt&4],4),vP1W,S_WS,S_WS+3,sP1W+(tt>>2)))
            return r
        for i,(tt,k2) in enumerate(order):
            if i==0: lg.wait('oa0')
            if i==2: lg.wait('oa1')
            if i%2==0: lg.wait(('wo',i+1,1))
            e('v_smfmac_f32_16x16x64_bf16 %s, %s, %s, v%d'%(vr(OACC[tt],4),vr(OA+4*k2,4),vr(WB[i%NWB],8),vIDX))
            if wq: wo(2 if i<4 else 1)
            else:
                if i==12:
                    for t_ in range(4): post+=mkpost(t_)
                if post:
                    e(post.pop(0)); e(post.pop(0))
        assert not wq
        for t_ in range(4,8): post+=mkpost(t_)
        for x in post: e(x)
        SLOW.update(wsnap=wsnap,order=order,WB=WB)
    def skeleton():
        e('v_mov_b32 v%d, -1'%(MQ+5))
        e('s_mov_b64 exec, s[%d:%d]'%(sEXM,sEXM+1))
        e('buffer_store_dword v%d, v%d, s[%d:%d], s%d offen'%(MQ+5,vM2W,S_WS,S_WS+3,sRC))
        e('s_mov_b64 exec, -1')
        fill(P.get('sk',200))
        e('s_cmp_eq_u32 s%d, %d'%(sS,nsteps-1))
        e('s_cbranch_scc1 L_rec_done')
        e('s_barrier')
        stamp(9)
        for qq in range(2):
            T=ACC+4*qq
            e('v_and_or_b32 v%d, v%d, -2, s%d'%(T,15,sTAG))
            e('buffer_store_dwordx4 %s, v%d, s[%d:%d], s%d offen'%(vr(T,4),vP1W,S_WS,S_WS+3,sP1W+qq))
            if qq==0: fill(P.get('sg',8))
    if 'skel' in opt: skeleton()
    else: compute()
    SEL=KX
    e('ds_read_b128 %s, v%d offset:%d'%(vr(SEL,4),vL16,L_SEL))
    e('v_xor_b32 v%d, 8192, v%d'%(vKX,vKX))
    e('s_xor_b32 s%d, s%d, 8192'%(sKM0,sKM0)); e('s_add_u32 s%d, s%d, 0x40000'%(sVX,sVX)); e('s_add_u32 s%d, s%d, 0x20000'%(sKM,sKM))
    e('s_add_u32 s%d, s%d, 1'%(sS,sS)); e('s_cmp_lt_u32 s%d, 62'%sS); e('s_cselect_b32 s%d, 0x40000, 0'%sT0); e('s_add_u32 s%d, s%d, s%d'%(sKX,sKX,sT0))
    for r in range(ACC,ACC+24,2): e('v_mov_b64 %s, 0'%vr(r,2))
    e('s_mov_b32 m0, s%d'%sKM0)
    stamp(10)
    if 'solo' in opt:
        e('s_waitcnt vmcnt(0) lgkmcnt(0)')
        if 'tl' in P:
            e('s_sub_u32 s%d, s%d, s%d'%(sTM+22,sTM+20,sPREV)); e('s_add_u32 s%d, s%d, s%d'%(sACC0+2,sACC0+2,sTM+22))
        fill(30)
        e('s_branch L_have_mem')
    e('s_cmp_ge_u32 s%d, 2'%sW)
    e('s_cbranch_scc1 L_side')
    e('v_mov_b32 v%d, -1'%(MQ+5))
    e('s_mov_b64 exec, s[%d:%d]'%(sEXM,sEXM+1))
    e('buffer_store_dword v%d, v%d, s[%d:%d], s%d offen'%(MQ+5,vM2W,S_WS,S_WS+3,sRC))
    e('s_mov_b64 exec, -1')
    fill(P['d1'])
    P1=MF; X=KX+8
    PA,PB=MF,MF+16
    def iss1(R):
        for i in range(4):
            e('buffer_load_dwordx4 %s, v%d, s[%d:%d], s%d offen offset:%d sc1'%(vr(R+4*i,4),vP1R,S_WS,S_WS+3,sP1R+(i>>1),2048*(i&1)))
    def chk1(R,lbl):
        fill(P['f1'])
        for i in range(4):
            e('s_waitcnt vmcnt(%d)%s'%(7-i,' lgkmcnt(0)' if i==0 else ''))
            e('v_mfma_f32_16x16x32_bf16 %s, %s, %s, %s'%(vr(X,4),vr(SEL,4),vr(R+4*i,4),'0' if i==0 else vr(X,4)))
            if i==1: e('v_bitop3_b32 v%d, v%d, v%d, s%d bitop3:0x7e'%(MQ,R,R+4,sTAG))
        e('v_bitop3_b32 v%d, v%d, v%d, s%d bitop3:0x7e'%(MQ+1,R+8,R+12,sTAG))
        e('v_or_b32 v%d, v%d, v%d'%(MQ,MQ,MQ+1))
        e('v_and_b32 v%d, 1, v%d'%(MQ,MQ))
        e('v_cmp_ne_u32 vcc, 0, v%d'%MQ)
        fill(4)
        e('s_cbranch_vccz %s'%lbl)
    iss1(PA)
    fill(P['g1'])
    a.label('L_poll1')
    iss1(PB)
    chk1(PA,'L_poll1_ok')
    if ST: e('s_add_u32 s%d, s%d, 63'%(sACC0+5,sACC0+5))
    iss1(PA)
    chk1(PB,'L_poll1_ok')
    if ST: e('s_add_u32 s%d, s%d, 63'%(sACC0+5,sACC0+5))
    budget('L_poll1',3)
    a.label('L_poll1_ok')
    stamp(12)
    for r in range(4):
        e('v_add_f32_dpp v%d, v%d, v%d row_ror:8 row_mask:0xf bank_mask:0xf'%(X+4+r,X+r,X+r))
    e('v_cndmask_b32 v%d, v%d, v%d, s[%d:%d]'%(X,X+4,X+5,sPAR,sPAR+1)); e('v_cndmask_b32 v%d, v%d, v%d, s[%d:%d]'%(X+2,X+6,X+7,sPAR,sPAR+1))
    e('v_cvt_pk_bf16_f32 v%d, v%d, v%d'%(X+4,X,X+2))
    e('s_mov_b64 exec, s[%d:%d]'%(sEXM,sEXM+1))
    e('v_min_u32 v%d, -2, v%d'%(X+4,X+4))
    e('buffer_store_dword v%d, v%d, s[%d:%d], s%d offen'%(X+4,vM2W,S_WS,S_WS+3,sRB))
    e('s_mov_b64 exec, -1')
    stamp(13)
    fill(P['d2'])
    e('s_branch L_join')
    a.label('L_side')
    e('s_waitcnt vmcnt(0) lgkmcnt(0)')
    if 'prof' in opt:
        e('s_memrealtime s[%d:%d]'%(sTM,sTM+1)); e('s_waitcnt lgkmcnt(0)')
        e('v_mov_b32 v22, s%d'%sTM)
        e('s_lshl_b32 s%d, s%d, 8'%(sTM+2,sH)); e('s_lshl_b32 s%d, s%d, 2'%(sTM+3,sS)); e('s_add_u32 s%d, s%d, s%d'%(sTM+2,sTM+2,sTM+3)); e('s_add_u32 s%d, s%d, 0x%x'%(sTM+2,sTM+2,WS_MISC+0x18000))
        e('s_mov_b64 exec, 1'); e('buffer_store_dword v22, v15, s[%d:%d], s%d offen'%(S_WS,S_WS+3,sTM+2)); e('s_mov_b64 exec, -1')
    if FUSED:
        e('v_bfe_u32 v%d, v%d, 4, 4'%(MQ+7,vL16)); e('v_lshlrev_b32 v%d, 2, v%d'%(MQ+7,MQ+7))
        e('s_add_u32 s%d, s%d, 1'%(sT1,sS)); e('s_min_u32 s%d, s%d, 60'%(sT1,sT1))
        a.label('L_kvspin')
        e('s_cmp_le_i32 s%d, s%d'%(sT1,sNEED))
        e('s_cbranch_scc1 L_kv_ok')
        e('buffer_load_dword v%d, v%d, s[%d:%d], s%d offen sc1'%(vONE,MQ+7,S_WS,S_WS+3,sFLG)); e('s_waitcnt vmcnt(0)')
        kvmin(vONE,MQ+6)
        budget('L_kvspin',6)
        a.label('L_kv_ok')
    e('s_mov_b32 s%d, %d'%(sT0,P['ds']))
    a.label('L_sidefill')
    fill(8)
    e('s_sub_u32 s%d, s%d, 1'%(sT0,sT0)); e('s_cmp_lg_u32 s%d, 0'%sT0); e('s_cbranch_scc1 L_sidefill')
    a.label('L_join')
    fill(1)
    e('s_mov_b32 s%d, s%d'%(sT0,sRA)); e('s_mov_b32 s%d, s%d'%(sRA,sRB)); fill(1); e('s_mov_b32 s%d, s%d'%(sRB,sRC)); e('s_mov_b32 s%d, s%d'%(sRC,sT0))
    fill(1)
    e('s_xor_b32 s%d, s%d, 1'%(sTAG,sTAG))
    if 'tl' in P and 'solo' not in opt:
        e('s_waitcnt lgkmcnt(0)')
        e('s_sub_u32 s%d, s%d, s%d'%(sTM+22,sTM+20,sPREV)); e('s_add_u32 s%d, s%d, s%d'%(sACC0+2,sACC0+2,sTM+22))
    e('s_branch L_step')
    if 'skel' not in opt: slowpath()
    a.label('L_rec_done')
    e('s_waitcnt vmcnt(0) lgkmcnt(0)')
    rt(3)
    if ST:
        e('s_lshl_b32 s%d, s%d, 2'%(sT0,sH)); e('s_add_u32 s%d, s%d, s%d'%(sT0,sT0,sW)); e('s_lshl_b32 s%d, s%d, 7'%(sT0,sT0)); e('s_add_u32 s%d, s%d, 0x%x'%(sT0,sT0,WS_MISC))
        e('s_mov_b64 exec, 1')
        for i in range(NST):
            e('v_mov_b32 v16, s%d'%(sACC0+i))
            e('buffer_store_dword v16, v15, s[%d:%d], s%d offen offset:%d'%(S_WS,S_WS+3,sT0,4*i))
        e('v_mov_b32 v16, s%d'%sBUD)
        e('buffer_store_dword v16, v15, s[%d:%d], s%d offen offset:%d'%(S_WS,S_WS+3,sT0,4*NST))
        e('s_mov_b64 exec, -1')
    if FUSED:
        e('s_barrier')
        e('v_mov_b32 v%d, %d'%(MQ,nsteps))
        e('s_cmp_eq_u32 s%d, 0'%sW)
        e('s_cselect_b64 exec, 1, 0')
        e('buffer_store_dword v%d, v15, s[%d:%d], s%d offen sc1'%(MQ,S_WS,S_WS+3,sPROG))
        e('s_mov_b64 exec, -1')
    e('s_waitcnt vmcnt(0)')
    e('s_endpgm')
    a.label('L_abort')
    e('s_waitcnt vmcnt(0) lgkmcnt(0)')
    e('s_lshl_b32 s%d, s%d, 8'%(sT1,sS)); e('s_or_b32 s%d, s%d, s%d'%(sT0,sT0,sT1))
    e('v_mov_b32 v16, s%d'%sT0); e('v_mov_b32 v17, %d'%DBG_ABORT)
    e('s_mov_b64 exec, 1')
    e('buffer_store_dword v16, v17, s[%d:%d], 0 offen sc1'%(S_DBG,S_DBG+3))
    e('s_waitcnt vmcnt(0)')
    e('s_endpgm')

from gen_rec import HEADER, kd, srd

def rec_only_kernel(nsteps=64,opt=()):
    a=Asm()
    name='rec_kernel'
    a.raw(HEADER+'; @launch kernel=%s grid=(256,1,1) block=(256,1,1) lds=%d'%(name,LDS_BYTES))
    a.raw('.amdgcn_target "amdgcn-amd-amdhsa--gfx950"\n.text\n.globl %s\n.p2align 8\n.type %s,@function\n%s:'%(name,name,name))
    rec_body(a,nsteps,opt)
    a.raw(kd(name,sgpr=102))
    return a

def rec_body(a,nsteps,opt):
    e=a.e
    e('s_load_dwordx2 s[4:5], s[0:1], 8')
    e('s_load_dwordx4 s[%d:%d], s[0:1], 16'%(sPWQ,sPWQ+3))
    e('s_load_dwordx4 s[%d:%d], s[0:1], 32'%(sPWV,sPWV+3))
    e('s_load_dwordx4 s[68:71], s[0:1], 112')
    e('s_getreg_b32 s3, hwreg(HW_REG_XCC_ID, 0, 4)')
    e('v_lshrrev_b32 v1, 6, v0')
    e('v_readfirstlane_b32 s%d, v1'%sW)
    e('s_waitcnt lgkmcnt(0)')
    srd(e,S_WS,70,WS_BYTES); srd(e,S_DBG,68,256); srd(e,S_M0,4,8192); srd(e,S_W,sPWQ,4*MB)
    e('s_cmp_lg_u32 s3, 0')
    e('s_cbranch_scc1 L_exit')
    e('v_cmp_eq_u32 vcc, 0, v0')
    e('s_and_saveexec_b64 s[%d:%d], vcc'%(sT2,sT3))
    e('s_cbranch_execz L_noticket')
    e('v_mov_b32 v1, 1'); e('v_mov_b32 v2, %d'%DBG_TICKET)
    e('buffer_atomic_add v1, v2, s[%d:%d], 0 offen sc0'%(S_DBG,S_DBG+3))
    e('s_waitcnt vmcnt(0)')
    e('v_mov_b32 v2, %d'%L_MISC)
    e('ds_write_b32 v2, v1')
    e('s_waitcnt lgkmcnt(0)')
    a.label('L_noticket')
    e('s_mov_b64 exec, -1')
    e('s_barrier')
    e('v_mov_b32 v2, %d'%L_MISC)
    e('ds_read_b32 v1, v2')
    e('s_waitcnt lgkmcnt(0)')
    e('v_readfirstlane_b32 s%d, v1'%sH)
    e('s_nop 3')
    e('s_cmp_ge_u32 s%d, 32'%sH)
    e('s_cbranch_scc1 L_exit')
    gen_rec(a,nsteps,opt)
    a.label('L_exit')
    e('s_endpgm')

if __name__=='__main__':
    import sys
    ns=int(sys.argv[2]) if len(sys.argv)>2 else 64
    a=rec_only_kernel(ns,tuple(sys.argv[3:]))
    open(sys.argv[1],'w').write(a.text())
    print('nops inserted',a.nops,'lines',len(a.out))
```

```python
from asmdsl import *
from layout import *
import gen_rec3 as R
import gen_bulk as B
import sys
NAME='gated_mix__memory_aug_recurrent_mem_tr__moe_arch_mod__prompt_kernel'
def ticket(a,tag,off,dst):
    e=a.e
    e('v_cmp_eq_u32 vcc, 0, v0')
    e('s_and_saveexec_b64 s[46:47], vcc')
    e('s_cbranch_execz L_nt_%s'%tag)
    e('v_mov_b32 v1, 1'); e('v_mov_b32 v2, %s'%off)
    e('buffer_atomic_add v1, v2, s[%d:%d], 0 offen sc0'%(B.S_DBG,B.S_DBG+3))
    e('s_waitcnt vmcnt(0)')
    e('v_mov_b32 v2, %d'%L_MISC); e('ds_write_b32 v2, v1'); e('s_waitcnt lgkmcnt(0)')
    a.label('L_nt_%s'%tag)
    e('s_mov_b64 exec, -1')
    e('s_barrier')
    e('v_mov_b32 v2, %d'%L_MISC); e('ds_read_b32 v1, v2'); e('s_waitcnt lgkmcnt(0)')
    e('v_readfirstlane_b32 s%d, v1'%dst)
    e('s_nop 3')
    e('s_barrier')
def ldp(a,reg,off): a.e('s_load_dwordx2 s[%d:%d], s[0:1], %d'%(reg,reg+1,off))

def build(opt):
    a=Asm(); e=a.e
    SL=dict(sla=2,slo=2,sld=0)
    for o in opt:
        if o.startswith('sl'): k,v=o.split('='); SL[k]=int(v)
    opt=tuple(o for o in opt if not o.startswith('sl'))
    def brt(i):
        if 'prof' not in opt: return
        e('s_memrealtime s[100:101]'); e('s_waitcnt lgkmcnt(0)')
        e('v_mov_b32 v252, s100'); e('v_mov_b32 v253, 0')
        e('s_lshl_b32 s100, s2, 5'); e('s_add_u32 s100, s100, 0x%x'%(WS_MISC+0x10000+4*i))
        e('s_mov_b64 exec, 1'); e('buffer_store_dword v252, v253, s[%d:%d], s100 offen'%(B.S_WS,B.S_WS+3)); e('s_mov_b64 exec, -1')
    a.raw(R.HEADER+'; @launch grid=(256,1,1) block=(256,1,1) lds=%d'%LDS_BYTES)
    a.raw('.amdgcn_target "amdgcn-amd-amdhsa--gfx950"\n.text\n.globl %s\n.p2align 8\n.type %s,@function\n%s:'%(NAME,NAME,NAME))
    e('s_load_dwordx4 s[4:7], s[0:1], 0')
    e('s_load_dwordx4 s[%d:%d], s[0:1], 16'%(B.sPWQ,B.sPWQ+3))
    e('s_load_dwordx4 s[%d:%d], s[0:1], 32'%(B.sPWV,B.sPWV+3))
    e('s_load_dwordx2 s[%d:%d], s[0:1], 104'%(B.sPOUT,B.sPOUT+1))
    e('s_load_dwordx4 s[72:75], s[0:1], 112')
    e('s_getreg_b32 s3, hwreg(HW_REG_XCC_ID, 0, 4)')
    e('v_lshrrev_b32 v1, 6, v0')
    e('v_readfirstlane_b32 s%d, v1'%B.sW)
    e('s_waitcnt lgkmcnt(0)')
    B.srd(e,B.S_WS,74,WS_BYTES); B.srd(e,B.S_DBG,72,256); B.srd(e,B.S_W,B.sPWQ,4*MB)
    B.srd(e,R.S_M0,6,8192)
    B.srd(e,B.S_OUT,B.sPOUT,2*MB)
    brt(0)
    e('s_cmp_lg_u32 s3, 0')
    e('s_cbranch_scc1 L_bulk')
    ticket(a,'rec',DBG_TICKET,R.sH)
    e('s_cmp_ge_u32 s%d, 32'%R.sH)
    e('s_cbranch_scc1 L_bulk')
    R.gen_rec(a,64,('fused',)+opt)
    a.label('L_bulk')
    a.hist=[]
    B.srd(e,B.S_X,4,2*MB)
    sB_=99
    ticket(a,'bulk',DBG_BT,sB_)
    e('s_cmp_ge_u32 s%d, 224'%sB_); e('s_cbranch_scc1 L_end')
    e('s_mov_b32 s%d, 300000'%B.sBUD)
    e('s_cmp_lg_u32 s%d, 0'%sB_); e('s_cbranch_scc1 L_noinit')
    e('v_lshlrev_b32 v1, 4, v0')
    for r in range(4,8): e('v_mov_b32 v%d, 0'%r)
    for i in range(FL_BYTES//4096):
        e('s_mov_b32 s%d, 0x%x'%(B.sT0,WS_FL+i*4096)); e('buffer_store_dwordx4 v[4:7], v1, s[%d:%d], s%d offen sc1'%(B.S_WS,B.S_WS+3,B.sT0))
    e('s_waitcnt vmcnt(0)'); e('s_barrier')
    e('s_cmp_lg_u32 s%d, 0'%B.sW); e('s_cbranch_scc1 L_noinit')
    B.dbg_add(a,DBG_FRDY)
    a.label('L_noinit')
    e('s_cmp_ge_u32 s%d, 192'%sB_); e('s_cbranch_scc1 L_moe')
    e('s_mov_b32 s%d, 0'%B.sI1); e('s_mov_b32 s%d, s%d'%(B.sI0,sB_))
    for k in range(3):
        e('s_cmp_ge_u32 s%d, 48'%B.sI0); e('s_cselect_b32 s%d, 48, 0'%B.sT0); e('s_cselect_b32 s%d, 1, 0'%B.sT1)
        e('s_sub_u32 s%d, s%d, s%d'%(B.sI0,B.sI0,B.sT0)); e('s_add_u32 s%d, s%d, s%d'%(B.sI1,B.sI1,B.sT1))
    if SL['sld']:
        e('s_cmp_ge_u32 s%d, 32'%B.sI0); e('s_cselect_b32 s%d, 1, 0'%B.sT0)
        e('s_cmp_ge_u32 s%d, %d'%(B.sI1,SL.get('slr',4))); e('s_cselect_b32 s%d, 1, s%d'%(B.sT0,B.sT0))
        e('s_cmp_eq_u32 s%d, 0'%B.sT0); e('s_cbranch_scc1 L_nohold')
        e('s_memrealtime s[100:101]'); e('s_waitcnt lgkmcnt(0)'); e('s_add_u32 s%d, s100, %d'%(B.sT1,SL['sld']))
        a.label('L_hold')
        e('s_sleep 8'); e('s_memrealtime s[100:101]'); e('s_waitcnt lgkmcnt(0)')
        e('s_sub_u32 s%d, s100, s%d'%(B.sT0,B.sT1)); e('s_cmp_lt_i32 s%d, 0'%B.sT0); e('s_cbranch_scc1 L_hold')
        a.label('L_nohold')
    brt(1)
    B.gen_gemm(a,'g',flags=True)
    brt(2)
    e('s_cmp_lt_u32 s%d, 160'%sB_); e('s_cbranch_scc1 L_oproj')
    e('s_sub_u32 s%d, s%d, 128'%(sB_,sB_))
    e('s_branch L_attn')
    a.label('L_moe')
    e('s_sub_u32 s%d, s%d, 192'%(sB_,sB_))
    if 'wopre' in opt:
        e('s_mov_b32 s%d, s%d'%(B.sI0,sB_))
        B.wo_convert(a,'wc')
    ldp(a,B.sE,64); ldp(a,B.sG,96); e('s_waitcnt lgkmcnt(0)')
    e('s_lshl_b32 s%d, s%d, 2'%(B.sI0,sB_)); e('s_add_u32 s%d, s%d, s%d'%(B.sI0,B.sI0,B.sW))
    B.router(a,'r')
    B.dbg_add(a,DBG_RT)
    e('s_cmp_ge_u32 s%d, 28'%sB_); e('s_cbranch_scc1 L_down')
    ldp(a,B.sE,72); ldp(a,B.sG,80); e('s_waitcnt lgkmcnt(0)')
    e('s_mov_b32 s%d, s%d'%(B.sI0,sB_))
    B.moe_up(a,'u')
    B.spin_dbg(a,'L_w_t8',DBG_T8,1,11)
    B.moe_up2(a,'u')
    B.dbg_add(a,DBG_UP)
    e('s_branch L_attn')
    a.label('L_down')
    e('s_cmp_lg_u32 s%d, 28'%sB_); e('s_cbranch_scc1 L_not8')
    e('s_cmp_lg_u32 s%d, 0'%B.sW); e('s_cbranch_scc1 L_not8')
    B.spin_dbg(a,'L_w_rt',DBG_RT,128,12)
    e('v_mov_b32 v11, 0')
    B.top8(a,'t')
    B.dbg_add(a,DBG_T8)
    a.label('L_not8')
    ldp(a,B.sE,88); e('s_waitcnt lgkmcnt(0)')
    e('s_sub_u32 s%d, s%d, 28'%(B.sI0,sB_)); e('s_lshl_b32 s%d, s%d, 1'%(B.sI0,B.sI0))
    e('s_mov_b32 s%d, 0'%B.sI1)
    a.label('L_down_loop')
    B.moe_down(a,'d')
    B.spin_dbg(a,'L_w_up',DBG_UP,112,13)
    B.moe_down2(a,'d')
    e('s_add_u32 s%d, s%d, 1'%(B.sI0,B.sI0)); e('s_add_u32 s%d, s%d, 1'%(B.sI1,B.sI1)); e('s_cmp_lt_u32 s%d, 2'%B.sI1)
    a.fence(); e('s_cbranch_scc1 L_down_loop')
    B.dbg_add(a,DBG_DN)
    brt(3)
    a.label('L_attn')
    a.fence()
    e('s_waitcnt vmcnt(0) lgkmcnt(0)')
    e('s_barrier')
    B.attn_setup(a,0)
    B.spin_dbg(a,'L_a_frdy',DBG_FRDY,1,14)
    e('s_lshl_b32 s%d, s%d, 2'%(B.sT0,sB_)); e('s_add_u32 s%d, s%d, s%d'%(B.sT0,B.sT0,B.sW))
    e('s_and_b32 s%d, s%d, 31'%(B.sI1,B.sT0)); e('s_lshr_b32 s%d, s%d, 5'%(B.sI0,B.sT0))
    e('v_min_u32 v10, 5, v1'); e('v_lshlrev_b32 v10, 4, v10'); e('v_mov_b32 v11, 0'); e('v_mov_b32 v12, 1')
    a.label('L_attn_loop')
    e('s_lshl_b32 s%d, s%d, 7'%(B.sD,B.sI1)); e('s_and_b32 s%d, s%d, 3'%(B.sT0,B.sI0)); e('s_lshl_b32 s%d, s%d, 2'%(B.sT0,B.sT0))
    e('s_add_u32 s%d, s%d, s%d'%(B.sD,B.sD,B.sT0)); e('s_add_u32 s%d, s%d, 0x%x'%(B.sD,B.sD,FL_G))
    e('s_lshr_b32 s%d, s%d, 2'%(B.sE,B.sI0))
    B.spin(a,'L_a_wg','buffer_load_dword v13, v10, s[%d:%d], s%d offen sc1'%(B.S_WS,B.S_WS+3,B.sD),'v_cmp_ge_u32 vcc, s%d, v13'%B.sE,15)
    B.attn_loads_x(a)
    e('s_lshl_b32 s%d, s%d, 8'%(B.sD,B.sI1)); e('s_add_u32 s%d, s%d, 0x%x'%(B.sD,B.sD,FL_REC))
    B.spin(a,'L_a_wr','buffer_load_dword v13, v11, s[%d:%d], s%d offen sc1'%(B.S_WS,B.S_WS+3,B.sD),'v_cmp_ge_u32 vcc, s%d, v13'%B.sI0,16,sleep=SL['sla'])
    B.attn_item(a)
    e('s_lshl_b32 s%d, s%d, 7'%(B.sD,B.sI0)); e('s_lshl_b32 s%d, s%d, 2'%(B.sT0,B.sI1)); e('s_add_u32 s%d, s%d, s%d'%(B.sD,B.sD,B.sT0)); e('s_add_u32 s%d, s%d, 0x%x'%(B.sD,B.sD,FL_O))
    e('s_waitcnt vmcnt(0)')
    e('s_mov_b64 exec, 1'); e('buffer_store_dword v12, v11, s[%d:%d], s%d offen sc1'%(B.S_WS,B.S_WS+3,B.sD)); e('s_mov_b64 exec, -1')
    e('s_add_u32 s%d, s%d, 8'%(B.sI0,B.sI0)); e('s_cmp_lt_u32 s%d, 64'%B.sI0)
    a.fence(); e('s_cbranch_scc1 L_attn_loop')
    e('s_branch L_end')
    a.label('L_oproj')
    a.fence()
    e('s_waitcnt vmcnt(0) lgkmcnt(0)')
    e('s_and_b32 s%d, s%d, 15'%(B.sI1,sB_))
    B.oproj_setup(a)
    brt(4)
    B.spin_dbg(a,'L_o_dn',DBG_DN,16,17)
    e('s_lshr_b32 s%d, s%d, 4'%(B.sI0,sB_))
    e('v_and_b32 v14, 31, v1'); e('v_lshlrev_b32 v14, 2, v14')
    a.label('L_o_loop')
    e('s_lshl_b32 s%d, s%d, 7'%(B.sD,B.sI0)); e('s_add_u32 s%d, s%d, 0x%x'%(B.sD,B.sD,FL_O))
    B.spin(a,'L_o_w','buffer_load_dword v15, v14, s[%d:%d], s%d offen sc1'%(B.S_WS,B.S_WS+3,B.sD),'v_cmp_eq_u32 vcc, 0, v15',18,sleep=SL['slo'])
    B.oproj_item(a,'o')
    e('s_add_u32 s%d, s%d, 10'%(B.sI0,B.sI0)); e('s_cmp_lt_u32 s%d, 64'%B.sI0)
    a.fence(); e('s_cbranch_scc1 L_o_loop')
    a.label('L_end')
    e('s_waitcnt vmcnt(0)')
    brt(5)
    e('s_waitcnt vmcnt(0)')
    e('s_endpgm')
    a.label('L_babort')
    e('v_mov_b32 v16, s%d'%B.sT0); e('v_mov_b32 v17, %d'%DBG_ABORT)
    e('s_mov_b64 exec, 1')
    e('buffer_store_dword v16, v17, s[%d:%d], 0 offen sc1'%(B.S_DBG,B.S_DBG+3))
    e('s_waitcnt vmcnt(0)')
    e('s_endpgm')
    a.raw(R.kd(NAME,sgpr=102))
    return a
if __name__=='__main__':
    a=build(tuple(sys.argv[2:]))
    open(sys.argv[1],'w').write(a.text())
    print('nops',a.nops,'lines',len(a.out))
```

```python
from asmdsl import *
from layout import *
import math, struct
def f32bits(x): return struct.unpack('<I',struct.pack('<f',x))[0]

S_WS=8; S_DBG=12; S_W=16; S_M0=20
sH=24; sW=25; sS=26; sTAG=27; sRA=28; sRB=29; sRC=30; sT0=31
sP1W=32; sP1R=34
sKX=40; sVX=41; sKM=42; sKM0=44; sT1=45; sT2=46; sT3=47
sC=48; sNC=50; sEXQ=52; sEXM=54
sPWQ=56; sPWK=58; sPWV=60; sPWO=62
sPROG=64; sBUD=65; sFLG=66; sNEED=67
sPN=92
sEX0=4
sPAR=6
FIL=0
vL16=1; vM2R=2; vQKW=3; vQKR=4; vKX=5; vOW=6; vWO0=7; vWO1=8; vP1W=9; vP1R=10; vM2W=11; vIDX=13; vONE=12
vVM1=14
MQ=16; MF=24; F=24; ACC=56; VACC=72; KX=80; VX=112; PX=120; PM=124; VM0=126
WV=128

def wreg(x,t,ks):
    if x<2: return ar(((x*2+t)*8+ks)*8,8)
    return vr(WV+(t*8+ks)*8,8)
def wreg2(x,t,ks,p):
    if x<2: return ar(((x*2+t)*8+ks)*8+p,2)
    return vr(WV+(t*8+ks)*8+p,2)

def gen_rec(a, nsteps=64, opt=()):
    e=a.e
    SC='' if 'plainpub' in opt else ' sc1'
    P=dict(p2=46,p1=46,r1=40,r2=40,w2=2,mf=6,d1=20,d2=20,ds=10,f1=8,f2=8,g1=30,g2=30)
    STL=None
    for o in opt:
        if o.startswith('st='): STL=[int(x) for x in o[3:].split(',')]+[15]
        elif '=' in o: k_,v_=o.split('='); P[k_]=int(v_)
    lg=Cnt(a,'lgkmcnt',15); vm=Cnt(a,'vmcnt',63)
    l,n,g,t0,t1,t2=16,17,18,19,20,21
    e('v_and_b32 v%d, 63, v0'%l); e('v_and_b32 v%d, 15, v0'%n); e('v_bfe_u32 v%d, v0, 4, 2'%g)
    e('v_lshlrev_b32 v%d, 4, v%d'%(vL16,l))
    e('s_lshl_b32 s%d, s%d, 11'%(sT0,sW)); e('v_add_u32 v%d, s%d, v%d'%(vM2R,sT0,vL16))
    e('v_lshrrev_b32 v%d, 2, v%d'%(t0,n)); e('v_xor_b32 v%d, v%d, v%d'%(t0,t0,g)); e('v_lshlrev_b32 v%d, 3, v%d'%(t0,t0))
    e('v_lshl_add_u32 v%d, v%d, 5, v%d'%(t0,n,t0))
    e('s_lshl_b32 s%d, s%d, 10'%(sT0,sW)); e('s_add_u32 s%d, s%d, %d'%(sT0,sT0,L_QK)); e('v_add_u32 v%d, s%d, v%d'%(vQKW,sT0,t0))
    e('v_lshrrev_b32 v%d, 2, v%d'%(t0,n)); e('v_lshl_add_u32 v%d, v%d, 2, v%d'%(t0,g,t0)); e('v_lshlrev_b32 v%d, 5, v%d'%(t0,t0))
    e('v_and_b32 v%d, 3, v%d'%(t1,n)); e('v_xor_b32 v%d, v%d, v%d'%(t1,t1,g)); e('v_lshl_add_u32 v%d, v%d, 3, v%d'%(t0,t1,t0))
    e('v_add_u32 v%d, %d, v%d'%(vQKR,L_QK,t0))
    e('v_add_u32 v%d, %d, v%d'%(vKX,L_KX,vL16))
    e('v_and_b32 v%d, 13, v%d'%(t0,n)); e('v_lshl_add_u32 v%d, v%d, 4, v%d'%(t0,g,t0)); e('v_lshlrev_b32 v%d, 4, v%d'%(t0,t0))
    e('s_lshr_b32 s%d, s%d, 1'%(sT0,sW)); e('s_lshl_b32 s%d, s%d, 10'%(sT0,sT0)); e('s_and_b32 s%d, s%d, 1'%(sT1,sW)); e('s_lshl_b32 s%d, s%d, 5'%(sT1,sT1))
    e('s_add_u32 s%d, s%d, s%d'%(sT0,sT0,sT1)); e('s_add_u32 s%d, s%d, %d'%(sT0,sT0,L_O)); e('v_add_u32 v%d, s%d, v%d'%(vOW,sT0,t0))
    e('s_lshl_b32 s%d, s%d, 14'%(sT0,sW)); e('s_add_u32 s%d, s%d, %d'%(sT0,sT0,L_WO))
    e('v_add_u32 v%d, s%d, v%d'%(vWO0,sT0,vL16)); e('v_add_u32 v%d, 0x10000, v%d'%(vWO1,vWO0))
    e('v_lshrrev_b32 v%d, 2, v%d'%(t0,n)); e('v_lshlrev_b32 v%d, 13, v%d'%(t0,t0)); e('v_lshl_add_u32 v%d, v%d, 6, v%d'%(t0,g,t0))
    e('v_and_b32 v%d, 3, v%d'%(t1,n)); e('v_lshl_add_u32 v%d, v%d, 4, v%d'%(t0,t1,t0))
    e('s_lshl_b32 s%d, s%d, 15'%(sT0,sW)); e('s_lshl_b32 s%d, s%d, 8'%(sT1,sH)); e('s_add_u32 s%d, s%d, s%d'%(sT0,sT0,sT1))
    e('v_add_u32 v%d, s%d, v%d'%(vP1W,sT0,t0))
    e('v_lshrrev_b32 v%d, 3, v%d'%(t0,l)); e('v_lshlrev_b32 v%d, 8, v%d'%(t0,t0)); e('v_and_b32 v%d, 7, v%d'%(t1,l)); e('v_lshl_add_u32 v%d, v%d, 4, v%d'%(t0,t1,t0))
    e('s_and_b32 s%d, s%d, 1'%(sT0,sW)); e('s_lshl_b32 s%d, s%d, 7'%(sT0,sT0)); e('v_add_u32 v%d, s%d, v%d'%(vP1R,sT0,t0))
    e('v_and_b32 v%d, 3, v%d'%(t0,l)); e('v_lshlrev_b32 v%d, 2, v%d'%(t0,t0)); e('v_lshl_add_u32 v%d, v%d, 5, v%d'%(t0,g,t0))
    e('v_bfe_u32 v%d, v%d, 2, 1'%(t1,l)); e('v_lshl_add_u32 v%d, v%d, 6, v%d'%(t0,t1,t0))
    e('v_bfe_u32 v%d, v%d, 3, 1'%(t1,l)); e('v_lshl_add_u32 v%d, v%d, 4, v%d'%(t0,t1,t0))
    e('s_lshl_b32 s%d, s%d, 8'%(sT0,sH)); e('s_and_b32 s%d, s%d, 1'%(sT1,sW)); e('s_lshl_b32 s%d, s%d, 7'%(sT1,sT1)); e('s_add_u32 s%d, s%d, s%d'%(sT0,sT0,sT1))
    e('v_add_u32 v%d, s%d, v%d'%(vM2W,sT0,t0))
    e('s_mov_b32 s%d, 0xff00ff00'%sPAR); e('s_mov_b32 s%d, 0xff00ff00'%(sPAR+1))
    e('v_and_b32 v%d, 2, v%d'%(t0,n)); e('v_cmp_eq_u32 vcc, 0, v%d'%t0)
    e('v_mov_b32 v%d, 0xeeeeeeee'%t0); e('v_mov_b32 v%d, 0x44444444'%t1); e('v_cndmask_b32 v%d, v%d, v%d, vcc'%(vIDX,t0,t1))
    e('v_mov_b32 v15, 0')
    c=(128**-0.5)*math.log2(math.e)
    e('s_mov_b32 s%d, 0x%08x'%(sC,f32bits(c))); e('s_mov_b32 s%d, 0x%08x'%(sC+1,f32bits(c))); e('s_mov_b32 s%d, 0x%08x'%(sNC,f32bits(-c)))
    e('s_mov_b32 s%d, 0xcccccccc'%sEXQ); e('s_mov_b32 s%d, 0xcccccccc'%(sEXQ+1))
    e('s_cmp_eq_u32 s%d, 2'%sW); e('s_cselect_b64 s[%d:%d], 1, 0'%(sEX0,sEX0+1))
    e('s_cmp_lt_u32 s%d, 2'%sW); e('s_cselect_b32 s%d, -1, 0'%sEXM); e('s_mov_b32 s%d, 0'%(sEXM+1))
    for q in range(2): e('s_mov_b32 s%d, 0x%x'%(sP1W+q,WS_P1+q*131072))
    e('s_lshl_b32 s%d, s%d, 13'%(sT0,sH))
    for i in range(2): e('s_add_u32 s%d, s%d, 0x%x'%(sP1R+i,sT0,WS_P1+i*4096))
    e('s_mov_b32 s%d, 0x%x'%(sRA,WS_M2)); e('s_mov_b32 s%d, 0x%x'%(sRB,WS_M2+8192)); e('s_mov_b32 s%d, 0x%x'%(sRC,WS_M2+16384))
    e('s_lshl_b32 s%d, s%d, 13'%(sT0,sH)); e('s_add_u32 s%d, s%d, 0x%x'%(sKX,sT0,WS_K)); e('s_add_u32 s%d, s%d, 0x%x'%(sVX,sT0,WS_V))
    e('s_lshl_b32 s%d, s%d, 12'%(sT0,sH)); e('s_lshl_b32 s%d, s%d, 10'%(sT1,sW)); e('s_add_u32 s%d, s%d, s%d'%(sT0,sT0,sT1)); e('s_add_u32 s%d, s%d, 0x%x'%(sKM,sT0,WS_KM))
    e('s_lshl_b32 s%d, s%d, 11'%(sT0,sW)); e('s_add_u32 s%d, s%d, %d'%(sKM0,sT0,L_KX))
    FUSED='fused' in opt
    e('s_lshl_b32 s%d, s%d, 8'%(sT0,sH)); e('s_add_u32 s%d, s%d, 0x%x'%(sPROG,sT0,FL_REC))
    e('s_lshl_b32 s%d, s%d, 7'%(sT0,sH)); e('s_add_u32 s%d, s%d, 0x%x'%(sFLG,sT0,FL_G))
    e('s_mov_b32 s%d, 0'%sS); e('s_mov_b32 s%d, 1'%sTAG); e('s_mov_b32 s%d, 400000'%sBUD)
    ST='stamps' in opt
    sTM=68; sPREV=70; sACC0=72; NST=16
    if ST:
        for i in range(NST): e('s_mov_b32 s%d, 0'%(sACC0+i))
        e('s_mov_b32 s%d, 0'%sPREV)
    def stamp(i):
        if not ST: return
        if STL is not None and i not in STL: return
        e('s_memtime s[%d:%d]'%(sTM,sTM+1)); e('s_waitcnt lgkmcnt(0)'); lg.q=[]
        e('s_sub_u32 s%d, s%d, s%d'%(sPREV+1,sTM,sPREV)); e('s_add_u32 s%d, s%d, s%d'%(sACC0+i,sACC0+i,sPREV+1)); e('s_mov_b32 s%d, s%d'%(sPREV,sTM))
    def rt(i):
        if 'prof' not in opt: return
        e('s_memrealtime s[%d:%d]'%(sTM,sTM+1)); e('s_waitcnt lgkmcnt(0)'); lg.q=[]
        e('v_mov_b32 v22, s%d'%sTM); e('v_mov_b32 v23, 0')
        e('s_lshl_b32 s%d, s%d, 5'%(sTM+2,sH)); e('s_add_u32 s%d, s%d, 0x%x'%(sTM+2,sTM+2,WS_MISC+0x8000+4*i))
        e('s_mov_b64 exec, 1'); e('buffer_store_dword v22, v23, s[%d:%d], s%d offen'%(S_WS,S_WS+3,sTM+2)); e('s_mov_b64 exec, -1')
        e('s_waitcnt vmcnt(0)'); vm.q=[]
    rt(0)
    def budget(lbl,code):
        e('s_sub_u32 s%d, s%d, 1'%(sBUD,sBUD)); e('s_cmp_eq_u32 s%d, 0'%sBUD); e('s_cbranch_scc0 %s'%lbl)
        e('s_mov_b32 s%d, %d'%(sT0,code)); e('s_branch L_abort')

    L_SEL=L_MISC+1024
    e('v_and_b32 v%d, 1, v%d'%(t0,n)); e('v_cmp_eq_u32 vcc, 0, v%d'%t0)
    e('v_mov_b32 v%d, 0x3f800000'%t0); e('v_mov_b32 v%d, 0x3f80'%t1); e('v_cndmask_b32 v%d, v%d, v%d, vcc'%(t0,t0,t1))
    e('v_lshrrev_b32 v%d, 1, v%d'%(t1,n))
    for i in range(4):
        e('v_cmp_eq_u32 vcc, %d, v%d'%(i,t1)); e('v_cndmask_b32 v%d, v15, v%d, vcc'%(24+i,t0))
    e('ds_write_b128 v%d, v[24:27] offset:%d'%(vL16,L_SEL))
    e('s_waitcnt lgkmcnt(0)')
    for r in range(4): e('v_mov_b32 v%d, 0'%(24+r))
    e('v_mov_b32 v28, -1')
    e('s_lshl_b32 s%d, s%d, 11'%(sT0,sW)); e('s_add_u32 s%d, s%d, s%d'%(sT0,sT0,sP1R))
    for i in range(2): e('buffer_store_dwordx4 v[24:27], v%d, s[%d:%d], s%d offen offset:%d'%(vL16,S_WS,S_WS+3,sT0,i*1024))
    e('s_mov_b64 exec, s[%d:%d]'%(sEXM,sEXM+1))
    for sl in (sRA,sRB,sRC):
        e('buffer_store_dword v28, v%d, s[%d:%d], s%d offen'%(vM2W,S_WS,S_WS+3,sl))
    e('s_mov_b64 exec, -1')
    e('s_waitcnt vmcnt(0)')
    e('s_barrier')
    e('v_cmp_eq_u32 vcc, 0, v0')
    e('s_and_saveexec_b64 s[%d:%d], vcc'%(sT2,sT3))
    e('v_mov_b32 v24, 1'); e('v_mov_b32 v25, %d'%DBG_INIT)
    e('buffer_atomic_add v24, v25, s[%d:%d], 0 offen'%(S_DBG,S_DBG+3))
    e('s_mov_b64 exec, -1')
    dv=28
    e('v_lshrrev_b32 v%d, 1, v%d'%(t0,g)); e('v_lshlrev_b32 v%d, 1, v%d'%(t0,t0)); e('v_xor_b32 v%d, v%d, v%d'%(t0,t0,n))
    e('v_lshlrev_b32 v%d, 4, v%d'%(t0,t0)); e('v_lshl_add_u32 v%d, v%d, 13, v%d'%(t0,g,t0))
    e('s_lshl_b32 s%d, s%d, 8'%(sT0,sH)); e('v_add_u32 v%d, s%d, v%d'%(dv,sT0,t0))
    for k in range(1,4): e('v_xor_b32 v%d, %d, v%d'%(dv+k,k<<6,dv))
    r_,cc,row0,Fz=32,33,34,35
    tb=36
    e('v_lshrrev_b32 v%d, 2, v%d'%(r_,n)); e('v_and_b32 v%d, 3, v%d'%(cc,n))
    e('v_lshrrev_b32 v%d, 1, v%d'%(t0,g)); e('v_lshlrev_b32 v%d, 4, v%d'%(row0,t0))
    e('v_and_b32 v%d, 1, v%d'%(t0,g)); e('v_lshl_add_u32 v%d, v%d, 1, v%d'%(row0,t0,row0)); e('v_lshl_or_b32 v%d, v%d, 1, v%d'%(Fz,r_,t0))
    e('v_lshl_add_u32 v%d, v%d, 2, v%d'%(row0,r_,row0))
    e('v_lshrrev_b32 v%d, 1, v%d'%(t0,cc)); e('s_lshl_b32 s%d, s%d, 2'%(sT0,sW)); e('v_add_u32 v%d, s%d, v%d'%(t0,sT0,t0))
    e('v_lshlrev_b32 v%d, 1, v%d'%(t1,Fz)); e('v_xor_b32 v%d, v%d, v%d'%(t0,t0,t1)); e('v_lshlrev_b32 v%d, 4, v%d'%(t0,t0))
    e('v_lshl_add_u32 v%d, v%d, 8, v%d'%(t0,row0,t0))
    e('v_and_b32 v%d, 1, v%d'%(t1,cc)); e('v_lshl_add_u32 v%d, v%d, 3, v%d'%(t0,t1,t0))
    e('v_add_u32 v%d, %d, v%d'%(tb,L_WO,t0)); e('v_xor_b32 v%d, 32, v%d'%(tb+1,tb))
    e('v_add_u32 v%d, 0x10000, v%d'%(tb+2,tb)); e('v_add_u32 v%d, 0x10000, v%d'%(tb+3,tb+1))
    wo_b=40
    e('v_and_b32 v%d, 1, v%d'%(t0,g)); e('v_lshlrev_b32 v%d, 4, v%d'%(row0,t0)); e('v_lshlrev_b32 v%d, 3, v%d'%(Fz,t0))
    e('v_lshrrev_b32 v%d, 1, v%d'%(t0,g)); e('v_lshl_add_u32 v%d, v%d, 2, v%d'%(row0,t0,row0))
    e('v_and_b32 v%d, 1, v%d'%(t0,r_)); e('v_add_u32 v%d, v%d, v%d'%(row0,row0,t0)); e('v_or_b32 v%d, v%d, v%d'%(Fz,Fz,t0))
    e('v_lshrrev_b32 v%d, 1, v%d'%(t0,r_)); e('v_lshl_add_u32 v%d, v%d, 5, v%d'%(row0,t0,row0))
    e('v_lshlrev_b32 v%d, 1, v%d'%(t0,cc)); e('s_lshl_b32 s%d, s%d, 3'%(sT0,sW)); e('v_add_u32 v%d, s%d, v%d'%(t0,sT0,t0))
    e('v_xor_b32 v%d, v%d, v%d'%(t0,t0,Fz)); e('v_lshlrev_b32 v%d, 4, v%d'%(t0,t0))
    e('v_lshl_add_u32 v%d, v%d, 10, v%d'%(t0,row0,t0))
    e('v_add_u32 v%d, %d, v%d'%(wo_b,L_WO,t0)); e('v_xor_b32 v%d, 16, v%d'%(wo_b+1,wo_b))
    e('v_add_u32 v%d, 0x10000, v%d'%(wo_b+2,wo_b)); e('v_add_u32 v%d, 0x10000, v%d'%(wo_b+3,wo_b+1))
    def set_w(ptr,nbytes):
        e('s_mov_b32 s%d, s%d'%(S_W,ptr)); e('s_and_b32 s%d, s%d, 0xffff'%(S_W+1,ptr+1))
        e('s_mov_b32 s%d, 0x%x'%(S_W+2,nbytes)); e('s_mov_b32 s%d, 0x20000'%(S_W+3))
    def dma(nidx):
        area=nidx&1
        if nidx<6:
            x=nidx>>1; half=nidx&1
            set_w((sPWQ,sPWK,sPWV)[x],4*MB)
            e('s_lshl_b32 s%d, s%d, 19'%(sT0,sW)); e('s_add_u32 s%d, s%d, 0x%x'%(sT0,sT0,half*256*8192))
            e('s_lshl_b32 s%d, s%d, 14'%(sT1,sW)); e('s_add_u32 s%d, s%d, 0x%x'%(sT1,sT1,L_WO+area*65536))
            for i in range(16):
                e('s_mov_b32 m0, s%d'%sT1)
                e('buffer_load_dwordx4 v%d, s[%d:%d], s%d offen lds'%(dv+(i&3),S_W,S_W+3,sT0)); vm.issue(('dma',nidx))
                e('s_add_u32 s%d, s%d, 0x8000'%(sT0,sT0)); e('s_add_u32 s%d, s%d, 0x400'%(sT1,sT1))
        else:
            half=nidx&1
            set_w(sPWO,4*MB)
            e('s_lshl_b32 s%d, s%d, 17'%(sT0,sH)); e('s_lshl_b32 s%d, s%d, 14'%(sT1,sW)); e('s_add_u32 s%d, s%d, s%d'%(sT0,sT0,sT1))
            e('s_add_u32 s%d, s%d, 0x%x'%(sT0,sT0,half*65536)); e('s_add_u32 s%d, s%d, 0x%x'%(sT1,sT1,L_WO+area*65536))
            e('s_and_b32 s%d, s%d, 1'%(sT2,sW)); e('s_lshl_b32 s%d, s%d, 7'%(sT2,sT2))
            e('v_xor_b32 v44, s%d, v%d'%(sT2,vL16)); e('v_xor_b32 v45, 16, v44')
            for i in range(16):
                e('s_mov_b32 m0, s%d'%sT1)
                e('buffer_load_dwordx4 v%d, s[%d:%d], s%d offen lds'%(44+(i&1),S_W,S_W+3,sT0)); vm.issue(('dma',nidx))
                e('s_add_u32 s%d, s%d, 0x400'%(sT0,sT0)); e('s_add_u32 s%d, s%d, 0x400'%(sT1,sT1))
    vm.issue('atom')
    dma(0); dma(1)
    for nidx in range(8):
        area=nidx&1
        vm.wait(('dma',nidx))
        if nidx==7:
            e('v_mov_b32 v46, %d'%DBG_INIT); e('v_and_b32 v47, 0x30, v%d'%vL16)
            e('buffer_load_dword v48, v46, s[%d:%d], 0 offen sc1'%(S_DBG,S_DBG+3))
            if FUSED:
                e('buffer_load_dword v49, v46, s[%d:%d], 0 offen offset:%d sc1'%(S_DBG,S_DBG+3,DBG_FRDY-DBG_INIT))
                e('s_waitcnt vmcnt(0)')
                e('buffer_load_dword v50, v47, s[%d:%d], s%d offen sc1'%(S_WS,S_WS+3,sFLG))
        e('s_barrier')
        cnt=0
        if nidx<6:
            x=nidx>>1; half=nidx&1
            for t in range(2):
                for ksl in range(4):
                    ks=half*4+ksl
                    for p in range(0,8,2):
                        off=(64*ksl+32*(p>>2)+((p>>1)&1))*256
                        e('ds_read_b64_tr_b16 %s, v%d offset:%d'%(wreg2(x,t,ks,p),tb+2*area+t,off))
                        cnt+=1
                        if cnt%12==0: e('s_waitcnt lgkmcnt(4)')
            e('s_waitcnt lgkmcnt(0)'); e('s_barrier')
            dma(nidx+2)
        else:
            for tt in range(8):
                qq=tt>>2
                for p in range(0,8,2):
                    off=(8*(p>>2)+2*((p>>1)&1))*1024 + 32*qq*16 + 8*(tt&1)
                    e('ds_read_b64_tr_b16 %s, v%d offset:%d'%(vr(64+tt*8+p,2),wo_b+2*area+((tt>>1)&1),off))
                    cnt+=1
                    if cnt%12==0: e('s_waitcnt lgkmcnt(4)')
            e('s_waitcnt lgkmcnt(0)'); e('s_barrier')
            for tt in range(8):
                for hf in range(2):
                    e('ds_write_b128 v%d, %s offset:%d'%((vWO0,vWO1)[area],vr(64+tt*8+4*hf,4),tt*2048+hf*1024))
                if tt%4==3: e('s_waitcnt lgkmcnt(0)')
    e('v_mov_b32 v%d, 0'%(PM+1)); e('v_mov_b32 v%d, 0'%(VM0+1))
    rt(1)
    if FUSED:
        e('s_waitcnt vmcnt(0)')
        e('v_cmp_eq_u32 vcc, 0, v49'); e('v_cmp_gt_u32 s[%d:%d], 2, v50'%(sT2,sT3)); e('s_nop 3'); e('s_or_b64 vcc, vcc, s[%d:%d]'%(sT2,sT3))
        e('s_cbranch_vccz L_kv0_ok')
        e('v_mov_b32 v25, %d'%DBG_FRDY)
        a.label('L_frdy')
        e('buffer_load_dword v26, v25, s[%d:%d], 0 offen sc1'%(S_DBG,S_DBG+3)); e('s_waitcnt vmcnt(0)')
        e('v_cmp_eq_u32 vcc, 0, v26'); e('s_cbranch_vccz L_frdy_ok'); e('s_sleep 2')
        budget('L_frdy',4)
        a.label('L_frdy_ok')
        e('v_and_b32 v25, 0x30, v%d'%vL16)
        a.label('L_kv0')
        e('buffer_load_dword v26, v25, s[%d:%d], s%d offen sc1'%(S_WS,S_WS+3,sFLG)); e('s_waitcnt vmcnt(0)')
        e('v_cmp_gt_u32 vcc, 2, v26'); e('s_cbranch_vccz L_kv0_ok'); e('s_sleep 2')
        budget('L_kv0',5)
        a.label('L_kv0_ok')
    e('s_mov_b32 m0, s%d'%sKM0)
    e('buffer_load_dwordx4 v%d, s[%d:%d], s%d offen sc1 lds'%(vM2R,S_WS,S_WS+3,sKX))
    e('buffer_load_dwordx4 v%d, s[%d:%d], s%d offen offset:1024 sc1 lds'%(vM2R,S_WS,S_WS+3,sKX))
    e('s_xor_b32 s%d, s%d, 8192'%(sKM0,sKM0)); e('s_add_u32 s%d, s%d, 0x40000'%(sKX,sKX))
    e('v_lshrrev_b32 v%d, 2, v%d'%(t0,n)); e('v_lshlrev_b32 v%d, 11, v%d'%(t0,t0))
    e('v_and_b32 v%d, 1, v%d'%(t1,n)); e('v_lshl_add_u32 v%d, v%d, 10, v%d'%(t0,t1,t0)); e('v_lshl_add_u32 v%d, v%d, 5, v%d'%(t0,g,t0))
    e('v_bfe_u32 v%d, v%d, 1, 1'%(t1,n)); e('v_lshl_add_u32 v%d, v%d, 4, v%d'%(24,t1,t0))
    e('s_lshl_b32 s%d, s%d, 8'%(sT0,sW))
    e('buffer_load_dwordx4 v[32:35], v24, s[%d:%d], s%d offen'%(S_M0,S_M0+3,sT0))
    e('buffer_load_dwordx4 v[36:39], v24, s[%d:%d], s%d offen offset:128'%(S_M0,S_M0+3,sT0))
    for r in range(ACC,ACC+24,2): e('v_mov_b64 %s, 0'%vr(r,2))
    e('v_mov_b32 v25, %d'%DBG_INIT)
    e('s_waitcnt vmcnt(0)')
    e('v_cmp_gt_u32 vcc, 32, v48')
    e('s_cbranch_vccz L_init_ok')
    a.label('L_initwait')
    e('buffer_load_dword v26, v25, s[%d:%d], 0 offen sc1'%(S_DBG,S_DBG+3))
    e('s_waitcnt vmcnt(0)')
    e('v_cmp_gt_u32 vcc, 32, v26')
    e('s_cbranch_vccz L_init_ok')
    budget('L_initwait',1)
    a.label('L_init_ok')
    e('s_mov_b32 s%d, 0x05040100'%sT0); e('s_mov_b32 s%d, 0x07060302'%sT1)
    for k in range(2):
        s_=32+4*k; d_=MQ+4*k
        e('v_perm_b32 v%d, v%d, v%d, s%d'%(d_,s_+2,s_,sT0)); e('v_perm_b32 v%d, v%d, v%d, s%d'%(d_+1,s_+2,s_,sT1))
        e('v_perm_b32 v%d, v%d, v%d, s%d'%(d_+2,s_+3,s_+1,sT0)); e('v_perm_b32 v%d, v%d, v%d, s%d'%(d_+3,s_+3,s_+1,sT1))
    e('ds_write_b128 v%d, %s offset:%d'%(vM2R,vr(MQ,4),L_MEM)); e('ds_write_b128 v%d, %s offset:%d'%(vM2R,vr(MQ+4,4),L_MEM+1024))
    for r in range(0,8,2): e('v_mov_b64 %s, %s'%(vr(KX+24+r,2),vr(MQ+r,2)))
    e('s_waitcnt lgkmcnt(0)')
    e('s_mov_b32 m0, s%d'%sKM0)
    e('s_mov_b32 s%d, 1'%sNEED)
    rt(2)
    stamp(15)
    e('s_branch L_have_mem')
    vm.reset(); lg.reset()

    def slowpath():
        a.label('L_sm_slow')
        e('s_waitcnt lgkmcnt(0)')
        for f in range(8): e('ds_read_b128 %s, v%d offset:%d'%(vr(KX+4*f,4),vKX,f*1024))
        FR2=[F,F+4,F+8,F+12]
        e('s_waitcnt lgkmcnt(0)')
        for c_ in range(4):
            e('ds_read_b64_tr_b16 %s, v%d offset:%d'%(vr(FR2[c_],2),vQKR,1024*c_))
            e('ds_read_b64_tr_b16 %s, v%d offset:%d'%(vr(FR2[c_]+2,2),vQKR,1024*c_+512))
        e('s_waitcnt lgkmcnt(0)')
        Sm,Sx0,Sx1=ACC,ACC+4,ACC+8
        for acc,Af in ((Sx0,lambda c:vr(KX+4*c,4)),(Sx1,lambda c:vr(KX+16+4*c,4)),(Sm,lambda c:vr(FR2[c],4))):
            for c_ in range(4):
                e('v_mfma_f32_16x16x32_bf16 %s, %s, %s, %s'%(vr(acc,4),Af(c_),vr(FR2[c_],4),'0' if c_==0 else vr(acc,4)))
        vals=[Sx0+i for i in range(4)]+[Sx1+i for i in range(4)]+[Sm,Sm+1]
        m,m2=PX,PX+1
        e('v_max_f32 v%d, v%d, v%d'%(m,vals[0],vals[1]))
        for i in range(2,10,2): e('v_max3_f32 v%d, v%d, v%d, v%d'%(m,m,vals[i],vals[i+1]))
        e('v_mov_b32 v%d, v%d'%(m2,m)); e('v_permlane32_swap_b32 v%d, v%d'%(m,m2)); e('v_max_f32 v%d, v%d, v%d'%(m,m,m2))
        e('v_mov_b32 v%d, v%d'%(m2,m)); e('v_permlane16_swap_b32 v%d, v%d'%(m,m2)); e('v_max_f32 v%d, v%d, v%d'%(m,m,m2))
        for v in vals: e('v_sub_f32 v%d, v%d, v%d'%(v,v,m))
        for v in vals: e('v_exp_f32 v%d, v%d'%(v,v))
        for i in range(4): e('v_cvt_pk_bf16_f32 v%d, v%d, v%d'%(MQ+4+i,vals[2*i],vals[2*i+1]))
        e('v_cvt_pk_bf16_f32 v%d, v%d, v%d'%(PM,Sm,Sm+1))
        O=MF+16
        e('v_mfma_f32_16x16x32_bf16 %s, %s, %s, 0'%(vr(O,4),vr(VX,4),vr(MQ+4,4)))
        e('v_mfma_f32_16x16x32_bf16 %s, %s, %s, 0'%(vr(O+4,4),vr(VX+4,4),vr(MQ+4,4)))
        e('v_mfma_f32_16x16x16_bf16 %s, %s, %s, %s'%(vr(O,4),vr(VM0,2),vr(PM,2),vr(O,4)))
        e('v_mfma_f32_16x16x16_bf16 %s, %s, %s, %s'%(vr(O+4,4),vr(vVM1,2),vr(PM,2),vr(O+4,4)))
        e('v_add_f32 v%d, v%d, v%d'%(m,vals[0],vals[1]))
        for v in vals[2:]: e('v_add_f32 v%d, v%d, v%d'%(m,m,v))
        e('v_mov_b32 v%d, v%d'%(m2,m)); e('v_permlane32_swap_b32 v%d, v%d'%(m,m2)); e('v_add_f32 v%d, v%d, v%d'%(m,m,m2))
        e('v_mov_b32 v%d, v%d'%(m2,m)); e('v_permlane16_swap_b32 v%d, v%d'%(m,m2)); e('v_add_f32 v%d, v%d, v%d'%(m,m,m2))
        e('v_rcp_f32 v%d, v%d'%(m,m))
        for (i,hf) in SLOW['wsnap']:
            tt,k2=SLOW['order'][i]; b=SLOW['WB'][i%8]
            e('ds_read_b128 %s, v%d offset:%d'%(vr(b+4*hf,4),(vWO0,vWO1)[k2],tt*2048+hf*1024))
        e('s_mov_b64 vcc, 0')
        e('s_waitcnt lgkmcnt(0)')
        a.fence()
        e('s_branch L_sm_back')
    SLOW={}
    def flagprep():
        e('s_add_u32 s%d, s%d, 2'%(sT0,sS)); e('s_min_u32 s%d, s%d, 63'%(sT0,sT0))
        e('s_and_b32 s%d, s%d, 15'%(sNEED,sT0)); e('s_lshr_b32 s%d, s%d, 4'%(sT0,sT0)); e('s_lshl_b32 s%d, s%d, 2'%(sT0,sT0)); e('s_add_u32 s%d, s%d, s%d'%(sT1,sT0,sFLG))
    def fill(k):
        if 'nofill' in opt and k<=2: return
        for _ in range(k): e('v_mov_b32 v%d, v%d'%(FIL,vL16))
    a.label('L_step')
    SA,SB,SA2=KX+24,KX+16,KX+8
    def iss2(R):
        for i in range(2):
            e('buffer_load_dwordx4 %s, v%d, s[%d:%d], s%d offen offset:%d sc1'%(vr(R+4*i,4),vM2R,S_WS,S_WS+3,sRA,1024*i))
    def chk2(R,lbl):
        fill(P['f2'])
        e('s_waitcnt vmcnt(2)')
        e('ds_write_b128 v%d, %s offset:%d'%(vM2R,vr(R,4),L_MEM))
        e('v_max3_u32 v%d, v%d, v%d, v%d'%(MQ,R,R+1,R+2))
        e('v_max3_u32 v%d, v%d, v%d, v%d'%(MQ+1,R+4,R+5,R+6))
        e('ds_write_b128 v%d, %s offset:%d'%(vM2R,vr(R+4,4),L_MEM+1024))
        e('v_max3_u32 v%d, v%d, v%d, v%d'%(MQ,MQ,R+3,R+7))
        e('v_max_u32 v%d, v%d, v%d'%(MQ,MQ,MQ+1))
        e('v_cmp_eq_u32 vcc, -1, v%d'%MQ)
        fill(3)
        e('s_waitcnt lgkmcnt(0)')
        e('s_cbranch_vccz %s'%lbl)
    iss2(SA)
    fill(P['g2'])
    a.label('L_poll2')
    iss2(SB)
    chk2(SA,'L_poll2_ok')
    if ST: e('s_add_u32 s%d, s%d, 63'%(sACC0+6,sACC0+6))
    iss2(SA)
    chk2(SB,'L_poll2_okB')
    if ST: e('s_add_u32 s%d, s%d, 63'%(sACC0+6,sACC0+6))
    budget('L_poll2',2)
    a.label('L_poll2_okB')
    for r in range(0,8,2): e('v_mov_b64 %s, %s'%(vr(SA+r,2),vr(SB+r,2)))
    a.label('L_poll2_ok')
    stamp(0)
    a.label('L_have_mem')
    e('s_barrier')
    stamp(1)
    if 'tl' in P:
        e0=a.e; cnt=[0]
        def e_tl(t):
            if cnt[0]==P['tl']:
                cnt[0]+=1
                a.e=e0
                e0('s_memtime s[%d:%d]'%(sTM+20,sTM+21))
                a.tl_text=t
                a.e=e_tl
            else: cnt[0]+=1
            e0(t)
        a.e=e_tl; e=e_tl; lg.a=a;
    def compute():
        def mfread(ks):
            e('ds_read_b128 %s, v%d offset:%d'%(vr(MF+4*ks,4),vL16,L_MEM+ks*1024)); lg.issue(('mf',ks))
        def kxread(f):
            e('ds_read_b128 %s, v%d offset:%d'%(vr(KX+4*f,4),vKX,f*1024)); lg.issue(('kx',f))
        def vxl(i):
            if 'novm' in opt: vm.issue('vx'); fill(1); return
            e('buffer_load_dwordx4 %s, v%d, s[%d:%d], s%d offen offset:%d sc1'%(vr(VX+4*i,4),vM2R,S_WS,S_WS+3,sVX,1024*i)); vm.issue('vx')
        def kdma(i):
            if 'novm' in opt: fill(1); return
            e('buffer_load_dwordx4 v%d, s[%d:%d], s%d offen offset:%d sc1 lds'%(vM2R,S_WS,S_WS+3,sKX,1024*i)); vm.issue('kx')
        def prog():
            e('buffer_store_dword v%d, v15, s[%d:%d], s%d offen sc1'%(MQ+6,S_WS,S_WS+3,sPROG))
        def flagld():
            if not FUSED: fill(1); return
            e('buffer_load_dword v%d, v%d, s[%d:%d], s%d offen sc1'%(vONE,MQ+7,S_WS,S_WS+3,sT1)); vm.issue('flag')
        def kx0():
            e('s_waitcnt vmcnt(2)'); kxread(0)
        def rs1():
            e('v_mov_b32 v%d, -1'%(MQ+5))
        def rs2():
            e('s_mov_b64 exec, s[%d:%d]'%(sEXM,sEXM+1))
            e('buffer_store_dword v%d, v%d, s[%d:%d], s%d offen'%(MQ+5,vM2W,S_WS,S_WS+3,sRC)); vm.issue('rst')
            e('s_mov_b64 exec, -1')
        def pv():
            e('v_mov_b32 v%d, s%d'%(MQ+6,sS))
        def fa():
            e('v_and_b32 v%d, 0x30, v%d'%(MQ+7,vL16))
        F1=lambda:fill(1)
        import copy
        lgq0=list(lg.q); vmq0=list(vm.q); hist0=list(a.hist)
        for wv in range(1,4):
            e('s_cmp_eq_u32 s%d, %d'%(sW,wv)); e('s_cbranch_scc1 L_qk%d'%wv)
        for wv in range(4):
            if wv: a.label('L_qk%d'%wv)
            lg.q=list(lgq0); vm.q=list(vmq0); a.hist=list(hist0)
            own=[2*wv,2*wv+1]; oth=[k for k in range(8) if k not in own]
            W=lambda i:(lambda:lg.wait(('mf',oth[i])))
            R_=lambda k:(lambda:mfread(k))
            mfread(oth[0]); mfread(oth[1])
            gaps=[R_(oth[2]),R_(oth[3]),R_(oth[4]),R_(oth[5]),
                  R_(own[0]),R_(own[1]),lambda:vxl(0),W(1),
                  lambda:vxl(1),kx0,lambda:kdma(0),lambda:kxread(1),
                  lambda:kdma(1),lambda:kxread(2),lambda:kxread(3),W(5),
                  lambda:kxread(4),lambda:kxread(5),lambda:kxread(6),lambda:kxread(7),
                  pv,(prog if (FUSED and wv==2) else F1),F1,F1,F1,F1,F1]+[F1]*5
            gi=0
            for ks in own+oth:
                A=vr(SA+4*(ks&1),4) if ks in own else vr(MF+4*ks,4)
                for x in range(2):
                    for t in range(2):
                        e('v_smfmac_f32_16x16x64_bf16 %s, %s, %s, v%d'%(vr(ACC+(x*2+t)*4,4),A,wreg(x,t,ks),vIDX))
                        if gi<31 or wv==3: gaps[gi]()
                        gi+=1
            lg.wait(('mf',own[1]))
            if wv<3: e('s_branch L_qk_done')
        a.label('L_qk_done')
        stamp(2)
        vq=[(ks,t) for ks in range(8) for t in range(2)]
        def vmf(k=1,f=1):
            for _ in range(k):
                ks,t=vq.pop(0)
                e('v_smfmac_f32_16x16x64_bf16 %s, %s, %s, v%d'%(vr(VACC+t*4,4),vr(MF+4*ks,4),wreg(2,t,ks),vIDX))
                fill(f)
        vmf(1,0)
        e('v_pk_add_f32 %s, %s, %s'%(vr(MQ+4,2),vr(ACC,2),vr(ACC+2,2)))
        e('v_pk_add_f32 %s, %s, %s'%(vr(MQ+6,2),vr(ACC+4,2),vr(ACC+6,2)))
        e('v_pk_mul_f32 %s, %s, s[%d:%d]'%(vr(MQ+4,2),vr(MQ+4,2),sC,sC+1))
        e('v_pk_mul_f32 %s, %s, s[%d:%d]'%(vr(MQ+6,2),vr(MQ+6,2),sC,sC+1))
        e('v_pk_add_f32 %s, %s, %s'%(vr(ACC,2),vr(ACC+8,2),vr(ACC+10,2)))
        e('v_pk_add_f32 %s, %s, %s'%(vr(ACC+2,2),vr(ACC+12,2),vr(ACC+14,2)))
        e('v_cvt_pk_bf16_f32 v%d, v%d, v%d'%(MQ+2,MQ+4,MQ+5))
        e('v_cvt_pk_bf16_f32 v%d, v%d, v%d'%(MQ,ACC,ACC+1))
        e('v_cvt_pk_bf16_f32 v%d, v%d, v%d'%(MQ+3,MQ+6,MQ+7))
        e('ds_write2_b32 v%d, v%d, v%d offset0:0 offset1:1'%(vQKW,MQ,MQ+2)); lg.issue(('qkw',0))
        e('v_cvt_pk_bf16_f32 v%d, v%d, v%d'%(MQ+1,ACC+2,ACC+3))
        e('ds_write2_b32 v%d, v%d, v%d offset0:128 offset1:129'%(vQKW,MQ+1,MQ+3)); lg.issue(('qkw',1))
        vmf(5)
        lg.wait(('qkw',1))
        stamp(3)
        e('s_barrier')
        stamp(4)
        FR=[F,F+4,F+8,PX]
        def fread(c_):
            e('ds_read_b64_tr_b16 %s, v%d offset:%d'%(vr(FR[c_],2),vQKR,1024*c_)); lg.issue(('f',c_,0))
            e('ds_read_b64_tr_b16 %s, v%d offset:%d'%(vr(FR[c_]+2,2),vQKR,1024*c_+512)); lg.issue(('f',c_,1))
        Sm,Sx0,Sx1=ACC,ACC+4,ACC+8
        WB=[KX,KX+8,KX+16,KX+24,MF,MF+8,MF+24,MQ]
        NWB=8
        order=[(tt,k2) for tt2 in range(4) for k2 in range(2) for tt in (2*tt2,2*tt2+1)]
        wq=[(i,hf) for i in range(16) for hf in range(2)]
        wdone=[]
        def wo(k=1):
            for _ in range(k):
                if not wq: return False
                i,hf=wq.pop(0); wdone.append((i,hf)); tt,k2=order[i]; b=WB[i%NWB]
                e('ds_read_b128 %s, v%d offset:%d'%(vr(b+4*hf,4),(vWO0,vWO1)[k2],tt*2048+hf*1024)); lg.issue(('wo',i,hf))
            return True
        def smf(acc,A,c_):
            e('v_mfma_f32_16x16x32_bf16 %s, %s, %s, %s'%(vr(acc,4),A,vr(FR[c_],4),'0' if c_==0 else vr(acc,4)))
        def ex(r): e('v_exp_f32 v%d, v%d'%(r,r))
        def cv(d,r): e('v_cvt_pk_bf16_f32 v%d, v%d, v%d'%(d,r,r+1))
        PXT=MQ+4
        for c_ in range(4): fread(c_)
        vmf(1,0)
        if 'nopub' not in opt: e('buffer_store_dwordx2 %s, v%d, s[%d:%d], s%d offen%s'%(vr(MQ,2),vL16,S_WS,S_WS+3,sKM,SC)); vm.issue('km')
        vmf(1,0)
        for c_ in range(4):
            lg.wait(('f',c_,1)); smf(Sx0,vr(KX+4*c_,4),c_)
            fill(1)
        for c_ in range(4):
            smf(Sx1,vr(KX+16+4*c_,4),c_)
            if c_<2: wo(2)
            else: ex(Sx0+c_-2)
        for c_ in range(4):
            smf(Sm,vr(FR[c_],4),c_)
            if c_<2: ex(Sx0+2+c_)
            else: ex(Sx1+c_-2)
            wo(1)
        stamp(5)
        vmf(1,0); cv(PXT,Sx0); wo(1)
        vmf(1,0); ex(Sx1+2)
        vmf(1,0); ex(Sx1+3)
        vmf(1,0); cv(PXT+1,Sx0+2); wo(1)
        vmf(1,0); ex(Sm)
        vmf(1,0); ex(Sm+1)
        vmf(1,0); cv(PXT+2,Sx1); wo(1)
        vmf(1,0); cv(PXT+3,Sx1+2); wo(1)
        assert not vq, vq
        stamp(6)
        vm.wait('vx')
        stamp(7)
        O=MF+16
        L0=PX
        cv(PM,Sm)
        e('v_mfma_f32_16x16x32_bf16 %s, %s, %s, 0'%(vr(O,4),vr(VX,4),vr(PXT,4)))
        e('v_pk_add_f32 %s, %s, %s'%(vr(L0,2),vr(Sx0,2),vr(Sx0+2,2)))
        e('v_pk_add_f32 %s, %s, %s'%(vr(L0+2,2),vr(Sx1,2),vr(Sx1+2,2)))
        e('v_mfma_f32_16x16x32_bf16 %s, %s, %s, 0'%(vr(O+4,4),vr(VX+4,4),vr(PXT,4)))
        e('v_pk_add_f32 %s, %s, %s'%(vr(VACC,2),vr(VACC,2),vr(VACC+2,2)))
        e('v_pk_add_f32 %s, %s, %s'%(vr(VACC+4,2),vr(VACC+4,2),vr(VACC+6,2)))
        cv(VM0,VACC); cv(vVM1,VACC+4)
        e('v_pk_add_f32 %s, %s, %s'%(vr(L0,2),vr(L0,2),vr(Sm,2)))
        e('v_pk_add_f32 %s, %s, %s'%(vr(L0,2),vr(L0,2),vr(L0+2,2)))
        e('v_mfma_f32_16x16x16_bf16 %s, %s, %s, %s'%(vr(O,4),vr(VM0,2),vr(PM,2),vr(O,4)))
        e('v_add_f32 v%d, v%d, v%d'%(L0+2,L0,L0+1)); e('v_add_f32 v%d, v%d, v%d'%(L0+3,L0,L0+1))
        e('v_mfma_f32_16x16x16_bf16 %s, %s, %s, %s'%(vr(O+4,4),vr(vVM1,2),vr(PM,2),vr(O+4,4)))
        wo(1)
        e('v_permlane32_swap_b32 v%d, v%d'%(L0+2,L0+3))
        e('v_add_f32 v%d, v%d, v%d'%(L0,L0+2,L0+3)); e('v_add_f32 v%d, v%d, v%d'%(L0+1,L0+2,L0+3))
        wo(1); cv(MQ+2,VACC)
        e('v_permlane16_swap_b32 v%d, v%d'%(L0,L0+1))
        e('v_add_f32 v%d, v%d, v%d'%(L0+2,L0,L0+1))
        e('v_rcp_f32 v%d, v%d'%(L0,L0+2))
        e('v_lshrrev_b32 v%d, 23, v%d'%(L0+3,L0+2))
        e('v_subrev_u32 v%d, 27, v%d'%(L0+3,L0+3))
        e('v_cmp_lt_u32 vcc, %d, v%d'%(0 if 'forceslow' in opt else 200,L0+3))
        a.label('L_sm_back')
        for r in range(0,8,2):
            e('v_pk_mul_f32 %s, %s, %s op_sel_hi:[1,0]'%(vr(O+r,2),vr(O+r,2),vr(L0,2)))
        cv(MQ+3,VACC+4)
        e('s_and_b64 vcc, vcc, s[%d:%d]'%(sEXQ,sEXQ+1))
        for r in range(4): cv(MQ+4+r,O+2*r)
        e('s_cbranch_scc1 L_sm_slow')
        wsnap=list(wdone)
        e('s_mov_b64 exec, s[%d:%d]'%(sEXQ,sEXQ+1))
        e('ds_write_b128 v%d, %s'%(vOW,vr(MQ+4,4))); lg.issue('ow')
        e('s_mov_b64 exec, -1')
        if 'nopub' not in opt: e('buffer_store_dwordx2 %s, v%d, s[%d:%d], s%d offen offset:8%s'%(vr(MQ+2,2),vL16,S_WS,S_WS+3,sKM,SC)); vm.issue('vmst')
        OACC=[ACC,ACC+4,ACC+8,ACC+12,VACC,VACC+4,O,O+4]
        e('s_cmp_eq_u32 s%d, %d'%(sS,nsteps-1))
        e('s_cbranch_scc1 L_rec_done')
        for b in OACC[:4]:
            e('v_mov_b64 %s, 0'%vr(b,2)); e('v_mov_b64 %s, 0'%vr(b+2,2))
        lg.wait('ow')
        stamp(8)
        e('s_barrier')
        stamp(9)
        OA=VX
        e('ds_read_b128 %s, v%d offset:%d'%(vr(OA,4),vL16,L_O)); lg.issue('oa0')
        e('ds_read_b128 %s, v%d offset:%d'%(vr(OA+4,4),vL16,L_O+1024)); lg.issue('oa1')
        wo(2)
        for b in OACC[4:]:
            e('v_mov_b64 %s, 0'%vr(b,2)); e('v_mov_b64 %s, 0'%vr(b+2,2))
        post=[]
        def mkpost(tt):
            b=OACC[tt]; T=OACC[tt&4]+(tt&3)
            r=['v_pk_add_f32 %s, %s, %s'%(vr(b,2),vr(b,2),vr(b+2,2)), 'v_cvt_pk_bf16_f32 v%d, v%d, v%d'%(T,b,b+1)]
            if tt&3==0: r.append('v_and_or_b32 v%d, v%d, -2, s%d'%(T,T,sTAG))
            if tt&3==3 and 'nost' not in opt: r.append('buffer_store_dwordx4 %s, v%d, s[%d:%d], s%d offen'%(vr(OACC[tt&4],4),vP1W,S_WS,S_WS+3,sP1W+(tt>>2)))
            return r
        for i,(tt,k2) in enumerate(order):
            if i==0: lg.wait('oa0')
            if i==2: lg.wait('oa1')
            if i%2==0: lg.wait(('wo',i+1,1))
            e('v_smfmac_f32_16x16x64_bf16 %s, %s, %s, v%d'%(vr(OACC[tt],4),vr(OA+4*k2,4),vr(WB[i%NWB],8),vIDX))
            if wq: wo(2 if i<4 else 1)
            else:
                if i==12:
                    for t_ in range(4): post+=mkpost(t_)
                if post:
                    e(post.pop(0)); e(post.pop(0))
        assert not wq
        for t_ in range(4,8): post+=mkpost(t_)
        for x in post: e(x)
        SLOW.update(wsnap=wsnap,order=order,WB=WB)
    def skeleton():
        e('v_mov_b32 v%d, -1'%(MQ+5))
        e('s_mov_b64 exec, s[%d:%d]'%(sEXM,sEXM+1))
        e('buffer_store_dword v%d, v%d, s[%d:%d], s%d offen'%(MQ+5,vM2W,S_WS,S_WS+3,sRC))
        e('s_mov_b64 exec, -1')
        fill(P.get('sk',200))
        e('s_cmp_eq_u32 s%d, %d'%(sS,nsteps-1))
        e('s_cbranch_scc1 L_rec_done')
        e('s_barrier')
        stamp(9)
        for qq in range(2):
            T=ACC+4*qq
            e('v_and_or_b32 v%d, v%d, -2, s%d'%(T,15,sTAG))
            e('buffer_store_dwordx4 %s, v%d, s[%d:%d], s%d offen'%(vr(T,4),vP1W,S_WS,S_WS+3,sP1W+qq))
            if qq==0: fill(P.get('sg',8))
    if 'skel' in opt: skeleton()
    else: compute()
    SEL=KX
    e('ds_read_b128 %s, v%d offset:%d'%(vr(SEL,4),vL16,L_SEL))
    e('v_xor_b32 v%d, 8192, v%d'%(vKX,vKX))
    e('s_xor_b32 s%d, s%d, 8192'%(sKM0,sKM0)); e('s_add_u32 s%d, s%d, 0x40000'%(sVX,sVX)); e('s_add_u32 s%d, s%d, 0x20000'%(sKM,sKM))
    e('s_add_u32 s%d, s%d, 1'%(sS,sS)); e('s_cmp_lt_u32 s%d, 62'%sS); e('s_cselect_b32 s%d, 0x40000, 0'%sT0); e('s_add_u32 s%d, s%d, s%d'%(sKX,sKX,sT0))
    for r in range(ACC,ACC+24,2): e('v_mov_b64 %s, 0'%vr(r,2))
    e('s_mov_b32 m0, s%d'%sKM0)
    stamp(10)
    if 'solo' in opt:
        e('s_waitcnt vmcnt(0) lgkmcnt(0)')
        if 'tl' in P:
            e('s_sub_u32 s%d, s%d, s%d'%(sTM+22,sTM+20,sPREV)); e('s_add_u32 s%d, s%d, s%d'%(sACC0+2,sACC0+2,sTM+22))
        fill(30)
        e('s_branch L_have_mem')
    e('s_cmp_ge_u32 s%d, 2'%sW)
    e('s_cbranch_scc1 L_side')
    e('v_mov_b32 v%d, -1'%(MQ+5))
    e('s_mov_b64 exec, s[%d:%d]'%(sEXM,sEXM+1))
    e('buffer_store_dword v%d, v%d, s[%d:%d], s%d offen'%(MQ+5,vM2W,S_WS,S_WS+3,sRC))
    e('s_mov_b64 exec, -1')
    fill(P['d1'])
    P1=MF; X=KX+8
    PA,PB=MF,MF+16
    def iss1(R):
        for i in range(4):
            e('buffer_load_dwordx4 %s, v%d, s[%d:%d], s%d offen offset:%d sc1'%(vr(R+4*i,4),vP1R,S_WS,S_WS+3,sP1R+(i>>1),2048*(i&1)))
    def chk1(R,lbl):
        fill(P['f1'])
        for i in range(4):
            e('s_waitcnt vmcnt(%d)%s'%(7-i,' lgkmcnt(0)' if i==0 else ''))
            e('v_mfma_f32_16x16x32_bf16 %s, %s, %s, %s'%(vr(X,4),vr(SEL,4),vr(R+4*i,4),'0' if i==0 else vr(X,4)))
            if i==1: e('v_bitop3_b32 v%d, v%d, v%d, s%d bitop3:0x7e'%(MQ,R,R+4,sTAG))
        e('v_bitop3_b32 v%d, v%d, v%d, s%d bitop3:0x7e'%(MQ+1,R+8,R+12,sTAG))
        e('v_or_b32 v%d, v%d, v%d'%(MQ,MQ,MQ+1))
        e('v_and_b32 v%d, 1, v%d'%(MQ,MQ))
        e('v_cmp_ne_u32 vcc, 0, v%d'%MQ)
        fill(4)
        e('s_cbranch_vccz %s'%lbl)
    iss1(PA)
    fill(P['g1'])
    a.label('L_poll1')
    iss1(PB)
    chk1(PA,'L_poll1_ok')
    if ST: e('s_add_u32 s%d, s%d, 63'%(sACC0+5,sACC0+5))
    iss1(PA)
    chk1(PB,'L_poll1_ok')
    if ST: e('s_add_u32 s%d, s%d, 63'%(sACC0+5,sACC0+5))
    budget('L_poll1',3)
    a.label('L_poll1_ok')
    stamp(12)
    for r in range(4):
        e('v_add_f32_dpp v%d, v%d, v%d row_ror:8 row_mask:0xf bank_mask:0xf'%(X+4+r,X+r,X+r))
    e('v_cndmask_b32 v%d, v%d, v%d, s[%d:%d]'%(X,X+4,X+5,sPAR,sPAR+1)); e('v_cndmask_b32 v%d, v%d, v%d, s[%d:%d]'%(X+2,X+6,X+7,sPAR,sPAR+1))
    e('v_cvt_pk_bf16_f32 v%d, v%d, v%d'%(X+4,X,X+2))
    e('s_mov_b64 exec, s[%d:%d]'%(sEXM,sEXM+1))
    e('v_min_u32 v%d, -2, v%d'%(X+4,X+4))
    e('buffer_store_dword v%d, v%d, s[%d:%d], s%d offen'%(X+4,vM2W,S_WS,S_WS+3,sRB))
    e('s_mov_b64 exec, -1')
    stamp(13)
    fill(P['d2'])
    e('s_branch L_join')
    a.label('L_side')
    e('s_waitcnt vmcnt(0) lgkmcnt(0)')
    if 'prof' in opt:
        e('s_memrealtime s[%d:%d]'%(sTM,sTM+1)); e('s_waitcnt lgkmcnt(0)')
        e('v_mov_b32 v22, s%d'%sTM)
        e('s_lshl_b32 s%d, s%d, 8'%(sTM+2,sH)); e('s_lshl_b32 s%d, s%d, 2'%(sTM+3,sS)); e('s_add_u32 s%d, s%d, s%d'%(sTM+2,sTM+2,sTM+3)); e('s_add_u32 s%d, s%d, 0x%x'%(sTM+2,sTM+2,WS_MISC+0x18000))
        e('s_mov_b64 exec, 1'); e('buffer_store_dword v22, v15, s[%d:%d], s%d offen'%(S_WS,S_WS+3,sTM+2)); e('s_mov_b64 exec, -1')
    if FUSED:
        e('v_and_b32 v%d, 0x30, v%d'%(MQ+7,vL16))
        e('s_add_u32 s%d, s%d, 1'%(sT0,sS)); e('s_min_u32 s%d, s%d, 63'%(sT0,sT0))
        e('s_cmp_le_u32 s%d, s%d'%(sT0,sNEED))
        e('s_cbranch_scc1 L_kv_ok')
        e('s_lshr_b32 s%d, s%d, 4'%(sT1,sT0)); e('s_lshl_b32 s%d, s%d, 2'%(sT1,sT1)); e('s_add_u32 s%d, s%d, s%d'%(sT1,sT1,sFLG))
        e('s_and_b32 s%d, s%d, 15'%(sT2,sT0))
        a.label('L_kvspin')
        e('buffer_load_dword v%d, v%d, s[%d:%d], s%d offen sc1'%(vONE,MQ+7,S_WS,S_WS+3,sT1)); e('s_waitcnt vmcnt(0)')
        e('v_cmp_ge_u32 vcc, s%d, v%d'%(sT2,vONE)); e('s_cbranch_vccz L_kv_got')
        budget('L_kvspin',6)
        a.label('L_kv_got')
        e('v_min_u32_dpp v%d, v%d, v%d quad_perm:[1,0,3,2] row_mask:0xf bank_mask:0xf'%(vONE,vONE,vONE))
        e('v_min_u32_dpp v%d, v%d, v%d quad_perm:[2,3,0,1] row_mask:0xf bank_mask:0xf'%(vONE,vONE,vONE))
        e('v_readfirstlane_b32 s%d, v%d'%(sT2,vONE))
        e('s_and_b32 s%d, s%d, 48'%(sT0,sT0)); e('s_nop 2'); e('s_add_u32 s%d, s%d, s%d'%(sNEED,sT0,sT2)); e('s_sub_u32 s%d, s%d, 1'%(sNEED,sNEED))
        a.label('L_kv_ok')
    e('s_mov_b32 s%d, %d'%(sT0,P['ds']))
    a.label('L_sidefill')
    fill(8)
    e('s_sub_u32 s%d, s%d, 1'%(sT0,sT0)); e('s_cmp_lg_u32 s%d, 0'%sT0); e('s_cbranch_scc1 L_sidefill')
    a.label('L_join')
    fill(1)
    e('s_mov_b32 s%d, s%d'%(sT0,sRA)); e('s_mov_b32 s%d, s%d'%(sRA,sRB)); fill(1); e('s_mov_b32 s%d, s%d'%(sRB,sRC)); e('s_mov_b32 s%d, s%d'%(sRC,sT0))
    fill(1)
    e('s_xor_b32 s%d, s%d, 1'%(sTAG,sTAG))
    if 'tl' in P and 'solo' not in opt:
        e('s_waitcnt lgkmcnt(0)')
        e('s_sub_u32 s%d, s%d, s%d'%(sTM+22,sTM+20,sPREV)); e('s_add_u32 s%d, s%d, s%d'%(sACC0+2,sACC0+2,sTM+22))
    e('s_branch L_step')
    if 'skel' not in opt: slowpath()
    a.label('L_rec_done')
    e('s_waitcnt vmcnt(0) lgkmcnt(0)')
    rt(3)
    if ST:
        e('s_lshl_b32 s%d, s%d, 2'%(sT0,sH)); e('s_add_u32 s%d, s%d, s%d'%(sT0,sT0,sW)); e('s_lshl_b32 s%d, s%d, 7'%(sT0,sT0)); e('s_add_u32 s%d, s%d, 0x%x'%(sT0,sT0,WS_MISC))
        e('s_mov_b64 exec, 1')
        for i in range(NST):
            e('v_mov_b32 v16, s%d'%(sACC0+i))
            e('buffer_store_dword v16, v15, s[%d:%d], s%d offen offset:%d'%(S_WS,S_WS+3,sT0,4*i))
        e('v_mov_b32 v16, s%d'%sBUD)
        e('buffer_store_dword v16, v15, s[%d:%d], s%d offen offset:%d'%(S_WS,S_WS+3,sT0,4*NST))
        e('s_mov_b64 exec, -1')
    if FUSED:
        e('s_barrier')
        e('v_mov_b32 v%d, %d'%(MQ,nsteps))
        e('s_cmp_eq_u32 s%d, 0'%sW)
        e('s_cselect_b64 exec, 1, 0')
        e('buffer_store_dword v%d, v15, s[%d:%d], s%d offen sc1'%(MQ,S_WS,S_WS+3,sPROG))
        e('s_mov_b64 exec, -1')
    e('s_waitcnt vmcnt(0)')
    e('s_endpgm')
    a.label('L_abort')
    e('s_waitcnt vmcnt(0) lgkmcnt(0)')
    e('s_lshl_b32 s%d, s%d, 8'%(sT1,sS)); e('s_or_b32 s%d, s%d, s%d'%(sT0,sT0,sT1))
    e('v_mov_b32 v16, s%d'%sT0); e('v_mov_b32 v17, %d'%DBG_ABORT)
    e('s_mov_b64 exec, 1')
    e('buffer_store_dword v16, v17, s[%d:%d], 0 offen sc1'%(S_DBG,S_DBG+3))
    e('s_waitcnt vmcnt(0)')
    e('s_endpgm')

from gen_rec import HEADER, kd, srd

def rec_only_kernel(nsteps=64,opt=()):
    a=Asm()
    name='rec_kernel'
    a.raw(HEADER+'; @launch kernel=%s grid=(256,1,1) block=(256,1,1) lds=%d'%(name,LDS_BYTES))
    a.raw('.amdgcn_target "amdgcn-amd-amdhsa--gfx950"\n.text\n.globl %s\n.p2align 8\n.type %s,@function\n%s:'%(name,name,name))
    rec_body(a,nsteps,opt)
    a.raw(kd(name,sgpr=102))
    return a

def rec_body(a,nsteps,opt):
    e=a.e
    e('s_load_dwordx2 s[4:5], s[0:1], 8')
    e('s_load_dwordx4 s[%d:%d], s[0:1], 16'%(sPWQ,sPWQ+3))
    e('s_load_dwordx4 s[%d:%d], s[0:1], 32'%(sPWV,sPWV+3))
    e('s_load_dwordx4 s[68:71], s[0:1], 112')
    e('s_getreg_b32 s3, hwreg(HW_REG_XCC_ID, 0, 4)')
    e('v_lshrrev_b32 v1, 6, v0')
    e('v_readfirstlane_b32 s%d, v1'%sW)
    e('s_waitcnt lgkmcnt(0)')
    srd(e,S_WS,70,WS_BYTES); srd(e,S_DBG,68,256); srd(e,S_M0,4,8192); srd(e,S_W,sPWQ,4*MB)
    e('s_cmp_lg_u32 s3, 0')
    e('s_cbranch_scc1 L_exit')
    e('v_cmp_eq_u32 vcc, 0, v0')
    e('s_and_saveexec_b64 s[%d:%d], vcc'%(sT2,sT3))
    e('s_cbranch_execz L_noticket')
    e('v_mov_b32 v1, 1'); e('v_mov_b32 v2, %d'%DBG_TICKET)
    e('buffer_atomic_add v1, v2, s[%d:%d], 0 offen sc0'%(S_DBG,S_DBG+3))
    e('s_waitcnt vmcnt(0)')
    e('v_mov_b32 v2, %d'%L_MISC)
    e('ds_write_b32 v2, v1')
    e('s_waitcnt lgkmcnt(0)')
    a.label('L_noticket')
    e('s_mov_b64 exec, -1')
    e('s_barrier')
    e('v_mov_b32 v2, %d'%L_MISC)
    e('ds_read_b32 v1, v2')
    e('s_waitcnt lgkmcnt(0)')
    e('v_readfirstlane_b32 s%d, v1'%sH)
    e('s_nop 3')
    e('s_cmp_ge_u32 s%d, 32'%sH)
    e('s_cbranch_scc1 L_exit')
    gen_rec(a,nsteps,opt)
    a.label('L_exit')
    e('s_endpgm')

if __name__=='__main__':
    import sys
    ns=int(sys.argv[2]) if len(sys.argv)>2 else 64
    a=rec_only_kernel(ns,tuple(sys.argv[3:]))
    open(sys.argv[1],'w').write(a.text())
    print('nops inserted',a.nops,'lines',len(a.out))
```

```python
from asmdsl import *
from layout import *
import gen_rec3 as R
import gen_bulk as B
import sys
NAME='gated_mix__memory_aug_recurrent_mem_tr__moe_arch_mod__prompt_kernel'
def ticket(a,tag,off,dst):
    e=a.e
    e('v_cmp_eq_u32 vcc, 0, v0')
    e('s_and_saveexec_b64 s[46:47], vcc')
    e('s_cbranch_execz L_nt_%s'%tag)
    e('v_mov_b32 v1, 1'); e('v_mov_b32 v2, %s'%off)
    e('buffer_atomic_add v1, v2, s[%d:%d], 0 offen sc0'%(B.S_DBG,B.S_DBG+3))
    e('s_waitcnt vmcnt(0)')
    e('v_mov_b32 v2, %d'%L_MISC); e('ds_write_b32 v2, v1'); e('s_waitcnt lgkmcnt(0)')
    a.label('L_nt_%s'%tag)
    e('s_mov_b64 exec, -1')
    e('s_barrier')
    e('v_mov_b32 v2, %d'%L_MISC); e('ds_read_b32 v1, v2'); e('s_waitcnt lgkmcnt(0)')
    e('v_readfirstlane_b32 s%d, v1'%dst)
    e('s_nop 3')
    e('s_barrier')
def ldp(a,reg,off): a.e('s_load_dwordx2 s[%d:%d], s[0:1], %d'%(reg,reg+1,off))

def build(opt):
    a=Asm(); e=a.e
    SL=dict(sla=2,slo=2,sld=0)
    for o in opt:
        if o.startswith('sl'): k,v=o.split('='); SL[k]=int(v)
    opt=tuple(o for o in opt if not o.startswith('sl'))
    def brt(i):
        if 'prof' not in opt: return
        e('s_memrealtime s[100:101]'); e('s_waitcnt lgkmcnt(0)')
        e('v_mov_b32 v252, s100'); e('v_mov_b32 v253, 0')
        e('s_lshl_b32 s100, s2, 5'); e('s_add_u32 s100, s100, 0x%x'%(WS_MISC+0x10000+4*i))
        e('s_mov_b64 exec, 1'); e('buffer_store_dword v252, v253, s[%d:%d], s100 offen'%(B.S_WS,B.S_WS+3)); e('s_mov_b64 exec, -1')
    a.raw(R.HEADER+'; @launch grid=(256,1,1) block=(256,1,1) lds=%d'%LDS_BYTES)
    a.raw('.amdgcn_target "amdgcn-amd-amdhsa--gfx950"\n.text\n.globl %s\n.p2align 8\n.type %s,@function\n%s:'%(NAME,NAME,NAME))
    e('s_load_dwordx4 s[4:7], s[0:1], 0')
    e('s_load_dwordx4 s[%d:%d], s[0:1], 16'%(B.sPWQ,B.sPWQ+3))
    e('s_load_dwordx4 s[%d:%d], s[0:1], 32'%(B.sPWV,B.sPWV+3))
    e('s_load_dwordx2 s[%d:%d], s[0:1], 104'%(B.sPOUT,B.sPOUT+1))
    e('s_load_dwordx4 s[72:75], s[0:1], 112')
    e('s_getreg_b32 s3, hwreg(HW_REG_XCC_ID, 0, 4)')
    e('v_lshrrev_b32 v1, 6, v0')
    e('v_readfirstlane_b32 s%d, v1'%B.sW)
    e('s_waitcnt lgkmcnt(0)')
    B.srd(e,B.S_WS,74,WS_BYTES); B.srd(e,B.S_DBG,72,256); B.srd(e,B.S_W,B.sPWQ,4*MB)
    B.srd(e,R.S_M0,6,8192)
    B.srd(e,B.S_OUT,B.sPOUT,2*MB)
    brt(0)
    e('s_cmp_lg_u32 s3, 0')
    e('s_cbranch_scc1 L_bulk')
    ticket(a,'rec',DBG_TICKET,R.sH)
    e('s_cmp_ge_u32 s%d, 32'%R.sH)
    e('s_cbranch_scc1 L_bulk')
    R.gen_rec(a,64,('fused',)+opt)
    a.label('L_bulk')
    a.hist=[]
    B.srd(e,B.S_X,4,2*MB)
    sB_=99
    ticket(a,'bulk',DBG_BT,sB_)
    e('s_cmp_ge_u32 s%d, 224'%sB_); e('s_cbranch_scc1 L_end')
    e('s_mov_b32 s%d, 300000'%B.sBUD)
    e('s_cmp_lg_u32 s%d, 0'%sB_); e('s_cbranch_scc1 L_noinit')
    e('v_lshlrev_b32 v1, 4, v0')
    for r in range(4,8): e('v_mov_b32 v%d, 0'%r)
    for i in range(FL_BYTES//4096):
        e('s_mov_b32 s%d, 0x%x'%(B.sT0,WS_FL+i*4096)); e('buffer_store_dwordx4 v[4:7], v1, s[%d:%d], s%d offen sc1'%(B.S_WS,B.S_WS+3,B.sT0))
    e('s_waitcnt vmcnt(0)'); e('s_barrier')
    e('s_cmp_lg_u32 s%d, 0'%B.sW); e('s_cbranch_scc1 L_noinit')
    B.dbg_add(a,DBG_FRDY)
    a.label('L_noinit')
    e('s_cmp_ge_u32 s%d, 192'%sB_); e('s_cbranch_scc1 L_moe')
    e('s_mov_b32 s%d, 0'%B.sI1); e('s_mov_b32 s%d, s%d'%(B.sI0,sB_))
    for k in range(3):
        e('s_cmp_ge_u32 s%d, 48'%B.sI0); e('s_cselect_b32 s%d, 48, 0'%B.sT0); e('s_cselect_b32 s%d, 1, 0'%B.sT1)
        e('s_sub_u32 s%d, s%d, s%d'%(B.sI0,B.sI0,B.sT0)); e('s_add_u32 s%d, s%d, s%d'%(B.sI1,B.sI1,B.sT1))
    if SL['sld']:
        e('s_cmp_ge_u32 s%d, 32'%B.sI0); e('s_cselect_b32 s%d, 1, 0'%B.sT0)
        e('s_cmp_ge_u32 s%d, %d'%(B.sI1,SL.get('slr',4))); e('s_cselect_b32 s%d, 1, s%d'%(B.sT0,B.sT0))
        e('s_cmp_eq_u32 s%d, 0'%B.sT0); e('s_cbranch_scc1 L_nohold')
        e('s_memrealtime s[100:101]'); e('s_waitcnt lgkmcnt(0)'); e('s_add_u32 s%d, s100, %d'%(B.sT1,SL['sld']))
        a.label('L_hold')
        e('s_sleep 8'); e('s_memrealtime s[100:101]'); e('s_waitcnt lgkmcnt(0)')
        e('s_sub_u32 s%d, s100, s%d'%(B.sT0,B.sT1)); e('s_cmp_lt_i32 s%d, 0'%B.sT0); e('s_cbranch_scc1 L_hold')
        a.label('L_nohold')
    brt(1)
    B.gen_gemm(a,'g',flags=True)
    brt(2)
    e('s_cmp_lt_u32 s%d, 160'%sB_); e('s_cbranch_scc1 L_oproj')
    e('s_sub_u32 s%d, s%d, 128'%(sB_,sB_))
    e('s_branch L_attn')
    a.label('L_moe')
    e('s_sub_u32 s%d, s%d, 192'%(sB_,sB_))
    ldp(a,B.sE,64); ldp(a,B.sG,96); e('s_waitcnt lgkmcnt(0)')
    e('s_lshl_b32 s%d, s%d, 2'%(B.sI0,sB_)); e('s_add_u32 s%d, s%d, s%d'%(B.sI0,B.sI0,B.sW))
    B.router(a,'r')
    B.dbg_add(a,DBG_RT)
    e('s_cmp_ge_u32 s%d, 28'%sB_); e('s_cbranch_scc1 L_down')
    ldp(a,B.sE,72); ldp(a,B.sG,80); e('s_waitcnt lgkmcnt(0)')
    e('s_mov_b32 s%d, s%d'%(B.sI0,sB_))
    B.moe_up(a,'u')
    B.spin_dbg(a,'L_w_t8',DBG_T8,1,11)
    B.moe_up2(a,'u')
    B.dbg_add(a,DBG_UP)
    e('s_branch L_attn')
    a.label('L_down')
    e('s_cmp_lg_u32 s%d, 28'%sB_); e('s_cbranch_scc1 L_not8')
    e('s_cmp_lg_u32 s%d, 0'%B.sW); e('s_cbranch_scc1 L_not8')
    B.spin_dbg(a,'L_w_rt',DBG_RT,128,12)
    e('v_mov_b32 v11, 0')
    B.top8(a,'t')
    B.dbg_add(a,DBG_T8)
    a.label('L_not8')
    ldp(a,B.sE,88); e('s_waitcnt lgkmcnt(0)')
    e('s_sub_u32 s%d, s%d, 28'%(B.sI0,sB_)); e('s_lshl_b32 s%d, s%d, 1'%(B.sI0,B.sI0))
    e('s_mov_b32 s%d, 0'%B.sI1)
    a.label('L_down_loop')
    B.moe_down(a,'d')
    B.spin_dbg(a,'L_w_up',DBG_UP,112,13)
    B.moe_down2(a,'d')
    e('s_add_u32 s%d, s%d, 1'%(B.sI0,B.sI0)); e('s_add_u32 s%d, s%d, 1'%(B.sI1,B.sI1)); e('s_cmp_lt_u32 s%d, 2'%B.sI1)
    a.fence(); e('s_cbranch_scc1 L_down_loop')
    B.dbg_add(a,DBG_DN)
    brt(3)
    a.label('L_attn')
    a.fence()
    e('s_waitcnt vmcnt(0) lgkmcnt(0)')
    e('s_barrier')
    B.attn_setup(a,0)
    B.spin_dbg(a,'L_a_frdy',DBG_FRDY,1,14)
    e('s_lshl_b32 s%d, s%d, 2'%(B.sT0,sB_)); e('s_add_u32 s%d, s%d, s%d'%(B.sT0,B.sT0,B.sW))
    e('s_and_b32 s%d, s%d, 31'%(B.sI1,B.sT0)); e('s_lshr_b32 s%d, s%d, 5'%(B.sI0,B.sT0))
    e('v_min_u32 v10, 5, v1'); e('v_lshlrev_b32 v10, 4, v10'); e('v_mov_b32 v11, 0'); e('v_mov_b32 v12, 1')
    a.label('L_attn_loop')
    e('s_lshl_b32 s%d, s%d, 7'%(B.sD,B.sI1)); e('s_lshr_b32 s%d, s%d, 4'%(B.sT0,B.sI0)); e('s_lshl_b32 s%d, s%d, 2'%(B.sT0,B.sT0))
    e('s_add_u32 s%d, s%d, s%d'%(B.sD,B.sD,B.sT0)); e('s_add_u32 s%d, s%d, 0x%x'%(B.sD,B.sD,FL_G))
    e('s_and_b32 s%d, s%d, 15'%(B.sE,B.sI0))
    B.spin(a,'L_a_wg','buffer_load_dword v13, v10, s[%d:%d], s%d offen sc1'%(B.S_WS,B.S_WS+3,B.sD),'v_cmp_ge_u32 vcc, s%d, v13'%B.sE,15)
    B.attn_loads_x(a)
    e('s_lshl_b32 s%d, s%d, 8'%(B.sD,B.sI1)); e('s_add_u32 s%d, s%d, 0x%x'%(B.sD,B.sD,FL_REC))
    B.spin(a,'L_a_wr','buffer_load_dword v13, v11, s[%d:%d], s%d offen sc1'%(B.S_WS,B.S_WS+3,B.sD),'v_cmp_ge_u32 vcc, s%d, v13'%B.sI0,16,sleep=SL['sla'])
    B.attn_item(a)
    e('s_lshl_b32 s%d, s%d, 7'%(B.sD,B.sI0)); e('s_lshl_b32 s%d, s%d, 2'%(B.sT0,B.sI1)); e('s_add_u32 s%d, s%d, s%d'%(B.sD,B.sD,B.sT0)); e('s_add_u32 s%d, s%d, 0x%x'%(B.sD,B.sD,FL_O))
    e('s_waitcnt vmcnt(0)')
    e('s_mov_b64 exec, 1'); e('buffer_store_dword v12, v11, s[%d:%d], s%d offen sc1'%(B.S_WS,B.S_WS+3,B.sD)); e('s_mov_b64 exec, -1')
    e('s_add_u32 s%d, s%d, 8'%(B.sI0,B.sI0)); e('s_cmp_lt_u32 s%d, 64'%B.sI0)
    a.fence(); e('s_cbranch_scc1 L_attn_loop')
    e('s_branch L_end')
    a.label('L_oproj')
    a.fence()
    e('s_waitcnt vmcnt(0) lgkmcnt(0)')
    e('s_and_b32 s%d, s%d, 15'%(B.sI1,sB_))
    B.oproj_setup(a)
    brt(4)
    B.spin_dbg(a,'L_o_dn',DBG_DN,16,17)
    e('s_lshr_b32 s%d, s%d, 4'%(B.sI0,sB_))
    e('v_and_b32 v14, 31, v1'); e('v_lshlrev_b32 v14, 2, v14')
    a.label('L_o_loop')
    e('s_lshl_b32 s%d, s%d, 7'%(B.sD,B.sI0)); e('s_add_u32 s%d, s%d, 0x%x'%(B.sD,B.sD,FL_O))
    B.spin(a,'L_o_w','buffer_load_dword v15, v14, s[%d:%d], s%d offen sc1'%(B.S_WS,B.S_WS+3,B.sD),'v_cmp_eq_u32 vcc, 0, v15',18,sleep=SL['slo'])
    B.oproj_item(a,'o')
    e('s_add_u32 s%d, s%d, 10'%(B.sI0,B.sI0)); e('s_cmp_lt_u32 s%d, 64'%B.sI0)
    a.fence(); e('s_cbranch_scc1 L_o_loop')
    a.label('L_end')
    e('s_waitcnt vmcnt(0)')
    brt(5)
    e('s_waitcnt vmcnt(0)')
    e('s_endpgm')
    a.label('L_babort')
    e('v_mov_b32 v16, s%d'%B.sT0); e('v_mov_b32 v17, %d'%DBG_ABORT)
    e('s_mov_b64 exec, 1')
    e('buffer_store_dword v16, v17, s[%d:%d], 0 offen sc1'%(B.S_DBG,B.S_DBG+3))
    e('s_waitcnt vmcnt(0)')
    e('s_endpgm')
    a.raw(R.kd(NAME,sgpr=102))
    return a
if __name__=='__main__':
    a=build(tuple(sys.argv[2:]))
    open(sys.argv[1],'w').write(a.text())
    print('nops',a.nops,'lines',len(a.out))
```
